```python
import torch

def _softmax(x, axis=-1):
    return torch.softmax(x, dim=axis)
def _gelu(x):
    return torch.nn.functional.gelu(x, approximate="tanh")
def _silu(x):
    return torch.nn.functional.silu(x)
def _sigmoid(x):
    return torch.sigmoid(x)
def _layernorm(x, axis=-1, eps=1e-5):
    m = x.mean(dim=axis, keepdim=True)
    v = x.var(dim=axis, keepdim=True, unbiased=False)
    return (x - m) / torch.sqrt(v + eps)
def _scatter_add(tgt, idx, src, axis=0):
    return tgt.clone().index_add_(axis, idx, src)
def _segment_sum(src, seg, n):
    out = torch.zeros((n,) + src.shape[1:], dtype=src.dtype)
    return out.index_add_(0, seg, src)
def _pad(x, pw):
    flat = tuple(v for pair in reversed(pw) for v in pair)
    return torch.nn.functional.pad(x, flat)

kernel_name = 'sequential_preLN__sliding_block__mixer_s_mlp__prompt'

def setup_inputs():

    _w = (lambda a: (lambda t: t.to(torch.bfloat16) if t.is_floating_point() else t)(torch.as_tensor(a)))
    def _A_setup():
        B, S, D = 1, 2048, 640
        return {
            "x": _w((lambda *s: torch.randn(*s, dtype=torch.bfloat16) * 0.05)(B, S, D)),
            "wqkv": _w((lambda *s: torch.randn(*s, dtype=torch.bfloat16) * 0.05)(D, 3 * D)),
            "wo": _w((lambda *s: torch.randn(*s, dtype=torch.bfloat16) * 0.05)(D, D)),
        }
    _A_in = _A_setup()

    def _B_setup():
        B, S, D, F = 1, 2048, 640, 1536
        return {
            "x":  _w((lambda *s: torch.randn(*s, dtype=torch.bfloat16) * 0.05)(B, S, D)),
            "w1": _w((lambda *s: torch.randn(*s, dtype=torch.bfloat16) * 3.2)(D, D) * (D ** -0.5)),
            "w2": _w((lambda *s: torch.randn(*s, dtype=torch.bfloat16) * 3.2)(D, D) * (D ** -0.5)),
            "w3": _w((lambda *s: torch.randn(*s, dtype=torch.bfloat16) * 3.2)(D, F) * (D ** -0.5)),
            "w4": _w((lambda *s: torch.randn(*s, dtype=torch.bfloat16) * 3.2)(F, D) * (F ** -0.5)),
        }
    _B_in = _B_setup()

    return {
        "A_x": _A_in["x"],
        "A_wqkv": _A_in["wqkv"],
        "A_wo": _A_in["wo"],
        "B_x": _B_in["x"],
        "B_w1": _B_in["w1"],
        "B_w2": _B_in["w2"],
        "B_w3": _B_in["w3"],
        "B_w4": _B_in["w4"],
    }

def reference(A_x, A_wqkv, A_wo, B_x, B_w1, B_w2, B_w3, B_w4):
    def _A_ref(x, wqkv, wo):
        B, S, D = x.shape
        H = 32; Dh = D // H; W = 256
        qkv = (lambda x, *d: x.permute(*d))((x @ wqkv).reshape(B, S, 3, H, Dh), 2, 0, 3, 1, 4)
        q, k, v = qkv[0], qkv[1], qkv[2]
        scores = torch.einsum("bhqd,bhkd->bhqk", q, k) * (Dh ** -0.5)
        idx = torch.arange(S)
        mask = (idx[:, None] - idx[None, :] >= 0) & (idx[:, None] - idx[None, :] < W)
        scores = torch.where(mask[None, None], scores, -1e9)
        p = _softmax(scores, axis=-1)
        o = torch.einsum("bhqk,bhkd->bhqd", p, v)
        return (lambda x, *d: x.permute(*d))(o, 0, 2, 1, 3).reshape(B, S, D) @ wo

    def _B_ref(x, w1, w2, w3, w4):
        B, S, D = x.shape
        h = _gelu(_layernorm(x, axis=-1) @ w1)
        c = D // 4
        g0 = _pad(h[:, :, 0*c:1*c], ((0, 0), (1, 0), (0, 0)))[:, :S, :]
        g1 = _pad(h[:, :, 1*c:2*c], ((0, 0), (0, 1), (0, 0)))[:, 1:, :]
        g2 = _pad(h[:, :, 2*c:3*c], ((0, 0), (2, 0), (0, 0)))[:, :S, :]
        g3 = _pad(h[:, :, 3*c:   ], ((0, 0), (0, 2), (0, 0)))[:, 2:, :]
        hs = torch.concatenate([g0, g1, g2, g3], axis=-1) @ w2
        x1 = x + hs
        h2 = _gelu(_layernorm(x1, axis=-1) @ w3) @ w4
        return x1 + h2

    x = A_x
    h = x + _A_ref(_layernorm(x, axis=-1), A_wqkv, A_wo)
    h2 = h + _B_ref(_layernorm(h, axis=-1), B_w1, B_w2, B_w3, B_w4)
    return h2
```

```python
import sys

S = 2048
D = 640
F = 1536
NH = 32
DH = 20

WS_Q = 0
WS_K = 2621440
WS_V = 5242880
WS_O = 0x800000
WS_H = 0xB00000
WS_G = 0xE00000
WS_X1 = 0x1100000
WS_T = 0x1400000
WS_ST = 0x1B00000
ACT_BYTES = S * D * 2

P_X, P_WQKV, P_WO, P_BX, P_W1, P_W2, P_W3, P_W4 = 16, 18, 20, 22, 24, 26, 28, 30
P_OUT, P_DBG, P_WS = 32, 34, 36


class Asm:
    def __init__(self):
        self.lines = []
        self.nv = 1
        self.maxv = 1

    def __call__(self, s):
        self.lines.append("    " + s)

    def label(self, s):
        self.lines.append(s + ":")

    def comment(self, s):
        self.lines.append("    ; " + s)

    def v(self, n=1, align=1):
        self.nv = (self.nv + align - 1) // align * align
        r = self.nv
        self.nv += n
        self.maxv = max(self.maxv, self.nv)
        return r

    def text(self):
        return "\n".join(self.lines) + "\n"


def vr(b, n):
    return f"v[{b}:{b + n - 1}]" if n > 1 else f"v{b}"


def sr(b, n):
    return f"s[{b}:{b + n - 1}]" if n > 1 else f"s{b}"


def magic(d, maxval):
    for sh in range(0, 32):
        m = ((1 << sh) + d - 1) // d
        if m >= (1 << 24) or m * maxval >= (1 << 32):
            continue
        if all((x * m) >> sh == x // d for x in range(maxval + 1)):
            return m, sh
    raise ValueError("no magic")


def udiv(a, dst, src, d, maxval):
    if d & (d - 1) == 0:
        a(f"v_lshrrev_b32 v{dst}, {d.bit_length() - 1}, v{src}")
        return
    m, sh = magic(d, maxval)
    a(f"v_mul_u32_u24 v{dst}, {m}, v{src}")
    a(f"v_lshrrev_b32 v{dst}, {sh}, v{dst}")


def srd(a, dst, ptr, off, size):
    if off:
        a(f"s_add_u32 s{dst}, s{ptr}, {off}")
        a(f"s_addc_u32 s{dst + 1}, s{ptr + 1}, 0")
    else:
        a(f"s_mov_b32 s{dst}, s{ptr}")
        a(f"s_mov_b32 s{dst + 1}, s{ptr + 1}")
    a(f"s_and_b32 s{dst + 1}, s{dst + 1}, 0xffff")
    a(f"s_mov_b32 s{dst + 2}, {size}")
    a(f"s_mov_b32 s{dst + 3}, 0x00020000")


def load_kernargs(a):
    a("s_load_dwordx16 s[16:31], s[0:1], 0")
    a("s_load_dwordx4 s[32:35], s[0:1], 64")
    a("s_load_dwordx2 s[36:37], s[0:1], 80")


def bf16r(a, dst, src):
    a(f"v_cvt_pk_bf16_f32 v{dst}, v{src}, v{src}")
    a(f"v_lshlrev_b32 v{dst}, 16, v{dst}")


def kernel_header(name):
    return (f".globl {name}\n.p2align 8\n.type {name},@function\n{name}:\n")


def kernel_desc(name, nvgpr, nsgpr=102):
    acc = (nvgpr + 3) // 4 * 4
    return f""".amdhsa_kernel {name}
  .amdhsa_next_free_vgpr {nvgpr}
  .amdhsa_next_free_sgpr {nsgpr}
  .amdhsa_accum_offset {acc}
  .amdhsa_group_segment_fixed_size 0
  .amdhsa_kernarg_size 88
  .amdhsa_user_sgpr_count 2
  .amdhsa_user_sgpr_kernarg_segment_ptr 1
  .amdhsa_system_sgpr_workgroup_id_x 1
.end_amdhsa_kernel
"""


def gelu(a, x, t0, t1, sc):
    a(f"v_mul_f32 v{t0}, v{x}, v{x}")
    a(f"v_fma_f32 v{t0}, v{t0}, s{sc['c3']}, v{sc['vc1']}")
    a(f"v_mul_f32 v{t0}, v{t0}, v{x}")
    a(f"v_exp_f32 v{t0}, v{t0}")
    a("s_nop 0")
    a(f"v_add_f32 v{t0}, 1.0, v{t0}")
    a(f"v_rcp_f32 v{t0}, v{t0}")
    a("s_nop 0")
    a(f"v_mul_f32 v{x}, v{x}, v{t0}")


import struct
import math


def f32bits(x):
    return struct.unpack("<I", struct.pack("<f", x))[0]


def gen_gemm(name, NT, W, KS, ldb, lda, n_ntiles, ring, a_src, b_ptr, b_size, ln, shift, epi, PD=5):
    a = Asm()
    BM = 16 * W
    n_mtiles = S // BM
    NWG = n_mtiles * n_ntiles
    mper = n_mtiles // 8
    CH = 4
    NCH = KS // CH
    RPC = CH * NT // W
    assert CH * NT % W == 0
    SLOT = NT * 1024 * CH
    ring = min(ring, NCH)
    lds_bytes = ring * SLOT
    K = KS * 32

    a(f"s_cmp_ge_u32 s2, {NWG}")
    a(f"s_cbranch_scc1 {name}_end")
    load_kernargs(a)
    a("s_and_b32 s3, s2, 7")
    a("s_lshr_b32 s4, s2, 3")
    sh = mper.bit_length() - 1
    assert 1 << sh == mper
    a(f"s_lshl_b32 s3, s3, {sh}")
    a(f"s_and_b32 s5, s4, {mper - 1}")
    a("s_add_u32 s3, s3, s5")
    a(f"s_lshr_b32 s4, s4, {sh}")
    a(f"s_mul_i32 s5, s3, {BM}")
    a(f"s_mul_i32 s6, s4, {16 * NT}")
    vw = a.v()
    vl = a.v()
    vr16 = a.v()
    vg = a.v()
    a(f"v_lshrrev_b32 v{vw}, 6, v0")
    a(f"v_and_b32 v{vl}, 63, v0")
    a(f"v_and_b32 v{vr16}, 15, v0")
    a(f"v_bfe_u32 v{vg}, v0, 4, 2")
    a("s_nop 0")
    a(f"v_readfirstlane_b32 s7, v{vw}")
    vrow = a.v()
    a(f"v_lshl_add_u32 v{vrow}, v{vw}, 4, v{vr16}")
    a(f"v_add_u32 v{vrow}, s5, v{vrow}")
    a("s_lshl_b32 s8, s7, 10")
    a("s_waitcnt lgkmcnt(0)")
    SA, SB = 40, 44
    aptr, aoff, asize = a_src
    srd(a, SA, aptr, aoff, asize)
    srd(a, SB, b_ptr, 0, b_size)
    t0 = a.v()
    t1 = a.v()
    t2 = a.v()
    t3 = a.v()
    if not shift:
        vaoff = [a.v()]
        a(f"v_mul_u32_u24 v{vaoff[0]}, {lda}, v{vrow}")
        a(f"v_lshl_add_u32 v{vaoff[0]}, v{vg}, 4, v{vaoff[0]}")
    else:
        vaoff = [a.v() for _ in range(4)]
        a("s_mov_b32 s9, 0x80000000")
        for i, d in enumerate((-1, 1, -2, 2)):
            a(f"v_add_u32 v{t0}, {d}, v{vrow}")
            a(f"v_mul_u32_u24 v{vaoff[i]}, {lda}, v{t0}")
            a(f"v_lshl_add_u32 v{vaoff[i]}, v{vg}, 4, v{vaoff[i]}")
            a(f"v_cmp_gt_u32 vcc, {S}, v{t0}")
            a(f"v_mov_b32 v{t1}, s9")
            a("s_nop 1")
            a(f"v_cndmask_b32 v{vaoff[i]}, v{t1}, v{vaoff[i]}, vcc")
    vdma = [a.v() for _ in range(RPC)]
    for p in range(RPC):
        Fv, sl, rr = t0, t1, t2
        a(f"v_add_u32 v{Fv}, {p * 64 * W}, v0")
        udiv(a, sl, Fv, 64 * NT, 64 * NT * CH)
        a(f"v_mul_u32_u24 v{rr}, {64 * NT}, v{sl}")
        a(f"v_sub_u32 v{rr}, v{Fv}, v{rr}")
        idx = t0
        a(f"v_lshrrev_b32 v{idx}, 4, v{rr}")
        hi = t3
        udiv(a, hi, idx, NT, 4 * NT)
        d = vdma[p]
        a(f"v_mul_u32_u24 v{d}, {NT}, v{hi}")
        a(f"v_sub_u32 v{idx}, v{idx}, v{d}")
        a(f"v_bfe_u32 v{d}, v{rr}, 1, 2")
        a(f"v_lshl_add_u32 v{d}, v{sl}, 5, v{d}")
        a(f"v_and_b32 v{sl}, 1, v{hi}")
        a(f"v_lshl_add_u32 v{d}, v{sl}, 2, v{d}")
        a(f"v_bfe_u32 v{sl}, v{rr}, 3, 1")
        a(f"v_lshl_add_u32 v{d}, v{sl}, 3, v{d}")
        a(f"v_lshrrev_b32 v{sl}, 1, v{hi}")
        a(f"v_lshl_add_u32 v{d}, v{sl}, 4, v{d}")
        a(f"v_mul_u32_u24 v{d}, {ldb}, v{d}")
        a(f"v_and_b32 v{sl}, 1, v{rr}")
        a(f"v_lshl_add_u32 v{sl}, v{idx}, 1, v{sl}")
        a(f"v_lshl_add_u32 v{d}, v{sl}, 4, v{d}")
        a(f"v_lshl_add_u32 v{d}, s6, 1, v{d}")
    nbase = (lds_bytes + 65535) // 65536
    vb = [a.v() for _ in range(nbase)]
    a(f"v_bfe_u32 v{t0}, v0, 2, 2")
    a(f"v_lshlrev_b32 v{t0}, 5, v{t0}")
    a(f"v_bfe_u32 v{t1}, v0, 1, 1")
    a(f"v_lshl_add_u32 v{t0}, v{t1}, 4, v{t0}")
    a(f"v_and_b32 v{t1}, 1, v0")
    a(f"v_lshl_add_u32 v{t0}, v{t1}, 3, v{t0}")
    a(f"v_bfe_u32 v{t1}, v0, 4, 1")
    a(f"v_lshl_add_u32 v{t0}, v{t1}, 7, v{t0}")
    a(f"v_bfe_u32 v{t1}, v0, 5, 1")
    a(f"v_mul_u32_u24 v{t1}, {NT * 512}, v{t1}")
    a(f"v_add_u32 v{vb[0]}, v{t0}, v{t1}")
    for i in range(1, nbase):
        a(f"v_add_u32 v{vb[i]}, {65536 * i}, v{vb[0]}")
    if ln:
        vbx = [a.v() for _ in range(nbase)]
        a(f"s_min_u32 s9, s7, {NT - 1}")
        a("s_lshl_b32 s9, s9, 8")
        for i in range(nbase):
            a(f"v_add_u32 v{vbx[i]}, s9, v{vb[i]}")
        vones = a.v(4, 4)
        for i in range(4):
            a(f"v_mov_b32 v{vones + i}, 0x3f803f80")
        vsum = a.v()
        vsq = a.v()
        a(f"v_mov_b32 v{vsum}, 0")
        a(f"v_mov_b32 v{vsq}, 0")
    acc = [a.v(4, 4) for _ in range(NT)]
    ncs_extra = 0
    if ln:
        acs = a.v(4, 4)
        own_cs = list(range(W, NT))
        acs_own = {t: a.v(4, 4) for t in own_cs}
    areg = [[a.v(4, 4) for _ in range(CH)] for _ in range(ring)]
    vm = []

    ctx = dict(a=a, NT=NT, W=W, vrow=vrow, vg=vg, vr16=vr16, vl=vl, t=(t0, t1, t2, t3), acc=acc, vm=vm, name=name)
    epi.pre(ctx)

    def issue_chunk(c):
        slot = c % ring
        for s in range(CH):
            ks = c * CH + s
            if shift:
                vo = vaoff[ks // 5]
            else:
                vo = vaoff[0]
            a(f"buffer_load_dwordx4 {vr(areg[slot][s], 4)}, v{vo}, s[{SA}:{SA + 3}], 0 offen offset:{ks * 64}")
            vm.append(c)
        a(f"s_mov_b32 s10, {c * CH * 32 * ldb}")
        for p in range(RPC):
            a(f"s_add_u32 m0, s8, {slot * SLOT + p * W * 1024}")
            a("s_nop 0")
            a(f"buffer_load_dwordx4 v{vdma[p]}, s[{SB}:{SB + 3}], s10 offen lds")
            vm.append(c)

    for c in range(ring):
        issue_chunk(c)
    for t in range(NT):
        for i in range(4):
            a(f"v_mov_b32 v{acc[t] + i}, 0")
    if ln:
        for i in range(4):
            a(f"v_mov_b32 v{acs + i}, 0")
            for t in own_cs:
                a(f"v_mov_b32 v{acs_own[t] + i}, 0")

    def wait_chunk(c):
        last = max(i for i, tg in enumerate(vm) if isinstance(tg, int) and tg <= c)
        n = len(vm) - 1 - last
        a(f"s_waitcnt vmcnt({n})")

    units = []
    for ks in range(KS):
        for t in range(NT):
            units.append((ks, t))
        if ln:
            units.append((ks, 'x'))
    NB = PD + 2
    breg = [a.v(4, 4) for _ in range(NB)]

    def lds_addr(ks, t):
        c = ks // CH
        slot = c % ring
        off = slot * SLOT + (ks % CH) * NT * 1024 + (0 if t == 'x' else t * 256)
        return off

    def issue_read(i):
        ks, t = units[i]
        off = lds_addr(ks, t)
        base = vbx if t == 'x' else vb
        r = breg[i % NB]
        for h in range(2):
            o = off + h * NT * 256
            a(f"ds_read_b64_tr_b16 {vr(r + 2 * h, 2)}, v{base[o // 65536]} offset:{o % 65536}")

    nread = 0

    def advance_reads(upto):
        nonlocal nread
        while nread < min(upto, len(units)):
            ks, t = units[nread]
            if t == 0 and ks % CH == 0:
                c = ks // CH
                wait_chunk(c)
                a("s_barrier")
                if c >= 1 and c - 1 + ring < NCH:
                    pass
                if c >= 2 and c - 2 + ring < NCH:
                    issue_chunk(c - 2 + ring)
            issue_read(nread)
            nread += 1

    for i, (ks, t) in enumerate(units):
        advance_reads(i + PD + 1)
        ahead = nread - 1 - i
        a(f"s_waitcnt lgkmcnt({2 * ahead})")
        c = ks // CH
        ar = areg[c % ring][ks % CH]
        b = breg[i % NB]
        if t == 'x':
            a(f"v_mfma_f32_16x16x32_bf16 {vr(acs, 4)}, {vr(b, 4)}, {vr(vones, 4)}, {vr(acs, 4)}")
        else:
            a(f"v_mfma_f32_16x16x32_bf16 {vr(acc[t], 4)}, {vr(b, 4)}, {vr(ar, 4)}, {vr(acc[t], 4)}")
            if ln and t in own_cs:
                a(f"v_mfma_f32_16x16x32_bf16 {vr(acs_own[t], 4)}, {vr(b, 4)}, {vr(vones, 4)}, {vr(acs_own[t], 4)}")
            if ln and t < 4:
                a(f"v_dot2c_f32_bf16 v{vsum}, v{ar + t}, v{vones}")
                a(f"v_dot2c_f32_bf16 v{vsq}, v{ar + t}, v{ar + t}")
    if ln:
        a("s_nop 7")
        a("s_nop 1")
        a("s_barrier")
        a(f"v_lshlrev_b32 v{t0}, 4, v{vg}")
        a(f"s_min_u32 s9, s7, {NT - 1}")
        a("s_lshl_b32 s9, s9, 6")
        a(f"v_add_u32 v{t1}, s9, v{t0}")
        a(f"ds_write_b128 v{t1}, {vr(acs, 4)}")
        for vv in (vsum, vsq):
            a(f"v_mov_b32 v{t2}, v{vv}")
            a("s_nop 1")
            a(f"v_permlane16_swap_b32 v{vv}, v{t2}")
            a("s_nop 1")
            a(f"v_add_f32 v{vv}, v{vv}, v{t2}")
            a(f"v_mov_b32 v{t2}, v{vv}")
            a("s_nop 1")
            a(f"v_permlane32_swap_b32 v{vv}, v{t2}")
            a("s_nop 1")
            a(f"v_add_f32 v{vv}, v{vv}, v{t2}")
        a("s_waitcnt lgkmcnt(0)")
        a("s_barrier")
        vcs = {}
        for t in range(NT):
            if t in own_cs:
                vcs[t] = acs_own[t]
            else:
                vcs[t] = a.v(4, 4)
                a(f"ds_read_b128 {vr(vcs[t], 4)}, v{t0} offset:{t * 64}")
        vmean, vvar, vmb, vsqb, va, vbb = vsum, vsq, a.v(), a.v(), a.v(), a.v()
        a(f"s_mov_b32 s9, {f32bits(1.0 / K):#x}")
        a(f"v_mul_f32 v{vmean}, s9, v{vsum}")
        a(f"v_mul_f32 v{vvar}, s9, v{vsq}")
        a(f"v_fma_f32 v{vvar}, -v{vmean}, v{vmean}, v{vvar}")
        a(f"v_max_f32 v{vvar}, 0, v{vvar}")
        a(f"s_mov_b32 s9, {f32bits(1e-5):#x}")

        def ln_stats(mean, var, mb, sqb):
            bf16r(a, mb, mean)
            bf16r(a, sqb, var)
            a(f"v_add_f32 v{sqb}, s9, v{sqb}")
            bf16r(a, sqb, sqb)
            a(f"v_sqrt_f32 v{sqb}, v{sqb}")
            a("s_nop 0")
            bf16r(a, sqb, sqb)

        ln_stats(vmean, vvar, vmb, vsqb)
        a(f"v_rcp_f32 v{va}, v{vsqb}")
        a("s_nop 0")
        a(f"v_mul_f32 v{vbb}, v{vmb}, v{va}")
        a(f"v_sub_f32 v{vbb}, 0, v{vbb}")
        if ln == 2:
            m2, s2 = a.v(), a.v()
            a(f"v_sub_f32 v{t2}, v{vmean}, v{vmb}")
            a(f"v_mul_f32 v{t2}, v{t2}, v{va}")
            a(f"v_mul_f32 v{t3}, v{vvar}, v{va}")
            a(f"v_mul_f32 v{t3}, v{t3}, v{va}")
            ln_stats(t2, t3, m2, s2)
            a(f"v_rcp_f32 v{s2}, v{s2}")
            a("s_nop 0")
            a(f"v_sub_f32 v{vbb}, v{vbb}, v{m2}")
            a(f"v_mul_f32 v{vbb}, v{vbb}, v{s2}")
            a(f"v_mul_f32 v{va}, v{va}, v{s2}")
        a("s_waitcnt lgkmcnt(0)")
        for t in range(NT):
            for i in range(4):
                a(f"v_mul_f32 v{acc[t] + i}, v{acc[t] + i}, v{va}")
                a(f"v_fma_f32 v{acc[t] + i}, v{vcs[t] + i}, v{vbb}, v{acc[t] + i}")
        ctx.update(vmb=vmb, vsqb=vsqb)
    else:
        a("s_nop 7")
        a("s_nop 1")
    epi.post(ctx)
    a.label(f"{name}_end")
    a("s_endpgm")
    return a, lds_bytes, NWG, 64 * W


class EpiQKV:
    def pre(self, c):
        pass

    def post(self, c):
        a, NT, acc = c['a'], c['NT'], c['acc']
        t0, t1, t2, t3 = c['t']
        srd(a, 48, P_WS, WS_Q, 3 * ACT_BYTES)
        vb = a.v()
        a(f"v_mul_u32_u24 v{vb}, 40, v{c['vrow']}")
        a("s_lshr_b32 s9, s6, 2")
        for t in range(NT):
            a(f"v_add_u32 v{t0}, s9, v{c['vg']}")
            if t:
                a(f"v_add_u32 v{t0}, {4 * t}, v{t0}")
            udiv(a, t1, t0, 5, 480)
            a(f"v_mul_u32_u24 v{t2}, 5, v{t1}")
            a(f"v_sub_u32 v{t0}, v{t0}, v{t2}")
            a(f"v_mul_u32_u24 v{t1}, {S * 40}, v{t1}")
            a(f"v_lshl_add_u32 v{t1}, v{t0}, 3, v{t1}")
            a(f"v_add_u32 v{t1}, v{t1}, v{vb}")
            a(f"v_cvt_pk_bf16_f32 v{acc[t]}, v{acc[t]}, v{acc[t] + 1}")
            a(f"v_cvt_pk_bf16_f32 v{acc[t] + 1}, v{acc[t] + 2}, v{acc[t] + 3}")
            a(f"buffer_store_dwordx2 {vr(acc[t], 2)}, v{t1}, s[48:51], 0 offen")


def out_offset(c, ld):
    a = c['a']
    vo = a.v()
    a(f"v_mul_u32_u24 v{vo}, {ld}, v{c['vrow']}")
    a(f"v_lshl_add_u32 v{vo}, v{c['vg']}, 3, v{vo}")
    a(f"v_lshl_add_u32 v{vo}, s6, 1, v{vo}")
    return vo


def unpack2(a, lo, hi, src):
    if lo == src:
        a(f"v_and_b32 v{hi}, 0xffff0000, v{src}")
        a(f"v_lshlrev_b32 v{lo}, 16, v{src}")
    else:
        a(f"v_lshlrev_b32 v{lo}, 16, v{src}")
        a(f"v_and_b32 v{hi}, 0xffff0000, v{src}")


class EpiResid:
    def __init__(self, res_ptr, res_off, out_ptr, out_off):
        self.r = (res_ptr, res_off)
        self.o = (out_ptr, out_off)

    def pre(self, c):
        a, NT = c['a'], c['NT']
        srd(a, 48, self.o[0], self.o[1], ACT_BYTES)
        srd(a, 52, self.r[0], self.r[1], ACT_BYTES)
        self.vo = out_offset(c, D * 2)
        self.res = [a.v(2, 2) for _ in range(NT)]
        for t in range(NT):
            a(f"buffer_load_dwordx2 {vr(self.res[t], 2)}, v{self.vo}, s[52:55], 0 offen offset:{t * 32}")
            c['vm'].append('r')

    def post(self, c):
        a, NT, acc = c['a'], c['NT'], c['acc']
        t0, t1, t2, t3 = c['t']
        for t in range(NT):
            for hh in range(2):
                a(f"v_cvt_pk_bf16_f32 v{t0}, v{acc[t] + 2 * hh}, v{acc[t] + 2 * hh + 1}")
                unpack2(a, t1, t2, t0)
                unpack2(a, t0, t3, self.res[t] + hh)
                a(f"v_add_f32 v{t1}, v{t1}, v{t0}")
                a(f"v_add_f32 v{t2}, v{t2}, v{t3}")
                a(f"v_cvt_pk_bf16_f32 v{acc[t] + hh}, v{t1}, v{t2}")
            a(f"buffer_store_dwordx2 {vr(acc[t], 2)}, v{self.vo}, s[48:51], 0 offen offset:{t * 32}")


GC1 = -2.0 * math.log2(math.e) * math.sqrt(2.0 / math.pi)
GC3 = GC1 * 0.044715


class EpiGelu:
    def __init__(self, out_off, ld, size, stats=False):
        self.out_off, self.ld, self.size, self.stats = out_off, ld, size, stats

    def pre(self, c):
        a = c['a']
        srd(a, 48, P_WS, self.out_off, self.size)
        self.vo = out_offset(c, self.ld)
        self.vc1 = a.v()
        a(f"v_mov_b32 v{self.vc1}, {f32bits(GC1):#x}")
        a(f"s_mov_b32 s11, {f32bits(GC3):#x}")

    def post(self, c):
        a, NT, acc = c['a'], c['NT'], c['acc']
        t0, t1, t2, t3 = c['t']
        sc = dict(c3=11, vc1=self.vc1)
        if self.stats:
            srd(a, 52, P_WS, WS_ST, S * 8)
            a(f"v_lshlrev_b32 v{t0}, 3, v{c['vrow']}")
            a(f"v_mov_b32 v{t2}, v{c['vmb']}")
            a(f"v_mov_b32 v{t3}, v{c['vsqb']}")
            a("s_mov_b32 s9, 0x80000000")
            a(f"v_mov_b32 v{t1}, s9")
            a(f"v_cmp_eq_u32 vcc, 0, v{c['vg']}")
            a("s_nop 1")
            a(f"v_cndmask_b32 v{t0}, v{t1}, v{t0}, vcc")
            a("s_cmp_lg_u32 s4, 0")
            a(f"s_cbranch_scc1 {c['name']}_nostat")
            a(f"buffer_store_dwordx2 {vr(t2, 2)}, v{t0}, s[52:55], 0 offen")
            a.label(f"{c['name']}_nostat")
        for t in range(NT):
            for hh in range(2):
                r0, r1 = acc[t] + 2 * hh, acc[t] + 2 * hh + 1
                a(f"v_cvt_pk_bf16_f32 v{t0}, v{r0}, v{r1}")
                unpack2(a, r0, r1, t0)
                gelu(a, r0, t0, t1, sc)
                gelu(a, r1, t2, t3, sc)
            a(f"v_cvt_pk_bf16_f32 v{acc[t]}, v{acc[t]}, v{acc[t] + 1}")
            a(f"v_cvt_pk_bf16_f32 v{acc[t] + 1}, v{acc[t] + 2}, v{acc[t] + 3}")
            a(f"buffer_store_dwordx2 {vr(acc[t], 2)}, v{self.vo}, s[48:51], 0 offen offset:{t * 32}")


class EpiX1:
    def pre(self, c):
        a, NT = c['a'], c['NT']
        srd(a, 48, P_WS, WS_X1, ACT_BYTES)
        srd(a, 52, P_WS, WS_H, ACT_BYTES)
        srd(a, 56, P_WS, WS_ST, S * 8)
        self.vo = out_offset(c, D * 2)
        self.res = [a.v(2, 2) for _ in range(NT)]
        self.st = a.v(2, 2)
        t0 = c['t'][0]
        a(f"v_lshlrev_b32 v{t0}, 3, v{c['vrow']}")
        a(f"buffer_load_dwordx2 {vr(self.st, 2)}, v{t0}, s[56:59], 0 offen")
        c['vm'].append('r')
        for t in range(NT):
            a(f"buffer_load_dwordx2 {vr(self.res[t], 2)}, v{self.vo}, s[52:55], 0 offen offset:{t * 32}")
            c['vm'].append('r')

    def post(self, c):
        a, NT, acc = c['a'], c['NT'], c['acc']
        t0, t1, t2, t3 = c['t']
        mb, rs = self.st, self.st + 1
        a(f"v_rcp_f32 v{rs}, v{rs}")
        for t in range(NT):
            for hh in range(2):
                unpack2(a, t0, t1, self.res[t] + hh)
                a(f"v_sub_f32 v{t0}, v{t0}, v{mb}")
                a(f"v_sub_f32 v{t1}, v{t1}, v{mb}")
                a(f"v_cvt_pk_bf16_f32 v{t0}, v{t0}, v{t1}")
                unpack2(a, t0, t1, t0)
                a(f"v_mul_f32 v{t0}, v{t0}, v{rs}")
                a(f"v_mul_f32 v{t1}, v{t1}, v{rs}")
                a(f"v_cvt_pk_bf16_f32 v{t0}, v{t0}, v{t1}")
                unpack2(a, t0, t1, t0)
                a(f"v_cvt_pk_bf16_f32 v{t2}, v{acc[t] + 2 * hh}, v{acc[t] + 2 * hh + 1}")
                unpack2(a, t2, t3, t2)
                a(f"v_add_f32 v{t0}, v{t0}, v{t2}")
                a(f"v_add_f32 v{t1}, v{t1}, v{t3}")
                a(f"v_cvt_pk_bf16_f32 v{acc[t] + hh}, v{t0}, v{t1}")
            a(f"buffer_store_dwordx2 {vr(acc[t], 2)}, v{self.vo}, s[48:51], 0 offen offset:{t * 32}")


class EpiFinal:
    def pre(self, c):
        a, NT = c['a'], c['NT']
        srd(a, 48, P_OUT, 0, ACT_BYTES)
        srd(a, 52, P_WS, WS_H, ACT_BYTES)
        srd(a, 56, P_WS, WS_X1, ACT_BYTES)
        self.vo = out_offset(c, D * 2)
        self.h = [a.v(2, 2) for _ in range(NT)]
        self.x = [a.v(2, 2) for _ in range(NT)]
        for t in range(NT):
            a(f"buffer_load_dwordx2 {vr(self.h[t], 2)}, v{self.vo}, s[52:55], 0 offen offset:{t * 32}")
            c['vm'].append('r')
            a(f"buffer_load_dwordx2 {vr(self.x[t], 2)}, v{self.vo}, s[56:59], 0 offen offset:{t * 32}")
            c['vm'].append('r')

    def post(self, c):
        a, NT, acc = c['a'], c['NT'], c['acc']
        t0, t1, t2, t3 = c['t']
        for t in range(NT):
            for hh in range(2):
                a(f"v_cvt_pk_bf16_f32 v{t0}, v{acc[t] + 2 * hh}, v{acc[t] + 2 * hh + 1}")
                unpack2(a, t0, t1, t0)
                unpack2(a, t2, t3, self.x[t] + hh)
                a(f"v_add_f32 v{t0}, v{t0}, v{t2}")
                a(f"v_add_f32 v{t1}, v{t1}, v{t3}")
                a(f"v_cvt_pk_bf16_f32 v{t0}, v{t0}, v{t1}")
                unpack2(a, t0, t1, t0)
                unpack2(a, t2, t3, self.h[t] + hh)
                a(f"v_add_f32 v{t0}, v{t0}, v{t2}")
                a(f"v_add_f32 v{t1}, v{t1}, v{t3}")
                a(f"v_cvt_pk_bf16_f32 v{acc[t] + hh}, v{t0}, v{t1}")
            a(f"buffer_store_dwordx2 {vr(acc[t], 2)}, v{self.vo}, s[48:51], 0 offen offset:{t * 32}")


def gen_attn(name):
    a = Asm()
    W = 8
    L_K = 0
    L_VA = 24576
    L_VB = L_VA + 16384
    L_BIAS = L_VB + 8192
    L_ONE = L_BIAS + 8192
    lds_bytes = L_ONE + 64
    a("s_cmp_ge_u32 s2, 256")
    a(f"s_cbranch_scc1 {name}_end")
    load_kernargs(a)
    a("s_and_b32 s3, s2, 7")
    a("s_lshr_b32 s4, s2, 3")
    a("s_lshl_b32 s5, s3, 8")
    vw, vl, vr16, vg = a.v(), a.v(), a.v(), a.v()
    t0, t1, t2, t3 = a.v(), a.v(), a.v(), a.v()
    a(f"v_lshrrev_b32 v{vw}, 6, v0")
    a(f"v_and_b32 v{vl}, 63, v0")
    a(f"v_and_b32 v{vr16}, 15, v0")
    a(f"v_bfe_u32 v{vg}, v0, 4, 2")
    a("s_nop 0")
    a(f"v_readfirstlane_b32 s7, v{vw}")
    a("s_lshl_b32 s8, s7, 10")
    a(f"s_mul_i32 s6, s4, {S * 40}")
    a("s_sub_u32 s9, s5, 256")
    a("s_mov_b32 s12, 0x80000000")
    a("s_waitcnt lgkmcnt(0)")
    srd(a, 40, P_WS, WS_Q, ACT_BYTES)
    srd(a, 44, P_WS, WS_K, 2 * ACT_BYTES)
    srd(a, 48, P_WS, WS_V, ACT_BYTES + 64)
    srd(a, 52, P_WS, WS_O, ACT_BYTES)
    for r in range(3):
        a(f"v_add_u32 v{t0}, {r * 512}, v0")
        udiv(a, t1, t0, 48, 1536)
        a(f"v_mul_u32_u24 v{t2}, 48, v{t1}")
        a(f"v_sub_u32 v{t0}, v{t0}, v{t2}")
        a(f"v_and_b32 v{t2}, 15, v{t0}")
        a(f"v_lshl_add_u32 v{t1}, v{t1}, 4, v{t2}")
        a(f"v_add_u32 v{t1}, s9, v{t1}")
        a(f"v_lshrrev_b32 v{t0}, 4, v{t0}")
        a(f"v_mul_i32_i24 v{t2}, 40, v{t1}")
        a(f"v_lshl_add_u32 v{t2}, v{t0}, 4, v{t2}")
        a(f"v_add_u32 v{t2}, s6, v{t2}")
        a(f"v_cmp_gt_i32 vcc, 0, v{t1}")
        a(f"v_mov_b32 v{t3}, s12")
        a("s_nop 1")
        a(f"v_cndmask_b32 v{t2}, v{t2}, v{t3}, vcc")
        a(f"s_add_u32 m0, s8, {L_K + r * 8192}")
        a("s_nop 0")
        a(f"buffer_load_dwordx4 v{t2}, s[44:47], 0 offen lds")
    for r in range(2):
        a(f"v_add_u32 v{t0}, {r * 512}, v0")
        a(f"v_lshrrev_b32 v{t1}, 1, v{t0}")
        a(f"v_add_u32 v{t1}, s9, v{t1}")
        a(f"v_and_b32 v{t0}, 1, v{t0}")
        a(f"v_mul_i32_i24 v{t2}, 40, v{t1}")
        a(f"v_lshl_add_u32 v{t2}, v{t0}, 4, v{t2}")
        a(f"v_add_u32 v{t2}, s6, v{t2}")
        a(f"v_cmp_gt_i32 vcc, 0, v{t1}")
        a(f"v_mov_b32 v{t3}, s12")
        a("s_nop 1")
        a(f"v_cndmask_b32 v{t2}, v{t2}, v{t3}, vcc")
        a(f"s_add_u32 m0, s8, {L_VA + r * 8192}")
        a("s_nop 0")
        a(f"buffer_load_dwordx4 v{t2}, s[48:51], 0 offen lds")
    a(f"v_add_u32 v{t1}, s9, v0")
    a(f"v_mul_i32_i24 v{t2}, 40, v{t1}")
    a(f"v_add_u32 v{t2}, 32, v{t2}")
    a(f"v_add_u32 v{t2}, s6, v{t2}")
    a(f"v_cmp_gt_i32 vcc, 0, v{t1}")
    a(f"v_mov_b32 v{t3}, s12")
    a("s_nop 1")
    a(f"v_cndmask_b32 v{t2}, v{t2}, v{t3}, vcc")
    a(f"s_add_u32 m0, s8, {L_VB}")
    a("s_nop 0")
    a(f"buffer_load_dwordx4 v{t2}, s[48:51], 0 offen lds")
    vz = a.v(4, 4)
    a(f"v_mov_b32 v{vz}, 0")
    a(f"v_mov_b32 v{t3}, 0xf149")
    a(f"v_cndmask_b32 v{vz}, v{vz}, v{t3}, vcc")
    a(f"v_mov_b32 v{vz + 1}, 0")
    a(f"v_mov_b32 v{vz + 2}, 0")
    a(f"v_mov_b32 v{vz + 3}, 0")
    a(f"v_lshlrev_b32 v{t0}, 4, v0")
    a(f"ds_write_b128 v{t0}, {vr(vz, 4)} offset:{L_BIAS}")
    a(f"v_mov_b32 v{vz}, 0x3f80")
    a(f"v_mov_b32 v{t0}, {L_ONE}")
    a(f"ds_write_b128 v{t0}, {vr(vz, 4)}")
    vq = [a.v(4, 4) for _ in range(2)]
    vtok = a.v()
    a(f"v_lshl_add_u32 v{vtok}, v{vw}, 5, v{vr16}")
    a(f"v_add_u32 v{vtok}, s5, v{vtok}")
    a(f"v_mul_u32_u24 v{t0}, 40, v{vtok}")
    a(f"v_lshl_add_u32 v{t0}, v{vg}, 4, v{t0}")
    a(f"v_add_u32 v{t0}, s6, v{t0}")
    a(f"v_mov_b32 v{t3}, s12")
    a(f"v_cmp_gt_u32 vcc, 3, v{vg}")
    a("s_nop 1")
    a(f"v_cndmask_b32 v{t1}, v{t3}, v{t0}, vcc")
    a(f"v_cmp_gt_u32 vcc, 2, v{vg}")
    a("s_nop 1")
    a(f"v_cndmask_b32 v{t2}, v{t3}, v{t0}, vcc")
    for qt in range(2):
        a(f"buffer_load_dwordx2 {vr(vq[qt], 2)}, v{t1}, s[40:43], 0 offen offset:{qt * 640}")
        a(f"buffer_load_dwordx2 {vr(vq[qt] + 2, 2)}, v{t2}, s[40:43], 0 offen offset:{qt * 640 + 8}")
    mfirst = a.v(4, 4)
    mlast = a.v(4, 4)
    a(f"v_mov_b32 v{t3}, 0xf149f2ca")
    a(f"v_lshlrev_b32 v{t0}, 2, v{vg}")
    for r in range(4):
        a(f"v_add_u32 v{t1}, {r}, v{t0}")
        a(f"v_cmp_gt_u32 vcc, v{t1}, v{vr16}")
        a("s_nop 1")
        a(f"v_cndmask_b32 v{mfirst + r}, v{t3}, 0, vcc")
        a(f"v_cndmask_b32 v{mlast + r}, 0, v{t3}, vcc")
    vka = a.v()
    vks = a.v()
    a(f"v_lshlrev_b32 v{t0}, 4, v{vr16}")
    a(f"v_lshl_add_u32 v{t1}, v{vg}, 8, v{t0}")
    a(f"v_add_u32 v{t2}, {L_BIAS}, v{t0}")
    a(f"v_cmp_eq_u32 vcc, 3, v{vg}")
    a(f"v_mov_b32 v{vks}, 768")
    a(f"v_mov_b32 v{t3}, 256")
    a(f"v_cndmask_b32 v{vka}, v{t1}, v{t2}, vcc")
    a(f"v_cndmask_b32 v{vks}, v{vks}, v{t3}, vcc")
    a(f"v_lshlrev_b32 v{t0}, 1, v{vw}")
    a(f"v_mad_u32_u24 v{vka}, v{vks}, v{t0}, v{vka}")
    vva = a.v()
    vvb = a.v()
    a(f"v_bfe_u32 v{t0}, v0, 2, 2")
    a(f"v_lshl_add_u32 v{t0}, v{vg}, 2, v{t0}")
    a(f"v_lshl_add_u32 v{t0}, v{vw}, 5, v{t0}")
    a(f"v_and_b32 v{t1}, 3, v0")
    a(f"v_lshlrev_b32 v{t2}, 5, v{t0}")
    a(f"v_lshl_add_u32 v{vva}, v{t1}, 3, v{t2}")
    a(f"v_add_u32 v{vva}, {L_VA}, v{vva}")
    a(f"v_lshlrev_b32 v{vvb}, 4, v{t0}")
    a(f"v_add_u32 v{vvb}, {L_VB}, v{vvb}")
    vvs = a.v()
    a(f"v_cmp_eq_u32 vcc, 1, v{t1}")
    a(f"v_mov_b32 v{t3}, {L_ONE}")
    a(f"v_mov_b32 v{vvs}, 1")
    a(f"v_cndmask_b32 v{vvb}, v{vvb}, v{t3}, vcc")
    a(f"v_cndmask_b32 v{vvs}, v{vvs}, 0, vcc")
    CS = (DH ** -0.5) * math.log2(math.e)
    a(f"s_mov_b32 s13, {f32bits(CS):#x}")
    a("s_waitcnt vmcnt(0) lgkmcnt(0)")
    a(f"v_cmp_eq_u32 vcc, 3, v{vg}")
    a(f"v_mov_b32 v{t3}, 0x3f80")
    a("s_nop 0")
    for qt in range(2):
        a(f"v_cndmask_b32 v{vq[qt]}, v{vq[qt]}, v{t3}, vcc")
    a("s_barrier")
    sreg = [a.v(4, 4) for _ in range(18)]
    kf = [a.v(4, 4) for _ in range(4)]
    vf = [a.v(4, 4) for _ in range(4)]
    oacc = [a.v(4, 4) for _ in range(2)]
    preg = [a.v(4, 4) for _ in range(9)]
    vtmp = a.v()
    vadr = a.v()
    vm_, vmc = a.v(), a.v()
    for qt in range(2):
        def kread(i):
            a(f"v_mad_u32_u24 v{vadr}, v{vks}, {qt + i}, v{vka}")
            a(f"ds_read_b128 {vr(kf[i % 4], 4)}, v{vadr}")
        for i in range(3):
            kread(i)
        for i in range(17):
            if i + 3 < 17:
                kread(i + 3)
            ahead = min(3, 16 - i)
            a(f"s_waitcnt lgkmcnt({ahead})")
            cop = vr(mfirst, 4) if i == 0 else (vr(mlast, 4) if i == 16 else "0")
            a(f"v_mfma_f32_16x16x32_bf16 {vr(sreg[i], 4)}, {vr(kf[i % 4], 4)}, {vr(vq[qt], 4)}, {cop}")
        a("s_nop 7")
        a("s_nop 1")
        vals = [sreg[i] + r for i in range(17) for r in range(4)]
        a(f"v_max3_f32 v{vm_}, v{vals[0]}, v{vals[1]}, v{vals[2]}")
        j = 3
        while j + 1 < len(vals):
            a(f"v_max3_f32 v{vm_}, v{vm_}, v{vals[j]}, v{vals[j + 1]}")
            j += 2
        if j < len(vals):
            a(f"v_max_f32 v{vm_}, v{vm_}, v{vals[j]}")
        a(f"v_mov_b32 v{vtmp}, v{vm_}")
        a("s_nop 1")
        a(f"v_permlane16_swap_b32 v{vm_}, v{vtmp}")
        a("s_nop 1")
        a(f"v_max_f32 v{vm_}, v{vm_}, v{vtmp}")
        a(f"v_mov_b32 v{vtmp}, v{vm_}")
        a("s_nop 1")
        a(f"v_permlane32_swap_b32 v{vm_}, v{vtmp}")
        a("s_nop 1")
        a(f"v_max_f32 v{vm_}, v{vm_}, v{vtmp}")
        a(f"v_mul_f32 v{vmc}, s13, v{vm_}")
        for v in vals:
            a(f"v_fma_f32 v{v}, v{v}, s13, -v{vmc}")
        for v in vals:
            a(f"v_exp_f32 v{v}, v{v}")
        a("s_nop 0")
        for p in range(9):
            ta, tb = 2 * p, 2 * p + 1
            a(f"v_cvt_pk_bf16_f32 v{preg[p]}, v{sreg[ta]}, v{sreg[ta] + 1}")
            a(f"v_cvt_pk_bf16_f32 v{preg[p] + 1}, v{sreg[ta] + 2}, v{sreg[ta] + 3}")
            if tb < 17:
                a(f"v_cvt_pk_bf16_f32 v{preg[p] + 2}, v{sreg[tb]}, v{sreg[tb] + 1}")
                a(f"v_cvt_pk_bf16_f32 v{preg[p] + 3}, v{sreg[tb] + 2}, v{sreg[tb] + 3}")
            else:
                a(f"v_mov_b32 v{preg[p] + 2}, 0")
                a(f"v_mov_b32 v{preg[p] + 3}, 0")
        def vread(p):
            k0 = 16 * (qt + 2 * p)
            k1 = k0 + 16 if 2 * p + 1 < 17 else k0
            fa, fb = vf[(2 * p) % 4], vf[(2 * p + 1) % 4]
            a(f"ds_read_b64_tr_b16 {vr(fa, 2)}, v{vva} offset:{k0 * 32}")
            a(f"ds_read_b64_tr_b16 {vr(fa + 2, 2)}, v{vva} offset:{k1 * 32}")
            a(f"v_mad_u32_u24 v{vadr}, v{vvs}, {k0 * 16 // 16}, 0")
            a.lines.pop()
            a(f"v_mul_u32_u24 v{vadr}, {k0 * 16}, v{vvs}")
            a(f"v_add_u32 v{vadr}, v{vadr}, v{vvb}")
            a(f"ds_read_b64_tr_b16 {vr(fb, 2)}, v{vadr}")
            a(f"v_mul_u32_u24 v{vtmp}, {k1 * 16}, v{vvs}")
            a(f"v_add_u32 v{vtmp}, v{vtmp}, v{vvb}")
            a(f"ds_read_b64_tr_b16 {vr(fb + 2, 2)}, v{vtmp}")
        vread(0)
        for p in range(9):
            if p + 1 < 9:
                vread(p + 1)
                a("s_waitcnt lgkmcnt(4)")
            else:
                a("s_waitcnt lgkmcnt(0)")
            fa, fb = vf[(2 * p) % 4], vf[(2 * p + 1) % 4]
            c0 = "0" if p == 0 else vr(oacc[0], 4)
            c1 = "0" if p == 0 else vr(oacc[1], 4)
            a(f"v_mfma_f32_16x16x32_bf16 {vr(oacc[0], 4)}, {vr(fa, 4)}, {vr(preg[p], 4)}, {c0}")
            a(f"v_mfma_f32_16x16x32_bf16 {vr(oacc[1], 4)}, {vr(fb, 4)}, {vr(preg[p], 4)}, {c1}")
        a("s_nop 7")
        a("s_nop 1")
        a(f"v_lshlrev_b32 v{vtmp}, 2, v{vr16}")
        a(f"v_add_u32 v{vtmp}, 64, v{vtmp}")
        a(f"ds_bpermute_b32 v{vm_}, v{vtmp}, v{oacc[1]}")
        a("s_waitcnt lgkmcnt(0)")
        a(f"v_rcp_f32 v{vm_}, v{vm_}")
        a("s_nop 0")
        for r in range(4):
            a(f"v_mul_f32 v{oacc[0] + r}, v{oacc[0] + r}, v{vm_}")
            a(f"v_mul_f32 v{oacc[1] + r}, v{oacc[1] + r}, v{vm_}")
        a(f"v_cvt_pk_bf16_f32 v{oacc[0]}, v{oacc[0]}, v{oacc[0] + 1}")
        a(f"v_cvt_pk_bf16_f32 v{oacc[0] + 1}, v{oacc[0] + 2}, v{oacc[0] + 3}")
        a(f"v_cvt_pk_bf16_f32 v{oacc[1]}, v{oacc[1]}, v{oacc[1] + 1}")
        a(f"v_cvt_pk_bf16_f32 v{oacc[1] + 1}, v{oacc[1] + 2}, v{oacc[1] + 3}")
        a(f"v_add_u32 v{vtmp}, {16 * qt}, v{vtok}")
        a(f"v_mul_u32_u24 v{vtmp}, {D * 2}, v{vtmp}")
        a("s_mul_i32 s14, s4, 40")
        a(f"v_add_u32 v{vtmp}, s14, v{vtmp}")
        a(f"v_lshl_add_u32 v{vadr}, v{vg}, 3, v{vtmp}")
        a(f"buffer_store_dwordx2 {vr(oacc[0], 2)}, v{vadr}, s[52:55], 0 offen")
        a(f"v_mov_b32 v{vadr}, s12")
        a(f"v_cmp_eq_u32 vcc, 0, v{vg}")
        a("s_nop 1")
        a(f"v_cndmask_b32 v{vadr}, v{vadr}, v{vtmp}, vcc")
        a(f"buffer_store_dwordx2 {vr(oacc[1], 2)}, v{vadr}, s[52:55], 0 offen offset:32")
    a.label(f"{name}_end")
    a("s_endpgm")
    return a, lds_bytes, 256, 512


def build():
    ks = []
    ks.append(("k1_qkv_kernel",) + gen_gemm("k1_qkv_kernel", NT=8, W=8, KS=20, ldb=3840, lda=1280, n_ntiles=15, ring=5,
                                            a_src=(P_X, 0, ACT_BYTES), b_ptr=P_WQKV, b_size=640 * 1920 * 2, ln=1, shift=False,
                                            epi=EpiQKV()))
    ks.append(("k2_attn_kernel",) + gen_attn("k2_attn_kernel"))
    ks.append(("k3_wo_kernel",) + gen_gemm("k3_wo_kernel", NT=5, W=4, KS=20, ldb=1280, lda=1280, n_ntiles=8, ring=5,
                                           a_src=(P_WS, WS_O, ACT_BYTES), b_ptr=P_WO, b_size=640 * 640 * 2, ln=0, shift=False,
                                           epi=EpiResid(P_X, 0, P_WS, WS_H)))
    ks.append(("k4_w1_kernel",) + gen_gemm("k4_w1_kernel", NT=5, W=4, KS=20, ldb=1280, lda=1280, n_ntiles=8, ring=5,
                                           a_src=(P_WS, WS_H, ACT_BYTES), b_ptr=P_W1, b_size=640 * 640 * 2, ln=2, shift=False,
                                           epi=EpiGelu(WS_G, 1280, ACT_BYTES, stats=True)))
    ks.append(("k5_w2_kernel",) + gen_gemm("k5_w2_kernel", NT=5, W=4, KS=20, ldb=1280, lda=1280, n_ntiles=8, ring=5,
                                           a_src=(P_WS, WS_G, ACT_BYTES), b_ptr=P_W2, b_size=640 * 640 * 2, ln=0, shift=True,
                                           epi=EpiX1()))
    ks.append(("k6_w3_kernel",) + gen_gemm("k6_w3_kernel", NT=6, W=8, KS=20, ldb=3072, lda=1280, n_ntiles=16, ring=5,
                                           a_src=(P_WS, WS_X1, ACT_BYTES), b_ptr=P_W3, b_size=640 * 1536 * 2, ln=1, shift=False,
                                           epi=EpiGelu(WS_T, 3072, S * F * 2)))
    ks.append(("k7_w4_kernel",) + gen_gemm("k7_w4_kernel", NT=5, W=4, KS=48, ldb=1280, lda=3072, n_ntiles=8, ring=7,
                                           a_src=(P_WS, WS_T, S * F * 2), b_ptr=P_W4, b_size=1536 * 640 * 2, ln=0, shift=False,
                                           epi=EpiFinal()))
    ref = open("sequential_preLN__sliding_block__mixer_s_mlp__prompt.s.ref").read()
    head = []
    for line in ref.splitlines():
        if not line.startswith(";"):
            break
        if "@launch" in line or "Override launch" in line or "grid=ceil" in line:
            continue
        head.append(line)
    out = "\n".join(head) + "\n"
    for name, a, lds, nwg, thr in ks:
        out += f"; @launch kernel={name} grid=({nwg},1,1) block=({thr},1,1) lds={lds}\n"
    out += '.amdgcn_target "amdgcn-amd-amdhsa--gfx950"\n.text\n'
    for name, a, lds, nwg, thr in ks:
        out += kernel_header(name) + a.text()
    out += '.section .rodata,"a"\n'
    for name, a, lds, nwg, thr in ks:
        out += ".p2align 6\n" + kernel_desc(name, a.maxv)
        print(name, "vgprs", a.maxv, "lds", lds, "wgs", nwg, "instrs", len(a.lines), file=sys.stderr)
    return out


if __name__ == "__main__":
    path = sys.argv[1] if len(sys.argv) > 1 else "sequential_preLN__sliding_block__mixer_s_mlp__prompt.s"
    open(path, "w").write(build())
```

```python
import sys

S = 2048
D = 640
F = 1536
NH = 32
DH = 20

WS_Q = 0
WS_K = 2621440
WS_V = 5242880
WS_O = 0x800000
WS_H = 0xB00000
WS_G = 0xE00000
WS_X1 = 0x1100000
WS_T = 0x1400000
WS_ST = 0x1B00000
ACT_BYTES = S * D * 2

P_X, P_WQKV, P_WO, P_BX, P_W1, P_W2, P_W3, P_W4 = 16, 18, 20, 22, 24, 26, 28, 30
P_OUT, P_DBG, P_WS = 32, 34, 36


class Asm:
    def __init__(self):
        self.lines = []
        self.nv = 1
        self.maxv = 1

    def __call__(self, s):
        self.lines.append("    " + s)

    def label(self, s):
        self.lines.append(s + ":")

    def comment(self, s):
        self.lines.append("    ; " + s)

    def v(self, n=1, align=1):
        self.nv = (self.nv + align - 1) // align * align
        r = self.nv
        self.nv += n
        self.maxv = max(self.maxv, self.nv)
        return r

    def text(self):
        return "\n".join(self.lines) + "\n"


def vr(b, n):
    return f"v[{b}:{b + n - 1}]" if n > 1 else f"v{b}"


def sr(b, n):
    return f"s[{b}:{b + n - 1}]" if n > 1 else f"s{b}"


def magic(d, maxval):
    for sh in range(0, 32):
        m = ((1 << sh) + d - 1) // d
        if m >= (1 << 24) or m * maxval >= (1 << 32):
            continue
        if all((x * m) >> sh == x // d for x in range(maxval + 1)):
            return m, sh
    raise ValueError("no magic")


def udiv(a, dst, src, d, maxval):
    if d & (d - 1) == 0:
        a(f"v_lshrrev_b32 v{dst}, {d.bit_length() - 1}, v{src}")
        return
    m, sh = magic(d, maxval)
    a(f"v_mul_u32_u24 v{dst}, {m}, v{src}")
    a(f"v_lshrrev_b32 v{dst}, {sh}, v{dst}")


def srd(a, dst, ptr, off, size):
    if off:
        a(f"s_add_u32 s{dst}, s{ptr}, {off}")
        a(f"s_addc_u32 s{dst + 1}, s{ptr + 1}, 0")
    else:
        a(f"s_mov_b32 s{dst}, s{ptr}")
        a(f"s_mov_b32 s{dst + 1}, s{ptr + 1}")
    a(f"s_and_b32 s{dst + 1}, s{dst + 1}, 0xffff")
    a(f"s_mov_b32 s{dst + 2}, {size}")
    a(f"s_mov_b32 s{dst + 3}, 0x00020000")


def load_kernargs(a):
    a("s_load_dwordx16 s[16:31], s[0:1], 0")
    a("s_load_dwordx4 s[32:35], s[0:1], 64")
    a("s_load_dwordx2 s[36:37], s[0:1], 80")


def bf16r(a, dst, src):
    a(f"v_cvt_pk_bf16_f32 v{dst}, v{src}, v{src}")
    a(f"v_lshlrev_b32 v{dst}, 16, v{dst}")


STAMP = False
def stamp(a, st):
    if not STAMP:
        return
    i = st[0]
    st[0] += 1
    a(f"s_memtime s[{70 + 2 * i}:{71 + 2 * i}]")
    a("s_waitcnt lgkmcnt(0)")


def stamp_flush(a, st, name):
    if not STAMP:
        return
    a("s_cmp_lg_u32 s2, 37")
    a(f"s_cbranch_scc1 {name}_nost")
    a("s_cmp_lg_u32 s7, 0")
    a(f"s_cbranch_scc1 {name}_nost")
    srd(a, 60, P_DBG, 0, 256)
    t = a.v()
    u = a.v()
    a(f"v_mov_b32 v{u}, 0")
    for i in range(st[0]):
        a(f"v_mov_b32 v{t}, s{70 + 2 * i}")
        a(f"buffer_store_dword v{t}, v{u}, s[60:63], 0 offen offset:{4 * i}")
    a.label(f"{name}_nost")


def kernel_header(name):
    return (f".globl {name}\n.p2align 8\n.type {name},@function\n{name}:\n")


def kernel_desc(name, nvgpr, nsgpr=102):
    acc = (nvgpr + 3) // 4 * 4
    return f""".amdhsa_kernel {name}
  .amdhsa_next_free_vgpr {nvgpr}
  .amdhsa_next_free_sgpr {nsgpr}
  .amdhsa_accum_offset {acc}
  .amdhsa_group_segment_fixed_size 0
  .amdhsa_kernarg_size 88
  .amdhsa_user_sgpr_count 2
  .amdhsa_user_sgpr_kernarg_segment_ptr 1
  .amdhsa_system_sgpr_workgroup_id_x 1
.end_amdhsa_kernel
"""


def gelu(a, x, t0, t1, sc):
    a(f"v_mul_f32 v{t0}, v{x}, v{x}")
    a(f"v_fma_f32 v{t0}, v{t0}, s{sc['c3']}, v{sc['vc1']}")
    a(f"v_mul_f32 v{t0}, v{t0}, v{x}")
    a(f"v_exp_f32 v{t0}, v{t0}")
    a("s_nop 0")
    a(f"v_add_f32 v{t0}, 1.0, v{t0}")
    a(f"v_rcp_f32 v{t0}, v{t0}")
    a("s_nop 0")
    a(f"v_mul_f32 v{x}, v{x}, v{t0}")


import struct
import math


def f32bits(x):
    return struct.unpack("<I", struct.pack("<f", x))[0]


def gen_gemm(name, NT, W, KS, ldb, n_ntiles, ring, a_src, b_ptr, b_size, ln, shift, epi, PD=5, CH=4, a_lds=False):
    a = Asm()
    BM = 16 * W
    n_mtiles = S // BM
    NWG = n_mtiles * n_ntiles
    mper = n_mtiles // 8
    NCH = KS // CH
    RPC = CH * NT // W
    assert CH * NT % W == 0
    BSLOT = NT * 1024 * CH
    ASLOT = (W * 2048) if a_lds else 0
    if a_lds:
        assert CH == 2
    ring = min(ring, NCH)
    A_LDS0 = ring * BSLOT
    lds_bytes = ring * (BSLOT + ASLOT)
    K = KS * 32
    PER = {5: 1, 6: 2, 8: 8}[NT]

    a(f"s_cmp_ge_u32 s2, {NWG}")
    a(f"s_cbranch_scc1 {name}_end")
    st = [0]
    stamp(a, st)
    load_kernargs(a)
    a("s_and_b32 s3, s2, 7")
    a("s_lshr_b32 s4, s2, 3")
    sh = mper.bit_length() - 1
    assert 1 << sh == mper
    a(f"s_lshl_b32 s3, s3, {sh}")
    a(f"s_and_b32 s5, s4, {mper - 1}")
    a("s_add_u32 s3, s3, s5")
    a(f"s_lshr_b32 s4, s4, {sh}")
    a(f"s_mul_i32 s5, s3, {BM}")
    a(f"s_mul_i32 s6, s4, {16 * NT}")
    vw, vl, vr16, vg = a.v(), a.v(), a.v(), a.v()
    a(f"v_lshrrev_b32 v{vw}, 6, v0")
    a(f"v_and_b32 v{vl}, 63, v0")
    a(f"v_and_b32 v{vr16}, 15, v0")
    a(f"v_bfe_u32 v{vg}, v0, 4, 2")
    a("s_nop 0")
    a(f"v_readfirstlane_b32 s7, v{vw}")
    vrow = a.v()
    a(f"v_lshl_add_u32 v{vrow}, v{vw}, 4, v{vr16}")
    a(f"v_add_u32 v{vrow}, s5, v{vrow}")
    a("s_lshl_b32 s8, s7, 10")
    t0, t1, t2, t3 = a.v(4, 4), a.v() - 3, 0, 0
    a.nv -= 1
    t1, t2, t3 = t0 + 1, t0 + 2, t0 + 3
    SA, SB = 40, 44
    if a_lds:
        vaoff = [a.v()]
        a(f"v_bfe_u32 v{t0}, v0, 3, 3")
        a(f"v_and_b32 v{t1}, 7, v0")
        a(f"v_xor_b32 v{t1}, v{t1}, v{t0}")
        a(f"v_lshl_add_u32 v{t0}, v{vw}, 4, v{t0}")
        a(f"v_add_u32 v{t0}, s5, v{t0}")
        a(f"v_mul_u32_u24 v{t0}, {K * 2}, v{t0}")
        a(f"v_lshl_add_u32 v{vaoff[0]}, v{t1}, 4, v{t0}")
        nab = (lds_bytes + 65535) // 65536
        vard = [[a.v() for _ in range(nab)] for _ in range(2)]
        a(f"v_and_b32 v{t0}, 7, v{vr16}")
        a(f"v_lshrrev_b32 v{t1}, 3, v{vr16}")
        a(f"v_lshlrev_b32 v{t1}, 10, v{t1}")
        a(f"v_lshl_add_u32 v{t1}, v{t0}, 7, v{t1}")
        a(f"v_lshl_add_u32 v{t1}, v{vw}, 11, v{t1}")
        for sl in range(2):
            a(f"v_or_b32 v{t2}, {4 * sl}, v{vg}")
            a(f"v_xor_b32 v{t2}, v{t2}, v{t0}")
            a(f"v_lshl_add_u32 v{vard[sl][0]}, v{t2}, 4, v{t1}")
            for i in range(1, nab):
                a(f"v_add_u32 v{vard[sl][i]}, {65536 * i}, v{vard[sl][0]}")
        a("s_lshl_b32 s15, s7, 11")
    elif not shift:
        vaoff = [a.v()]
        a(f"s_lshr_b32 s9, s5, 4")
        a(f"s_add_u32 s9, s9, s7")
        a(f"s_mul_i32 s9, s9, {KS * 1024}")
        a(f"v_lshlrev_b32 v{t0}, 4, v{vl}")
        a(f"v_add_u32 v{vaoff[0]}, s9, v{t0}")
    else:
        vaoff = [a.v() for _ in range(4)]
        a("s_mov_b32 s9, 0x80000000")
        for i, d in enumerate((-1, 1, -2, 2)):
            a(f"v_add_u32 v{t0}, {d}, v{vrow}")
            a(f"v_lshrrev_b32 v{t2}, 4, v{t0}")
            a(f"v_mul_u32_u24 v{t2}, {KS * 1024}, v{t2}")
            a(f"v_and_b32 v{t3}, 15, v{t0}")
            a(f"v_lshl_add_u32 v{t3}, v{vg}, 4, v{t3}")
            a(f"v_lshl_add_u32 v{vaoff[i]}, v{t3}, 4, v{t2}")
            a(f"v_cmp_gt_u32 vcc, {S}, v{t0}")
            a(f"v_mov_b32 v{t1}, s9")
            a("s_nop 1")
            a(f"v_cndmask_b32 v{vaoff[i]}, v{t1}, v{vaoff[i]}, vcc")
    vdma = [a.v() for _ in range(RPC)]
    for p in range(RPC):
        Fv, sl, rr = t0, t1, t2
        d = vdma[p]
        a(f"v_add_u32 v{Fv}, {p * 64 * W}, v0")
        udiv(a, sl, Fv, 2 * NT, 64 * NT * CH)
        a(f"v_mul_u32_u24 v{rr}, {2 * NT}, v{sl}")
        a(f"v_sub_u32 v{rr}, v{Fv}, v{rr}")
        a(f"v_and_b32 v{d}, 0xfffffff3, v{sl}")
        a(f"v_bfe_u32 v{t0}, v{sl}, 2, 1")
        a(f"v_lshl_add_u32 v{d}, v{t0}, 3, v{d}")
        a(f"v_bfe_u32 v{t0}, v{sl}, 3, 1")
        a(f"v_lshl_add_u32 v{d}, v{t0}, 2, v{d}")
        a(f"v_mul_u32_u24 v{d}, {ldb}, v{d}")
        if PER > 1:
            if PER == 8:
                a(f"v_and_b32 v{t0}, 7, v{sl}")
            else:
                a(f"v_bfe_u32 v{t0}, v{sl}, 2, 1")
            a(f"v_lshlrev_b32 v{t0}, 1, v{t0}")
            a(f"v_xor_b32 v{rr}, v{rr}, v{t0}")
        a(f"v_lshl_add_u32 v{d}, v{rr}, 4, v{d}")
        a(f"v_lshl_add_u32 v{d}, s6, 1, v{d}")
    nbase = (A_LDS0 + 65535) // 65536
    vb = [[a.v() for _ in range(nbase)] for _ in range(PER)]
    a(f"v_bfe_u32 v{t0}, v0, 2, 3")
    a(f"v_bfe_u32 v{t1}, v0, 5, 1")
    a(f"v_lshl_add_u32 v{t1}, v{t1}, 4, v{t0}")
    a(f"v_mul_u32_u24 v{t1}, {NT * 32}, v{t1}")
    a(f"v_and_b32 v{t2}, 3, v0")
    a(f"v_lshl_add_u32 v{t1}, v{t2}, 3, v{t1}")
    if PER == 2:
        a(f"v_lshrrev_b32 v{t0}, 2, v{t0}")
    vswz = None
    if ln and PER > 1:
        vswz = a.v()
        a(f"v_mov_b32 v{vswz}, v{t0}")
    vrb = a.v()
    a(f"v_mov_b32 v{vrb}, v{t1}")
    for tp in range(PER):
        if PER > 1:
            a(f"v_xor_b32 v{t2}, {tp}, v{t0}")
            a(f"v_lshl_add_u32 v{vb[tp][0]}, v{t2}, 5, v{t1}")
        else:
            a(f"v_mov_b32 v{vb[0][0]}, v{t1}")
        for i in range(1, nbase):
            a(f"v_add_u32 v{vb[tp][i]}, {65536 * i}, v{vb[tp][0]}")
    if ln:
        vbx = [a.v() for _ in range(nbase)]
        a(f"s_min_u32 s9, s7, {NT - 1}")
        if PER > 1:
            a(f"v_xor_b32 v{t2}, s9, v{vswz}")
        else:
            a(f"v_mov_b32 v{t2}, s9")
        a(f"v_lshl_add_u32 v{vbx[0]}, v{t2}, 5, v{vrb}")
        for i in range(1, nbase):
            a(f"v_add_u32 v{vbx[i]}, {65536 * i}, v{vbx[0]}")
        vones = a.v(4, 4)
        for i in range(4):
            a(f"v_mov_b32 v{vones + i}, 0x3f803f80")
        vsum = a.v()
        vsq = a.v()
        a(f"v_mov_b32 v{vsum}, 0")
        a(f"v_mov_b32 v{vsq}, 0")
    acc = [a.v(4, 4) for _ in range(NT)]
    if ln:
        acs = a.v(4, 4)
        own_cs = list(range(W, NT))
        acs_own = {t: a.v(4, 4) for t in own_cs}
    if a_lds:
        areg = [a.v(4, 4) for _ in range(4)]
    else:
        areg = [[a.v(4, 4) for _ in range(CH)] for _ in range(ring)]
    a("s_waitcnt lgkmcnt(0)")
    stamp(a, st)
    aptr, aoff, asize = a_src
    srd(a, SA, aptr, aoff, asize)
    srd(a, SB, b_ptr, 0, b_size)
    vm = []
    ctx = dict(a=a, NT=NT, W=W, vrow=vrow, vg=vg, vr16=vr16, vl=vl, vw=vw, t=(t0, t1, t2, t3), acc=acc, vm=vm, name=name)

    def issue_chunk(c):
        slot = c % ring
        if a_lds:
            for i in range(2):
                a(f"s_mov_b32 s10, {i * 8 * K * 2 + c * 128}")
                a(f"s_add_u32 m0, s15, {A_LDS0 + slot * ASLOT + i * 1024}")
                a("s_nop 0")
                a(f"buffer_load_dwordx4 v{vaoff[0]}, s[{SA}:{SA + 3}], s10 offen lds")
                vm.append(c)
        else:
            a(f"s_mov_b32 s10, {c * CH * 1024}")
            for s in range(CH):
                ks = c * CH + s
                vo = vaoff[ks // 5] if shift else vaoff[0]
                a(f"buffer_load_dwordx4 {vr(areg[slot][s], 4)}, v{vo}, s[{SA}:{SA + 3}], s10 offen offset:{s * 1024}")
                vm.append(c)
        a(f"s_mov_b32 s10, {c * CH * 32 * ldb}")
        for p in range(RPC):
            a(f"s_add_u32 m0, s8, {slot * BSLOT + p * W * 1024}")
            a("s_nop 0")
            a(f"buffer_load_dwordx4 v{vdma[p]}, s[{SB}:{SB + 3}], s10 offen lds")
            vm.append(c)

    stamp(a, st)
    for c in range(ring):
        issue_chunk(c)
        if c == 0:
            epi.pre(ctx)
    stamp(a, st)
    for t in range(NT):
        for i in range(4):
            a(f"v_mov_b32 v{acc[t] + i}, 0")
    if ln:
        for i in range(4):
            a(f"v_mov_b32 v{acs + i}, 0")
            for t in own_cs:
                a(f"v_mov_b32 v{acs_own[t] + i}, 0")

    def wait_chunk(c):
        last = max(i for i, tg in enumerate(vm) if isinstance(tg, int) and tg <= c)
        n = min(63, len(vm) - 1 - last)
        a(f"s_waitcnt vmcnt({n})")

    units = []
    for ks in range(KS):
        for t in range(NT):
            units.append((ks, t))
        if ln:
            units.append((ks, 'x'))
    NB = PD + 2
    breg = [a.v(4, 4) for _ in range(NB)]
    nrd = []

    def issue_read(i):
        ks, t = units[i]
        c = ks // CH
        slot = c % ring
        n = 0
        if a_lds and t == 0:
            o = A_LDS0 + slot * ASLOT
            a(f"ds_read_b128 {vr(areg[ks % 4], 4)}, v{vard[ks % 2][o // 65536]} offset:{o % 65536}")
            n += 1
        off = slot * BSLOT + (ks % CH) * NT * 1024
        if t == 'x':
            base = vbx
        else:
            base = vb[t % PER]
            off += (t - t % PER) * 32
        r = breg[i % NB]
        for h in range(2):
            o = off + h * 8 * NT * 32
            a(f"ds_read_b64_tr_b16 {vr(r + 2 * h, 2)}, v{base[o // 65536]} offset:{o % 65536}")
            n += 1
        nrd.append(n)

    nread = 0

    def advance_reads(upto):
        nonlocal nread
        while nread < min(upto, len(units)):
            ks, t = units[nread]
            if t == 0 and ks % CH == 0:
                c = ks // CH
                wait_chunk(c)
                a("s_barrier")
                if NCH <= 5:
                    stamp(a, st)
                if c >= 2 and c - 2 + ring < NCH:
                    issue_chunk(c - 2 + ring)
            issue_read(nread)
            nread += 1

    for i, (ks, t) in enumerate(units):
        advance_reads(i + PD + 1)
        ahead = sum(nrd[i + 1:nread])
        assert ahead <= 15
        a(f"s_waitcnt lgkmcnt({ahead})")
        c = ks // CH
        ar = areg[ks % 4] if a_lds else areg[c % ring][ks % CH]
        b = breg[i % NB]
        if t == 'x':
            a(f"v_mfma_f32_16x16x32_bf16 {vr(acs, 4)}, {vr(b, 4)}, {vr(vones, 4)}, {vr(acs, 4)}")
        else:
            a(f"v_mfma_f32_16x16x32_bf16 {vr(acc[t], 4)}, {vr(b, 4)}, {vr(ar, 4)}, {vr(acc[t], 4)}")
            if ln and t in own_cs:
                a(f"v_mfma_f32_16x16x32_bf16 {vr(acs_own[t], 4)}, {vr(b, 4)}, {vr(vones, 4)}, {vr(acs_own[t], 4)}")
            if ln and t < 4:
                a(f"v_dot2c_f32_bf16 v{vsum}, v{ar + t}, v{vones}")
                a(f"v_dot2c_f32_bf16 v{vsq}, v{ar + t}, v{ar + t}")
    stamp(a, st)
    if ln:
        a("s_nop 7")
        a("s_nop 1")
        a("s_barrier")
        a(f"v_lshlrev_b32 v{t0}, 4, v{vg}")
        a(f"s_min_u32 s9, s7, {NT - 1}")
        a("s_lshl_b32 s9, s9, 6")
        a(f"v_add_u32 v{t1}, s9, v{t0}")
        a(f"ds_write_b128 v{t1}, {vr(acs, 4)}")
        for vv in (vsum, vsq):
            a(f"v_mov_b32 v{t2}, v{vv}")
            a("s_nop 1")
            a(f"v_permlane16_swap_b32 v{vv}, v{t2}")
            a("s_nop 1")
            a(f"v_add_f32 v{vv}, v{vv}, v{t2}")
            a(f"v_mov_b32 v{t2}, v{vv}")
            a("s_nop 1")
            a(f"v_permlane32_swap_b32 v{vv}, v{t2}")
            a("s_nop 1")
            a(f"v_add_f32 v{vv}, v{vv}, v{t2}")
        a("s_waitcnt lgkmcnt(0)")
        a("s_barrier")
        vcs = {}
        for t in range(NT):
            if t in own_cs:
                vcs[t] = acs_own[t]
            else:
                vcs[t] = a.v(4, 4)
                a(f"ds_read_b128 {vr(vcs[t], 4)}, v{t0} offset:{t * 64}")
        vmean, vvar, vmb, vsqb, va, vbb = vsum, vsq, a.v(), a.v(), a.v(), a.v()
        a(f"s_mov_b32 s9, {f32bits(1.0 / K):#x}")
        a(f"v_mul_f32 v{vmean}, s9, v{vsum}")
        a(f"v_mul_f32 v{vvar}, s9, v{vsq}")
        a(f"v_fma_f32 v{vvar}, -v{vmean}, v{vmean}, v{vvar}")
        a(f"v_max_f32 v{vvar}, 0, v{vvar}")
        a(f"s_mov_b32 s9, {f32bits(1e-5):#x}")

        def ln_stats(mean, var, mb, sqb):
            bf16r(a, mb, mean)
            bf16r(a, sqb, var)
            a(f"v_add_f32 v{sqb}, s9, v{sqb}")
            bf16r(a, sqb, sqb)
            a(f"v_sqrt_f32 v{sqb}, v{sqb}")
            a("s_nop 0")
            bf16r(a, sqb, sqb)

        ln_stats(vmean, vvar, vmb, vsqb)
        a(f"v_rcp_f32 v{va}, v{vsqb}")
        a("s_nop 0")
        a(f"v_mul_f32 v{vbb}, v{vmb}, v{va}")
        a(f"v_sub_f32 v{vbb}, 0, v{vbb}")
        if ln == 2:
            m2, s2 = a.v(), a.v()
            a(f"v_sub_f32 v{t2}, v{vmean}, v{vmb}")
            a(f"v_mul_f32 v{t2}, v{t2}, v{va}")
            a(f"v_mul_f32 v{t3}, v{vvar}, v{va}")
            a(f"v_mul_f32 v{t3}, v{t3}, v{va}")
            ln_stats(t2, t3, m2, s2)
            a(f"v_rcp_f32 v{s2}, v{s2}")
            a("s_nop 0")
            a(f"v_sub_f32 v{vbb}, v{vbb}, v{m2}")
            a(f"v_mul_f32 v{vbb}, v{vbb}, v{s2}")
            a(f"v_mul_f32 v{va}, v{va}, v{s2}")
        a("s_waitcnt lgkmcnt(0)")
        for t in range(NT):
            for i in range(4):
                a(f"v_mul_f32 v{acc[t] + i}, v{acc[t] + i}, v{va}")
                a(f"v_fma_f32 v{acc[t] + i}, v{vcs[t] + i}, v{vbb}, v{acc[t] + i}")
        ctx.update(vmb=vmb, vsqb=vsqb)
    else:
        a("s_nop 7")
        a("s_nop 1")
    epi.post(ctx)
    a("s_waitcnt vmcnt(0)")
    stamp(a, st)
    stamp_flush(a, st, name)
    a.label(f"{name}_end")
    a("s_endpgm")
    return a, lds_bytes, NWG, 64 * W


class EpiQKV:
    def pre(self, c):
        pass

    def post(self, c):
        a, NT, acc = c['a'], c['NT'], c['acc']
        t0, t1, t2, t3 = c['t']
        srd(a, 48, P_WS, WS_Q, 3 * ACT_BYTES)
        vb = a.v()
        a(f"v_mul_u32_u24 v{vb}, 40, v{c['vrow']}")
        a("s_lshr_b32 s9, s6, 2")
        for t in range(NT):
            a(f"v_add_u32 v{t0}, s9, v{c['vg']}")
            if t:
                a(f"v_add_u32 v{t0}, {4 * t}, v{t0}")
            udiv(a, t1, t0, 5, 480)
            a(f"v_mul_u32_u24 v{t2}, 5, v{t1}")
            a(f"v_sub_u32 v{t0}, v{t0}, v{t2}")
            a(f"v_mul_u32_u24 v{t1}, {S * 40}, v{t1}")
            a(f"v_lshl_add_u32 v{t1}, v{t0}, 3, v{t1}")
            a(f"v_add_u32 v{t1}, v{t1}, v{vb}")
            a(f"v_cvt_pk_bf16_f32 v{acc[t]}, v{acc[t]}, v{acc[t] + 1}")
            a(f"v_cvt_pk_bf16_f32 v{acc[t] + 1}, v{acc[t] + 2}, v{acc[t] + 3}")
            a(f"buffer_store_dwordx2 {vr(acc[t], 2)}, v{t1}, s[48:51], 0 offen")


def out_offset(c, ld):
    a = c['a']
    vo = a.v()
    a(f"v_mul_u32_u24 v{vo}, {ld}, v{c['vrow']}")
    a(f"v_lshl_add_u32 v{vo}, v{c['vg']}, 3, v{vo}")
    a(f"v_lshl_add_u32 v{vo}, s6, 1, v{vo}")
    return vo


def tiled_offset(c, ks_out):
    a = c['a']
    t0 = c['t'][0]
    vo = a.v()
    a("s_lshr_b32 s9, s5, 4")
    a("s_add_u32 s9, s9, s7")
    a(f"s_mul_i32 s9, s9, {ks_out * 1024}")
    a("s_lshl_b32 s14, s6, 5")
    a("s_add_u32 s9, s9, s14")
    a(f"v_lshrrev_b32 v{t0}, 1, v{c['vg']}")
    a(f"v_lshl_add_u32 v{t0}, v{t0}, 4, v{c['vr16']}")
    a(f"v_lshlrev_b32 v{vo}, 4, v{t0}")
    a(f"v_and_b32 v{t0}, 1, v{c['vg']}")
    a(f"v_lshl_add_u32 v{vo}, v{t0}, 3, v{vo}")
    a(f"v_add_u32 v{vo}, s9, v{vo}")
    return vo


def unpack2(a, lo, hi, src):
    if lo == src:
        a(f"v_and_b32 v{hi}, 0xffff0000, v{src}")
        a(f"v_lshlrev_b32 v{lo}, 16, v{src}")
    else:
        a(f"v_lshlrev_b32 v{lo}, 16, v{src}")
        a(f"v_and_b32 v{hi}, 0xffff0000, v{src}")


class EpiResid:
    def __init__(self, res_ptr, res_off, out_ptr, out_off):
        self.r = (res_ptr, res_off)
        self.o = (out_ptr, out_off)

    def pre(self, c):
        a, NT = c['a'], c['NT']
        srd(a, 48, self.o[0], self.o[1], ACT_BYTES)
        srd(a, 52, self.r[0], self.r[1], ACT_BYTES)
        self.vr = out_offset(c, D * 2)
        self.vo = tiled_offset(c, 20)
        self.res = [a.v(2, 2) for _ in range(NT)]
        for t in range(NT):
            a(f"buffer_load_dwordx2 {vr(self.res[t], 2)}, v{self.vr}, s[52:55], 0 offen offset:{t * 32}")
            c['vm'].append('r')

    def post(self, c):
        a, NT, acc = c['a'], c['NT'], c['acc']
        t0, t1, t2, t3 = c['t']
        for t in range(NT):
            for hh in range(2):
                a(f"v_cvt_pk_bf16_f32 v{t0}, v{acc[t] + 2 * hh}, v{acc[t] + 2 * hh + 1}")
                unpack2(a, t1, t2, t0)
                unpack2(a, t0, t3, self.res[t] + hh)
                a(f"v_add_f32 v{t1}, v{t1}, v{t0}")
                a(f"v_add_f32 v{t2}, v{t2}, v{t3}")
                a(f"v_cvt_pk_bf16_f32 v{acc[t] + hh}, v{t1}, v{t2}")
            a(f"buffer_store_dwordx2 {vr(acc[t], 2)}, v{self.vo}, s[48:51], 0 offen offset:{t * 512}")


GC1 = -2.0 * math.log2(math.e) * math.sqrt(2.0 / math.pi)
GC3 = GC1 * 0.044715


class EpiGelu:
    def __init__(self, out_off, ld, size, stats=False):
        self.out_off, self.ld, self.size, self.stats = out_off, ld, size, stats

    def pre(self, c):
        a = c['a']
        srd(a, 48, P_WS, self.out_off, self.size)
        self.vo = tiled_offset(c, self.ld // 64)
        self.vc1 = a.v()
        a(f"v_mov_b32 v{self.vc1}, {f32bits(GC1):#x}")
        a(f"s_mov_b32 s11, {f32bits(GC3):#x}")

    def post(self, c):
        a, NT, acc = c['a'], c['NT'], c['acc']
        t0, t1, t2, t3 = c['t']
        sc = dict(c3=11, vc1=self.vc1)
        if self.stats:
            srd(a, 52, P_WS, WS_ST, S * 8)
            a(f"v_lshlrev_b32 v{t0}, 3, v{c['vrow']}")
            a(f"v_mov_b32 v{t2}, v{c['vmb']}")
            a(f"v_mov_b32 v{t3}, v{c['vsqb']}")
            a("s_mov_b32 s9, 0x80000000")
            a(f"v_mov_b32 v{t1}, s9")
            a(f"v_cmp_eq_u32 vcc, 0, v{c['vg']}")
            a("s_nop 1")
            a(f"v_cndmask_b32 v{t0}, v{t1}, v{t0}, vcc")
            a("s_cmp_lg_u32 s4, 0")
            a(f"s_cbranch_scc1 {c['name']}_nostat")
            a(f"buffer_store_dwordx2 {vr(t2, 2)}, v{t0}, s[52:55], 0 offen")
            a.label(f"{c['name']}_nostat")
        for t in range(NT):
            for hh in range(2):
                r0, r1 = acc[t] + 2 * hh, acc[t] + 2 * hh + 1
                a(f"v_cvt_pk_bf16_f32 v{t0}, v{r0}, v{r1}")
                unpack2(a, r0, r1, t0)
                gelu(a, r0, t0, t1, sc)
                gelu(a, r1, t2, t3, sc)
            a(f"v_cvt_pk_bf16_f32 v{acc[t]}, v{acc[t]}, v{acc[t] + 1}")
            a(f"v_cvt_pk_bf16_f32 v{acc[t] + 1}, v{acc[t] + 2}, v{acc[t] + 3}")
            a(f"buffer_store_dwordx2 {vr(acc[t], 2)}, v{self.vo}, s[48:51], 0 offen offset:{t * 512}")


class EpiX1:
    def pre(self, c):
        a, NT = c['a'], c['NT']
        srd(a, 48, P_WS, WS_X1, ACT_BYTES)
        srd(a, 52, P_WS, WS_H, ACT_BYTES)
        srd(a, 56, P_WS, WS_ST, S * 8)
        self.vo = tiled_offset(c, 20)
        self.res = [a.v(2, 2) for _ in range(NT)]
        self.st = a.v(2, 2)
        t0 = c['t'][0]
        a(f"v_lshlrev_b32 v{t0}, 3, v{c['vrow']}")
        a(f"buffer_load_dwordx2 {vr(self.st, 2)}, v{t0}, s[56:59], 0 offen")
        c['vm'].append('r')
        for t in range(NT):
            a(f"buffer_load_dwordx2 {vr(self.res[t], 2)}, v{self.vo}, s[52:55], 0 offen offset:{t * 512}")
            c['vm'].append('r')

    def post(self, c):
        a, NT, acc = c['a'], c['NT'], c['acc']
        t0, t1, t2, t3 = c['t']
        mb, rs = self.st, self.st + 1
        a(f"v_rcp_f32 v{rs}, v{rs}")
        for t in range(NT):
            for hh in range(2):
                unpack2(a, t0, t1, self.res[t] + hh)
                a(f"v_sub_f32 v{t0}, v{t0}, v{mb}")
                a(f"v_sub_f32 v{t1}, v{t1}, v{mb}")
                a(f"v_cvt_pk_bf16_f32 v{t0}, v{t0}, v{t1}")
                unpack2(a, t0, t1, t0)
                a(f"v_mul_f32 v{t0}, v{t0}, v{rs}")
                a(f"v_mul_f32 v{t1}, v{t1}, v{rs}")
                a(f"v_cvt_pk_bf16_f32 v{t0}, v{t0}, v{t1}")
                unpack2(a, t0, t1, t0)
                a(f"v_cvt_pk_bf16_f32 v{t2}, v{acc[t] + 2 * hh}, v{acc[t] + 2 * hh + 1}")
                unpack2(a, t2, t3, t2)
                a(f"v_add_f32 v{t0}, v{t0}, v{t2}")
                a(f"v_add_f32 v{t1}, v{t1}, v{t3}")
                a(f"v_cvt_pk_bf16_f32 v{acc[t] + hh}, v{t0}, v{t1}")
            a(f"buffer_store_dwordx2 {vr(acc[t], 2)}, v{self.vo}, s[48:51], 0 offen offset:{t * 512}")


class EpiFinal:
    def pre(self, c):
        a, NT = c['a'], c['NT']
        srd(a, 48, P_OUT, 0, ACT_BYTES)
        srd(a, 52, P_WS, WS_H, ACT_BYTES)
        srd(a, 56, P_WS, WS_X1, ACT_BYTES)
        self.vo = out_offset(c, D * 2)
        self.vt = tiled_offset(c, 20)
        self.h = [a.v(2, 2) for _ in range(NT)]
        self.x = [a.v(2, 2) for _ in range(NT)]
        for t in range(NT):
            a(f"buffer_load_dwordx2 {vr(self.h[t], 2)}, v{self.vt}, s[52:55], 0 offen offset:{t * 512}")
            c['vm'].append('r')
            a(f"buffer_load_dwordx2 {vr(self.x[t], 2)}, v{self.vt}, s[56:59], 0 offen offset:{t * 512}")
            c['vm'].append('r')

    def post(self, c):
        a, NT, acc = c['a'], c['NT'], c['acc']
        t0, t1, t2, t3 = c['t']
        for t in range(NT):
            for hh in range(2):
                a(f"v_cvt_pk_bf16_f32 v{t0}, v{acc[t] + 2 * hh}, v{acc[t] + 2 * hh + 1}")
                unpack2(a, t0, t1, t0)
                unpack2(a, t2, t3, self.x[t] + hh)
                a(f"v_add_f32 v{t0}, v{t0}, v{t2}")
                a(f"v_add_f32 v{t1}, v{t1}, v{t3}")
                a(f"v_cvt_pk_bf16_f32 v{t0}, v{t0}, v{t1}")
                unpack2(a, t0, t1, t0)
                unpack2(a, t2, t3, self.h[t] + hh)
                a(f"v_add_f32 v{t0}, v{t0}, v{t2}")
                a(f"v_add_f32 v{t1}, v{t1}, v{t3}")
                a(f"v_cvt_pk_bf16_f32 v{acc[t] + hh}, v{t0}, v{t1}")
            a(f"buffer_store_dwordx2 {vr(acc[t], 2)}, v{self.vo}, s[48:51], 0 offen offset:{t * 32}")


def gen_attn(name):
    a = Asm()
    W = 8
    L_K = 0
    L_VA = 24576
    L_VB = L_VA + 16384
    L_BIAS = L_VB + 8192
    L_ONE = L_BIAS + 8192
    lds_bytes = L_ONE + 64
    a("s_cmp_ge_u32 s2, 256")
    a(f"s_cbranch_scc1 {name}_end")
    load_kernargs(a)
    a("s_and_b32 s3, s2, 7")
    a("s_lshr_b32 s4, s2, 3")
    a("s_lshl_b32 s5, s3, 8")
    vw, vl, vr16, vg = a.v(), a.v(), a.v(), a.v()
    t0, t1, t2, t3 = a.v(), a.v(), a.v(), a.v()
    a(f"v_lshrrev_b32 v{vw}, 6, v0")
    a(f"v_and_b32 v{vl}, 63, v0")
    a(f"v_and_b32 v{vr16}, 15, v0")
    a(f"v_bfe_u32 v{vg}, v0, 4, 2")
    a("s_nop 0")
    a(f"v_readfirstlane_b32 s7, v{vw}")
    a("s_lshl_b32 s8, s7, 10")
    a(f"s_mul_i32 s6, s4, {S * 40}")
    a("s_sub_u32 s9, s5, 256")
    a("s_mov_b32 s12, 0x80000000")
    a("s_waitcnt lgkmcnt(0)")
    srd(a, 40, P_WS, WS_Q, ACT_BYTES)
    srd(a, 44, P_WS, WS_K, 2 * ACT_BYTES)
    srd(a, 48, P_WS, WS_V, ACT_BYTES + 64)
    srd(a, 52, P_WS, WS_O, ACT_BYTES)
    for r in range(3):
        a(f"v_add_u32 v{t0}, {r * 512}, v0")
        udiv(a, t1, t0, 48, 1536)
        a(f"v_mul_u32_u24 v{t2}, 48, v{t1}")
        a(f"v_sub_u32 v{t0}, v{t0}, v{t2}")
        a(f"v_and_b32 v{t2}, 15, v{t0}")
        a(f"v_lshl_add_u32 v{t1}, v{t1}, 4, v{t2}")
        a(f"v_add_u32 v{t1}, s9, v{t1}")
        a(f"v_lshrrev_b32 v{t0}, 4, v{t0}")
        a(f"v_mul_i32_i24 v{t2}, 40, v{t1}")
        a(f"v_lshl_add_u32 v{t2}, v{t0}, 4, v{t2}")
        a(f"v_add_u32 v{t2}, s6, v{t2}")
        a(f"v_cmp_gt_i32 vcc, 0, v{t1}")
        a(f"v_mov_b32 v{t3}, s12")
        a("s_nop 1")
        a(f"v_cndmask_b32 v{t2}, v{t2}, v{t3}, vcc")
        a(f"s_add_u32 m0, s8, {L_K + r * 8192}")
        a("s_nop 0")
        a(f"buffer_load_dwordx4 v{t2}, s[44:47], 0 offen lds")
    for r in range(2):
        a(f"v_add_u32 v{t0}, {r * 512}, v0")
        a(f"v_lshrrev_b32 v{t1}, 1, v{t0}")
        a(f"v_add_u32 v{t1}, s9, v{t1}")
        a(f"v_and_b32 v{t0}, 1, v{t0}")
        a(f"v_mul_i32_i24 v{t2}, 40, v{t1}")
        a(f"v_lshl_add_u32 v{t2}, v{t0}, 4, v{t2}")
        a(f"v_add_u32 v{t2}, s6, v{t2}")
        a(f"v_cmp_gt_i32 vcc, 0, v{t1}")
        a(f"v_mov_b32 v{t3}, s12")
        a("s_nop 1")
        a(f"v_cndmask_b32 v{t2}, v{t2}, v{t3}, vcc")
        a(f"s_add_u32 m0, s8, {L_VA + r * 8192}")
        a("s_nop 0")
        a(f"buffer_load_dwordx4 v{t2}, s[48:51], 0 offen lds")
    a(f"v_add_u32 v{t1}, s9, v0")
    a(f"v_mul_i32_i24 v{t2}, 40, v{t1}")
    a(f"v_add_u32 v{t2}, 32, v{t2}")
    a(f"v_add_u32 v{t2}, s6, v{t2}")
    a(f"v_cmp_gt_i32 vcc, 0, v{t1}")
    a(f"v_mov_b32 v{t3}, s12")
    a("s_nop 1")
    a(f"v_cndmask_b32 v{t2}, v{t2}, v{t3}, vcc")
    a(f"s_add_u32 m0, s8, {L_VB}")
    a("s_nop 0")
    a(f"buffer_load_dwordx4 v{t2}, s[48:51], 0 offen lds")
    vz = a.v(4, 4)
    a(f"v_mov_b32 v{vz}, 0")
    a(f"v_mov_b32 v{t3}, 0xf149")
    a(f"v_cndmask_b32 v{vz}, v{vz}, v{t3}, vcc")
    a(f"v_mov_b32 v{vz + 1}, 0")
    a(f"v_mov_b32 v{vz + 2}, 0")
    a(f"v_mov_b32 v{vz + 3}, 0")
    a(f"v_lshlrev_b32 v{t0}, 4, v0")
    a(f"ds_write_b128 v{t0}, {vr(vz, 4)} offset:{L_BIAS}")
    a(f"v_mov_b32 v{vz}, 0x3f80")
    a(f"v_mov_b32 v{t0}, {L_ONE}")
    a(f"ds_write_b128 v{t0}, {vr(vz, 4)}")
    vq = [a.v(4, 4) for _ in range(2)]
    vtok = a.v()
    a(f"v_lshl_add_u32 v{vtok}, v{vw}, 5, v{vr16}")
    a(f"v_add_u32 v{vtok}, s5, v{vtok}")
    a(f"v_mul_u32_u24 v{t0}, 40, v{vtok}")
    a(f"v_lshl_add_u32 v{t0}, v{vg}, 4, v{t0}")
    a(f"v_add_u32 v{t0}, s6, v{t0}")
    a(f"v_mov_b32 v{t3}, s12")
    a(f"v_cmp_gt_u32 vcc, 3, v{vg}")
    a("s_nop 1")
    a(f"v_cndmask_b32 v{t1}, v{t3}, v{t0}, vcc")
    a(f"v_cmp_gt_u32 vcc, 2, v{vg}")
    a("s_nop 1")
    a(f"v_cndmask_b32 v{t2}, v{t3}, v{t0}, vcc")
    for qt in range(2):
        a(f"buffer_load_dwordx2 {vr(vq[qt], 2)}, v{t1}, s[40:43], 0 offen offset:{qt * 640}")
        a(f"buffer_load_dwordx2 {vr(vq[qt] + 2, 2)}, v{t2}, s[40:43], 0 offen offset:{qt * 640 + 8}")
    mfirst = a.v(4, 4)
    mlast = a.v(4, 4)
    a(f"v_mov_b32 v{t3}, 0xf149f2ca")
    a(f"v_lshlrev_b32 v{t0}, 2, v{vg}")
    for r in range(4):
        a(f"v_add_u32 v{t1}, {r}, v{t0}")
        a(f"v_cmp_gt_u32 vcc, v{t1}, v{vr16}")
        a("s_nop 1")
        a(f"v_cndmask_b32 v{mfirst + r}, v{t3}, 0, vcc")
        a(f"v_cndmask_b32 v{mlast + r}, 0, v{t3}, vcc")
    vka = a.v()
    vks = a.v()
    a(f"v_lshlrev_b32 v{t0}, 4, v{vr16}")
    a(f"v_lshl_add_u32 v{t1}, v{vg}, 8, v{t0}")
    a(f"v_add_u32 v{t2}, {L_BIAS}, v{t0}")
    a(f"v_cmp_eq_u32 vcc, 3, v{vg}")
    a(f"v_mov_b32 v{vks}, 768")
    a(f"v_mov_b32 v{t3}, 256")
    a(f"v_cndmask_b32 v{vka}, v{t1}, v{t2}, vcc")
    a(f"v_cndmask_b32 v{vks}, v{vks}, v{t3}, vcc")
    a(f"v_lshlrev_b32 v{t0}, 1, v{vw}")
    a(f"v_mad_u32_u24 v{vka}, v{vks}, v{t0}, v{vka}")
    vva = a.v()
    vvb = a.v()
    a(f"v_bfe_u32 v{t0}, v0, 2, 2")
    a(f"v_lshl_add_u32 v{t0}, v{vg}, 2, v{t0}")
    a(f"v_lshl_add_u32 v{t0}, v{vw}, 5, v{t0}")
    a(f"v_and_b32 v{t1}, 3, v0")
    a(f"v_lshlrev_b32 v{t2}, 5, v{t0}")
    a(f"v_lshl_add_u32 v{vva}, v{t1}, 3, v{t2}")
    a(f"v_add_u32 v{vva}, {L_VA}, v{vva}")
    a(f"v_lshlrev_b32 v{vvb}, 4, v{t0}")
    a(f"v_add_u32 v{vvb}, {L_VB}, v{vvb}")
    vvs = a.v()
    a(f"v_cmp_eq_u32 vcc, 1, v{t1}")
    a(f"v_mov_b32 v{t3}, {L_ONE}")
    a(f"v_mov_b32 v{vvs}, 1")
    a(f"v_cndmask_b32 v{vvb}, v{vvb}, v{t3}, vcc")
    a(f"v_cndmask_b32 v{vvs}, v{vvs}, 0, vcc")
    CS = (DH ** -0.5) * math.log2(math.e)
    a(f"s_mov_b32 s13, {f32bits(CS):#x}")
    a("s_waitcnt vmcnt(0) lgkmcnt(0)")
    a(f"v_cmp_eq_u32 vcc, 3, v{vg}")
    a(f"v_mov_b32 v{t3}, 0x3f80")
    a("s_nop 0")
    for qt in range(2):
        a(f"v_cndmask_b32 v{vq[qt]}, v{vq[qt]}, v{t3}, vcc")
    a("s_barrier")
    sreg = [a.v(4, 4) for _ in range(18)]
    kf = [a.v(4, 4) for _ in range(4)]
    vf = [a.v(4, 4) for _ in range(4)]
    oacc = [a.v(4, 4) for _ in range(2)]
    preg = [a.v(4, 4) for _ in range(9)]
    vtmp = a.v()
    vadr = a.v()
    vm_, vmc = a.v(), a.v()
    for qt in range(2):
        def kread(i):
            a(f"v_mad_u32_u24 v{vadr}, v{vks}, {qt + i}, v{vka}")
            a(f"ds_read_b128 {vr(kf[i % 4], 4)}, v{vadr}")
        for i in range(3):
            kread(i)
        for i in range(17):
            if i + 3 < 17:
                kread(i + 3)
            ahead = min(3, 16 - i)
            a(f"s_waitcnt lgkmcnt({ahead})")
            cop = vr(mfirst, 4) if i == 0 else (vr(mlast, 4) if i == 16 else "0")
            a(f"v_mfma_f32_16x16x32_bf16 {vr(sreg[i], 4)}, {vr(kf[i % 4], 4)}, {vr(vq[qt], 4)}, {cop}")
        a("s_nop 7")
        a("s_nop 1")
        vals = [sreg[i] + r for i in range(17) for r in range(4)]
        a(f"v_max3_f32 v{vm_}, v{vals[0]}, v{vals[1]}, v{vals[2]}")
        j = 3
        while j + 1 < len(vals):
            a(f"v_max3_f32 v{vm_}, v{vm_}, v{vals[j]}, v{vals[j + 1]}")
            j += 2
        if j < len(vals):
            a(f"v_max_f32 v{vm_}, v{vm_}, v{vals[j]}")
        a(f"v_mov_b32 v{vtmp}, v{vm_}")
        a("s_nop 1")
        a(f"v_permlane16_swap_b32 v{vm_}, v{vtmp}")
        a("s_nop 1")
        a(f"v_max_f32 v{vm_}, v{vm_}, v{vtmp}")
        a(f"v_mov_b32 v{vtmp}, v{vm_}")
        a("s_nop 1")
        a(f"v_permlane32_swap_b32 v{vm_}, v{vtmp}")
        a("s_nop 1")
        a(f"v_max_f32 v{vm_}, v{vm_}, v{vtmp}")
        a(f"v_mul_f32 v{vmc}, s13, v{vm_}")
        for v in vals:
            a(f"v_fma_f32 v{v}, v{v}, s13, -v{vmc}")
        for v in vals:
            a(f"v_exp_f32 v{v}, v{v}")
        a("s_nop 0")
        for p in range(9):
            ta, tb = 2 * p, 2 * p + 1
            a(f"v_cvt_pk_bf16_f32 v{preg[p]}, v{sreg[ta]}, v{sreg[ta] + 1}")
            a(f"v_cvt_pk_bf16_f32 v{preg[p] + 1}, v{sreg[ta] + 2}, v{sreg[ta] + 3}")
            if tb < 17:
                a(f"v_cvt_pk_bf16_f32 v{preg[p] + 2}, v{sreg[tb]}, v{sreg[tb] + 1}")
                a(f"v_cvt_pk_bf16_f32 v{preg[p] + 3}, v{sreg[tb] + 2}, v{sreg[tb] + 3}")
            else:
                a(f"v_mov_b32 v{preg[p] + 2}, 0")
                a(f"v_mov_b32 v{preg[p] + 3}, 0")
        def vread(p):
            k0 = 16 * (qt + 2 * p)
            k1 = k0 + 16 if 2 * p + 1 < 17 else k0
            fa, fb = vf[(2 * p) % 4], vf[(2 * p + 1) % 4]
            a(f"ds_read_b64_tr_b16 {vr(fa, 2)}, v{vva} offset:{k0 * 32}")
            a(f"ds_read_b64_tr_b16 {vr(fa + 2, 2)}, v{vva} offset:{k1 * 32}")
            a(f"v_mad_u32_u24 v{vadr}, v{vvs}, {k0 * 16 // 16}, 0")
            a.lines.pop()
            a(f"v_mul_u32_u24 v{vadr}, {k0 * 16}, v{vvs}")
            a(f"v_add_u32 v{vadr}, v{vadr}, v{vvb}")
            a(f"ds_read_b64_tr_b16 {vr(fb, 2)}, v{vadr}")
            a(f"v_mul_u32_u24 v{vtmp}, {k1 * 16}, v{vvs}")
            a(f"v_add_u32 v{vtmp}, v{vtmp}, v{vvb}")
            a(f"ds_read_b64_tr_b16 {vr(fb + 2, 2)}, v{vtmp}")
        vread(0)
        for p in range(9):
            if p + 1 < 9:
                vread(p + 1)
                a("s_waitcnt lgkmcnt(4)")
            else:
                a("s_waitcnt lgkmcnt(0)")
            fa, fb = vf[(2 * p) % 4], vf[(2 * p + 1) % 4]
            c0 = "0" if p == 0 else vr(oacc[0], 4)
            c1 = "0" if p == 0 else vr(oacc[1], 4)
            a(f"v_mfma_f32_16x16x32_bf16 {vr(oacc[0], 4)}, {vr(fa, 4)}, {vr(preg[p], 4)}, {c0}")
            a(f"v_mfma_f32_16x16x32_bf16 {vr(oacc[1], 4)}, {vr(fb, 4)}, {vr(preg[p], 4)}, {c1}")
        a("s_nop 7")
        a("s_nop 1")
        a(f"v_lshlrev_b32 v{vtmp}, 2, v{vr16}")
        a(f"v_add_u32 v{vtmp}, 64, v{vtmp}")
        a(f"ds_bpermute_b32 v{vm_}, v{vtmp}, v{oacc[1]}")
        a("s_waitcnt lgkmcnt(0)")
        a(f"v_rcp_f32 v{vm_}, v{vm_}")
        a("s_nop 0")
        for r in range(4):
            a(f"v_mul_f32 v{oacc[0] + r}, v{oacc[0] + r}, v{vm_}")
            a(f"v_mul_f32 v{oacc[1] + r}, v{oacc[1] + r}, v{vm_}")
        a(f"v_cvt_pk_bf16_f32 v{oacc[0]}, v{oacc[0]}, v{oacc[0] + 1}")
        a(f"v_cvt_pk_bf16_f32 v{oacc[0] + 1}, v{oacc[0] + 2}, v{oacc[0] + 3}")
        a(f"v_cvt_pk_bf16_f32 v{oacc[1]}, v{oacc[1]}, v{oacc[1] + 1}")
        a(f"v_cvt_pk_bf16_f32 v{oacc[1] + 1}, v{oacc[1] + 2}, v{oacc[1] + 3}")
        a(f"v_add_u32 v{vtmp}, {16 * qt}, v{vtok}")
        a(f"v_lshrrev_b32 v{vtmp}, 4, v{vtmp}")
        a(f"v_mul_u32_u24 v{vtmp}, 20480, v{vtmp}")
        a(f"v_lshl_add_u32 v{vtmp}, v{vr16}, 4, v{vtmp}")
        a("s_mul_i32 s14, s4, 20")
        for which in range(2):
            if which == 0:
                a(f"v_lshl_add_u32 v{vadr}, v{vg}, 2, s14")
            else:
                a(f"v_mov_b32 v{vadr}, s14")
                a(f"v_add_u32 v{vadr}, 16, v{vadr}")
            a(f"v_lshrrev_b32 v{vm_}, 3, v{vadr}")
            a(f"v_and_b32 v{vadr}, 7, v{vadr}")
            a(f"v_lshlrev_b32 v{vadr}, 1, v{vadr}")
            a(f"v_lshl_add_u32 v{vadr}, v{vm_}, 8, v{vadr}")
            a(f"v_add_u32 v{vadr}, v{vadr}, v{vtmp}")
            if which == 1:
                a(f"v_mov_b32 v{vm_}, s12")
                a(f"v_cmp_eq_u32 vcc, 0, v{vg}")
                a("s_nop 1")
                a(f"v_cndmask_b32 v{vadr}, v{vm_}, v{vadr}, vcc")
            a(f"buffer_store_dwordx2 {vr(oacc[which], 2)}, v{vadr}, s[52:55], 0 offen")
    a.label(f"{name}_end")
    a("s_endpgm")
    return a, lds_bytes, 256, 512


def build():
    ks = []
    ks.append(("k1_qkv_kernel",) + gen_gemm("k1_qkv_kernel", NT=8, W=8, KS=20, ldb=3840, n_ntiles=15, ring=5, CH=2, a_lds=True,
                                            a_src=(P_X, 0, ACT_BYTES), b_ptr=P_WQKV, b_size=640 * 1920 * 2, ln=1, shift=False,
                                            epi=EpiQKV()))
    ks.append(("k2_attn_kernel",) + gen_attn("k2_attn_kernel"))
    ks.append(("k3_wo_kernel",) + gen_gemm("k3_wo_kernel", NT=5, W=4, KS=20, ldb=1280, n_ntiles=8, ring=5,
                                           a_src=(P_WS, WS_O, ACT_BYTES), b_ptr=P_WO, b_size=640 * 640 * 2, ln=0, shift=False,
                                           epi=EpiResid(P_X, 0, P_WS, WS_H)))
    ks.append(("k4_w1_kernel",) + gen_gemm("k4_w1_kernel", NT=5, W=4, KS=20, ldb=1280, n_ntiles=8, ring=5,
                                           a_src=(P_WS, WS_H, ACT_BYTES), b_ptr=P_W1, b_size=640 * 640 * 2, ln=2, shift=False,
                                           epi=EpiGelu(WS_G, 1280, ACT_BYTES, stats=True)))
    ks.append(("k5_w2_kernel",) + gen_gemm("k5_w2_kernel", NT=5, W=4, KS=20, ldb=1280, n_ntiles=8, ring=5,
                                           a_src=(P_WS, WS_G, ACT_BYTES), b_ptr=P_W2, b_size=640 * 640 * 2, ln=0, shift=True,
                                           epi=EpiX1()))
    ks.append(("k6_w3_kernel",) + gen_gemm("k6_w3_kernel", NT=6, W=8, KS=20, ldb=3072, n_ntiles=16, ring=5,
                                           a_src=(P_WS, WS_X1, ACT_BYTES), b_ptr=P_W3, b_size=640 * 1536 * 2, ln=1, shift=False,
                                           epi=EpiGelu(WS_T, 3072, S * F * 2)))
    ks.append(("k7_w4_kernel",) + gen_gemm("k7_w4_kernel", NT=5, W=4, KS=48, ldb=1280, n_ntiles=8, ring=7,
                                           a_src=(P_WS, WS_T, S * F * 2), b_ptr=P_W4, b_size=1536 * 640 * 2, ln=0, shift=False,
                                           epi=EpiFinal()))
    ref = open("sequential_preLN__sliding_block__mixer_s_mlp__prompt.s.ref").read()
    head = []
    for line in ref.splitlines():
        if not line.startswith(";"):
            break
        if "@launch" in line or "Override launch" in line or "grid=ceil" in line:
            continue
        head.append(line)
    out = "\n".join(head) + "\n"
    for name, a, lds, nwg, thr in ks:
        out += f"; @launch kernel={name} grid=({nwg},1,1) block=({thr},1,1) lds={lds}\n"
    out += '.amdgcn_target "amdgcn-amd-amdhsa--gfx950"\n.text\n'
    for name, a, lds, nwg, thr in ks:
        out += kernel_header(name) + a.text()
    out += '.section .rodata,"a"\n'
    for name, a, lds, nwg, thr in ks:
        out += ".p2align 6\n" + kernel_desc(name, a.maxv)
        print(name, "vgprs", a.maxv, "lds", lds, "wgs", nwg, "instrs", len(a.lines), file=sys.stderr)
    return out


if __name__ == "__main__":
    if len(sys.argv) > 2 and sys.argv[2] == "stamp":
        STAMP = True
    path = sys.argv[1] if len(sys.argv) > 1 else "sequential_preLN__sliding_block__mixer_s_mlp__prompt.s"
    open(path, "w").write(build())
```

```python
import sys, os

S = 2048
D = 640
F = 1536
NH = 32
DH = 20

WS_Q = 0
WS_K = 2621440
WS_V = 5242880
WS_O = 0x800000
WS_H = 0xB00000
WS_G = 0xE00000
WS_X1 = 0x1100000
WS_T = 0x1400000
WS_ST = 0x1B00000
WS_STH = 0x1B00000
WS_STX = 0x1B40000
ACT_BYTES = S * D * 2

P_X, P_WQKV, P_WO, P_BX, P_W1, P_W2, P_W3, P_W4 = 16, 18, 20, 22, 24, 26, 28, 30
P_OUT, P_DBG, P_WS = 32, 34, 36


class Asm:
    def __init__(self):
        self.lines = []
        self.nv = 1
        self.maxv = 1

    def __call__(self, s):
        self.lines.append("    " + s)

    def label(self, s):
        self.lines.append(s + ":")

    def comment(self, s):
        self.lines.append("    ; " + s)

    def v(self, n=1, align=1):
        self.nv = (self.nv + align - 1) // align * align
        r = self.nv
        self.nv += n
        self.maxv = max(self.maxv, self.nv)
        return r

    def text(self):
        return "\n".join(self.lines) + "\n"


def vr(b, n):
    return f"v[{b}:{b + n - 1}]" if n > 1 else f"v{b}"


def sr(b, n):
    return f"s[{b}:{b + n - 1}]" if n > 1 else f"s{b}"


def magic(d, maxval):
    for sh in range(0, 32):
        m = ((1 << sh) + d - 1) // d
        if m >= (1 << 24) or m * maxval >= (1 << 32):
            continue
        if all((x * m) >> sh == x // d for x in range(maxval + 1)):
            return m, sh
    raise ValueError("no magic")


def udiv(a, dst, src, d, maxval):
    if d & (d - 1) == 0:
        a(f"v_lshrrev_b32 v{dst}, {d.bit_length() - 1}, v{src}")
        return
    m, sh = magic(d, maxval)
    a(f"v_mul_u32_u24 v{dst}, {m}, v{src}")
    a(f"v_lshrrev_b32 v{dst}, {sh}, v{dst}")


def srd(a, dst, ptr, off, size):
    if off:
        a(f"s_add_u32 s{dst}, s{ptr}, {off}")
        a(f"s_addc_u32 s{dst + 1}, s{ptr + 1}, 0")
    else:
        a(f"s_mov_b32 s{dst}, s{ptr}")
        a(f"s_mov_b32 s{dst + 1}, s{ptr + 1}")
    a(f"s_and_b32 s{dst + 1}, s{dst + 1}, 0xffff")
    a(f"s_mov_b32 s{dst + 2}, {size}")
    a(f"s_mov_b32 s{dst + 3}, 0x00020000")


def load_kernargs(a):
    a("s_load_dwordx16 s[16:31], s[0:1], 0")
    a("s_load_dwordx4 s[32:35], s[0:1], 64")
    a("s_load_dwordx2 s[36:37], s[0:1], 80")


def bf16r(a, dst, src):
    a(f"v_cvt_pk_bf16_f32 v{dst}, v{src}, v{src}")
    a(f"v_lshlrev_b32 v{dst}, 16, v{dst}")


STAMP = False
def stamp(a, st):
    if not STAMP:
        return
    i = st[0]
    st[0] += 1
    a(f"s_memtime s[{70 + 2 * i}:{71 + 2 * i}]")
    a("s_waitcnt lgkmcnt(0)")


def stamp_flush(a, st, name):
    if not STAMP:
        return
    a("s_cmp_lg_u32 s2, 37")
    a(f"s_cbranch_scc1 {name}_nost")
    a("s_cmp_lg_u32 s7, 0")
    a(f"s_cbranch_scc1 {name}_nost")
    srd(a, 60, P_DBG, 0, 256)
    t = a.v()
    u = a.v()
    a(f"v_mov_b32 v{u}, 0")
    for i in range(st[0]):
        a(f"v_mov_b32 v{t}, s{70 + 2 * i}")
        a(f"buffer_store_dword v{t}, v{u}, s[60:63], 0 offen offset:{4 * i}")
    a.label(f"{name}_nost")


def kernel_header(name):
    return (f".globl {name}\n.p2align 8\n.type {name},@function\n{name}:\n")


def kernel_desc(name, nvgpr, nsgpr=102):
    acc = (nvgpr + 3) // 4 * 4
    return f""".amdhsa_kernel {name}
  .amdhsa_next_free_vgpr {nvgpr}
  .amdhsa_next_free_sgpr {nsgpr}
  .amdhsa_accum_offset {acc}
  .amdhsa_group_segment_fixed_size 0
  .amdhsa_kernarg_size 88
  .amdhsa_user_sgpr_count 2
  .amdhsa_user_sgpr_kernarg_segment_ptr 1
  .amdhsa_system_sgpr_workgroup_id_x 1
.end_amdhsa_kernel
"""


def gelu(a, x, t0, t1, sc):
    a(f"v_mul_f32 v{t0}, v{x}, v{x}")
    a(f"v_fma_f32 v{t0}, v{t0}, s{sc['c3']}, v{sc['vc1']}")
    a(f"v_mul_f32 v{t0}, v{t0}, v{x}")
    a(f"v_exp_f32 v{t0}, v{t0}")
    a("s_nop 0")
    a(f"v_add_f32 v{t0}, 1.0, v{t0}")
    a(f"v_rcp_f32 v{t0}, v{t0}")
    a("s_nop 0")
    a(f"v_mul_f32 v{x}, v{x}, v{t0}")


import struct
import math


def f32bits(x):
    return struct.unpack("<I", struct.pack("<f", x))[0]


def gen_gemm(name, NT, W, KS, ldb, n_ntiles, ring, a_src, b_ptr, b_size, ln, shift, epi, PD=5, CH=4, a_lds=False, LA=2,
             stats_src=None, MT=1, pf=None):
    a = Asm()
    BM = 16 * W * MT
    n_mtiles = S // BM
    NWG = n_mtiles * n_ntiles
    mper = n_mtiles // 8
    NCH = KS // CH
    RPC = CH * NT // W
    assert CH * NT % W == 0
    BSLOT = NT * 1024 * CH
    ASLOT = (W * MT * 2048) if a_lds else 0
    if a_lds:
        assert CH == 2
    ring = min(ring, NCH)
    RA = min(NCH, LA + 2)
    A_LDS0 = ring * BSLOT
    lds_bytes = ring * (BSLOT + ASLOT)
    K = KS * 32
    PER = {4: 4, 5: 1, 6: 2, 8: 8}[NT]

    def swz(dst, ri):
        if PER == 8:
            a(f"v_mov_b32 v{dst}, v{ri}")
        elif PER == 4:
            a(f"v_lshrrev_b32 v{dst}, 1, v{ri}")
        elif PER == 2:
            a(f"v_lshrrev_b32 v{dst}, 2, v{ri}")

    a(f"s_cmp_ge_u32 s2, {NWG}")
    a(f"s_cbranch_scc1 {name}_end")
    st = [0]
    stamp(a, st)
    load_kernargs(a)
    a("s_and_b32 s3, s2, 7")
    a("s_lshr_b32 s4, s2, 3")
    sh = mper.bit_length() - 1
    assert 1 << sh == mper
    a(f"s_lshl_b32 s3, s3, {sh}")
    a(f"s_and_b32 s5, s4, {mper - 1}")
    a("s_add_u32 s3, s3, s5")
    a(f"s_lshr_b32 s4, s4, {sh}")
    a(f"s_mul_i32 s5, s3, {BM}")
    a(f"s_mul_i32 s6, s4, {16 * NT}")
    vw, vl, vr16, vg = a.v(), a.v(), a.v(), a.v()
    a(f"v_lshrrev_b32 v{vw}, 6, v0")
    a(f"v_and_b32 v{vl}, 63, v0")
    a(f"v_and_b32 v{vr16}, 15, v0")
    a(f"v_bfe_u32 v{vg}, v0, 4, 2")
    a("s_nop 0")
    a(f"v_readfirstlane_b32 s7, v{vw}")
    a("s_lshl_b32 s8, s7, 10")
    a("s_lshr_b32 s9, s5, 4")
    a(f"s_mul_i32 s64, s7, {MT}")
    a("s_add_u32 s64, s64, s9")
    vrow = []
    for mt in range(MT):
        if mt:
            a(f"s_add_u32 s{64 + mt}, s64, {mt}")
        vrow.append(a.v())
        a(f"v_lshl_add_u32 v{vrow[mt]}, s{64 + mt}, 4, v{vr16}")
    t0 = a.v(4, 4)
    t1, t2, t3 = t0 + 1, t0 + 2, t0 + 3
    SA, SB = 40, 44
    if a_lds:
        vaoff = [a.v()]
        a(f"v_bfe_u32 v{t0}, v0, 3, 3")
        a(f"v_and_b32 v{t1}, 7, v0")
        a(f"v_xor_b32 v{t1}, v{t1}, v{t0}")
        a(f"v_lshl_add_u32 v{t0}, s64, 4, v{t0}")
        a(f"v_mul_u32_u24 v{t0}, {K * 2}, v{t0}")
        a(f"v_lshl_add_u32 v{vaoff[0]}, v{t1}, 4, v{t0}")
        nab = (lds_bytes + 65535) // 65536
        vard = [[a.v() for _ in range(nab)] for _ in range(2)]
        a(f"v_and_b32 v{t0}, 7, v{vr16}")
        a(f"v_lshrrev_b32 v{t1}, 3, v{vr16}")
        a(f"v_lshlrev_b32 v{t1}, 10, v{t1}")
        a(f"v_lshl_add_u32 v{t1}, v{t0}, 7, v{t1}")
        a(f"v_mul_u32_u24 v{t3}, {2048 * MT}, v{vw}")
        a(f"v_add_u32 v{t1}, v{t1}, v{t3}")
        for sl in range(2):
            a(f"v_or_b32 v{t2}, {4 * sl}, v{vg}")
            a(f"v_xor_b32 v{t2}, v{t2}, v{t0}")
            a(f"v_lshl_add_u32 v{vard[sl][0]}, v{t2}, 4, v{t1}")
            for i in range(1, nab):
                a(f"v_add_u32 v{vard[sl][i]}, {65536 * i}, v{vard[sl][0]}")
        a(f"s_mul_i32 s15, s7, {2048 * MT}")
    elif not shift:
        vaoff = [a.v() for _ in range(MT)]
        a(f"v_lshlrev_b32 v{t0}, 4, v{vl}")
        for mt in range(MT):
            a(f"s_mul_i32 s9, s{64 + mt}, {KS * 1024}")
            a(f"v_add_u32 v{vaoff[mt]}, s9, v{t0}")
    else:
        vaoff = [[a.v() for _ in range(4)] for _ in range(MT)]
        a("s_mov_b32 s9, 0x80000000")
        for mt in range(MT):
            for i, d in enumerate((-1, 1, -2, 2)):
                a(f"v_add_u32 v{t0}, {d}, v{vrow[mt]}")
                a(f"v_lshrrev_b32 v{t2}, 4, v{t0}")
                a(f"v_mul_u32_u24 v{t2}, {KS * 1024}, v{t2}")
                a(f"v_and_b32 v{t3}, 15, v{t0}")
                a(f"v_lshl_add_u32 v{t3}, v{vg}, 4, v{t3}")
                a(f"v_lshl_add_u32 v{vaoff[mt][i]}, v{t3}, 4, v{t2}")
                a(f"v_cmp_gt_u32 vcc, {S}, v{t0}")
                a(f"v_mov_b32 v{t1}, s9")
                a("s_nop 1")
                a(f"v_cndmask_b32 v{vaoff[mt][i]}, v{t1}, v{vaoff[mt][i]}, vcc")
    vdma = [a.v() for _ in range(RPC)]
    for p in range(RPC):
        Fv, sl, rr = t0, t1, t2
        d = vdma[p]
        a(f"v_add_u32 v{Fv}, {p * 64 * W}, v0")
        udiv(a, sl, Fv, 2 * NT, 64 * NT * CH)
        a(f"v_mul_u32_u24 v{rr}, {2 * NT}, v{sl}")
        a(f"v_sub_u32 v{rr}, v{Fv}, v{rr}")
        a(f"v_and_b32 v{d}, 0xfffffff3, v{sl}")
        a(f"v_bfe_u32 v{t0}, v{sl}, 2, 1")
        a(f"v_lshl_add_u32 v{d}, v{t0}, 3, v{d}")
        a(f"v_bfe_u32 v{t0}, v{sl}, 3, 1")
        a(f"v_lshl_add_u32 v{d}, v{t0}, 2, v{d}")
        a(f"v_mul_u32_u24 v{d}, {ldb}, v{d}")
        if PER > 1:
            a(f"v_and_b32 v{t0}, 7, v{sl}")
            swz(t0, t0)
            a(f"v_lshlrev_b32 v{t0}, 1, v{t0}")
            a(f"v_xor_b32 v{rr}, v{rr}, v{t0}")
        a(f"v_lshl_add_u32 v{d}, v{rr}, 4, v{d}")
        a(f"v_lshl_add_u32 v{d}, s6, 1, v{d}")
    nbase = (A_LDS0 + 65535) // 65536
    vb = [[a.v() for _ in range(nbase)] for _ in range(PER)]
    a(f"v_bfe_u32 v{t0}, v0, 2, 3")
    a(f"v_bfe_u32 v{t1}, v0, 5, 1")
    a(f"v_lshl_add_u32 v{t1}, v{t1}, 4, v{t0}")
    a(f"v_mul_u32_u24 v{t1}, {NT * 32}, v{t1}")
    a(f"v_and_b32 v{t2}, 3, v0")
    a(f"v_lshl_add_u32 v{t1}, v{t2}, 3, v{t1}")
    swz(t0, t0)
    for tp in range(PER):
        if PER > 1:
            a(f"v_xor_b32 v{t2}, {tp}, v{t0}")
            a(f"v_lshl_add_u32 v{vb[tp][0]}, v{t2}, 5, v{t1}")
        else:
            a(f"v_mov_b32 v{vb[0][0]}, v{t1}")
        for i in range(1, nbase):
            a(f"v_add_u32 v{vb[tp][i]}, {65536 * i}, v{vb[tp][0]}")
    if ln:
        NX = (NT + W - 1) // W
        vbx = [[a.v() for _ in range(nbase)] for _ in range(NX)]
        for x in range(NX):
            a(f"s_add_u32 s9, s7, {x * W}")
            a(f"s_min_u32 s9, s9, {NT - 1}")
            if PER > 1:
                a(f"v_xor_b32 v{t2}, s9, v{t0}")
            else:
                a(f"v_mov_b32 v{t2}, s9")
            a(f"v_lshl_add_u32 v{vbx[x][0]}, v{t2}, 5, v{t1}")
            for i in range(1, nbase):
                a(f"v_add_u32 v{vbx[x][i]}, {65536 * i}, v{vbx[x][0]}")
        vones = a.v(4, 4)
        for i in range(4):
            a(f"v_mov_b32 v{vones + i}, 0x3f803f80")
        vsum = [a.v() for _ in range(MT)]
        vsq = [a.v() for _ in range(MT)]
        for mt in range(MT):
            a(f"v_mov_b32 v{vsum[mt]}, 0")
            a(f"v_mov_b32 v{vsq[mt]}, 0")
        acs = [a.v(4, 4) for _ in range(NX)]
    acc = [[a.v(4, 4) for _ in range(NT)] for _ in range(MT)]
    if a_lds:
        areg = [[a.v(4, 4) for _ in range(MT)] for _ in range(4)]
    else:
        areg = [[[a.v(4, 4) for _ in range(MT)] for _ in range(CH)] for _ in range(RA)]
    a("s_waitcnt lgkmcnt(0)")
    stamp(a, st)
    aptr, aoff, asize = a_src
    srd(a, SA, aptr, aoff, asize)
    srd(a, SB, b_ptr, 0, b_size)
    pfl = []
    if pf is not None:
        PSTEP = W * 64 * 128
        vpd = a.v()
        vp7 = a.v()
        a(f"v_lshlrev_b32 v{vp7}, 7, v0")
        for (pptr, pbytes, per_xcd) in pf:
            nsl = (NWG // 8) if per_xcd else NWG
            pper = (pbytes // nsl + 127) // 128 * 128
            npf = (pper + PSTEP - 1) // PSTEP
            for i in range(npf):
                lines = [f"s_mov_b32 s96, s{pptr}", f"s_and_b32 s97, s{pptr + 1}, 0xffff", f"s_mov_b32 s98, {pbytes}",
                         "s_mov_b32 s99, 0x00020000"]
                if per_xcd:
                    lines += ["s_lshr_b32 s10, s2, 3", f"s_mul_i32 s10, s10, {pper}"]
                else:
                    lines += [f"s_mul_i32 s10, s2, {pper}"]
                lines += [f"s_add_u32 s10, s10, {i * PSTEP}", f"buffer_load_dword v{vpd}, v{vp7}, s[96:99], s10 offen"]
                pfl.append((lines, 'p'))
    vm = []
    ctxs = [dict(a=a, NT=NT, vrow=vrow[mt], vg=vg, vr16=vr16, vl=vl, t=(t0, t1, t2, t3), acc=acc[mt], vm=vm,
                 name=name, stile=64 + mt, mt=mt) for mt in range(MT)]
    epis = [epi() for _ in range(MT)]
    pend = []

    def queue_chunk(c):
        slot = c % ring
        if a_lds:
            for i in range(2 * MT):
                pend.append(([f"s_mov_b32 s10, {i * 8 * K * 2 + c * 128}",
                              f"s_add_u32 m0, s15, {A_LDS0 + slot * ASLOT + i * 1024}",
                              "s_nop 0",
                              f"buffer_load_dwordx4 v{vaoff[0]}, s[{SA}:{SA + 3}], s10 offen lds"], c))
        else:
            for s in range(CH):
                ks = c * CH + s
                for mt in range(MT):
                    vo = vaoff[mt][ks // 5] if shift else vaoff[mt]
                    pend.append(([f"s_mov_b32 s10, {c * CH * 1024}",
                                  f"buffer_load_dwordx4 {vr(areg[c % RA][s][mt], 4)}, v{vo}, s[{SA}:{SA + 3}], s10 offen offset:{s * 1024}"], c))
        for p in range(RPC):
            pend.append(([f"s_mov_b32 s10, {c * CH * 32 * ldb}",
                          f"s_add_u32 m0, s8, {slot * BSLOT + p * W * 1024}",
                          "s_nop 0",
                          f"buffer_load_dwordx4 v{vdma[p]}, s[{SB}:{SB + 3}], s10 offen lds"], c))

    def emit_pending(n=1):
        for _ in range(n):
            if not pend:
                return
            lines, tag = pend.pop(0)
            for l in lines:
                a(l)
            vm.append(tag)

    if ring < NCH:
        assert LA <= ring - 2
    stamp(a, st)
    for c in range(min(LA, NCH)):
        queue_chunk(c)
        emit_pending(1000)
        if c == 0:
            for mt in range(MT):
                if stats_src is not None:
                    vst = a.v(4, 4)
                    srd(a, 60, P_WS, stats_src, S * 64)
                    a(f"v_lshlrev_b32 v{t0}, 6, v{vrow[mt]}")
                    a(f"v_lshl_add_u32 v{t0}, v{vg}, 4, v{t0}")
                    a(f"buffer_load_dwordx4 {vr(vst, 4)}, v{t0}, s[60:63], 0 offen")
                    vm.append('r')
                    ctxs[mt]['vst'] = vst
                epis[mt].pre(ctxs[mt])
    stamp(a, st)
    for mt in range(MT):
        for t in range(NT):
            for i in range(4):
                a(f"v_mov_b32 v{acc[mt][t] + i}, 0")
    if ln:
        for x in range(NX):
            for i in range(4):
                a(f"v_mov_b32 v{acs[x] + i}, 0")

    def wait_chunk(c):
        last = max(i for i, tg in enumerate(vm) if isinstance(tg, int) and tg <= c)
        n = min(63, len(vm) - 1 - last)
        a(f"s_waitcnt vmcnt({n})")

    units = []
    for ks in range(KS):
        for t in range(NT):
            units.append((ks, t))
        if ln:
            for x in range(NX):
                units.append((ks, ('x', x)))
    NB = PD + 2
    breg = [a.v(4, 4) for _ in range(NB)]
    nrd = []

    def issue_read(i):
        ks, t = units[i]
        c = ks // CH
        slot = c % ring
        n = 0
        if a_lds and t == 0:
            for mt in range(MT):
                o = A_LDS0 + slot * ASLOT + mt * 2048
                a(f"ds_read_b128 {vr(areg[ks % 4][mt], 4)}, v{vard[ks % 2][o // 65536]} offset:{o % 65536}")
                n += 1
        off = slot * BSLOT + (ks % CH) * NT * 1024
        if isinstance(t, tuple):
            base = vbx[t[1]]
        else:
            base = vb[t % PER]
            off += (t - t % PER) * 32
        r = breg[i % NB]
        for h in range(2):
            o = off + h * 8 * NT * 32
            a(f"ds_read_b64_tr_b16 {vr(r + 2 * h, 2)}, v{base[o // 65536]} offset:{o % 65536}")
            n += 1
        nrd.append(n)

    nread = 0

    def advance_reads(upto):
        nonlocal nread
        while nread < min(upto, len(units)):
            ks, t = units[nread]
            if t == 0 and ks % CH == 0:
                c = ks // CH
                emit_pending(1000)
                wait_chunk(c)
                a("s_barrier")
                if NCH <= 5:
                    stamp(a, st)
                if c + LA < NCH:
                    queue_chunk(c + LA)
                elif c + LA == NCH and pf is not None and not os.environ.get("PFEND"):
                    pend.extend(pfl)
            issue_read(nread)
            nread += 1

    for i, (ks, t) in enumerate(units):
        advance_reads(i + PD + 1)
        ahead = sum(nrd[i + 1:nread])
        assert ahead <= 15
        a(f"s_waitcnt lgkmcnt({ahead})")
        c = ks // CH
        b = breg[i % NB]
        if isinstance(t, tuple):
            x = t[1]
            a(f"v_mfma_f32_16x16x32_bf16 {vr(acs[x], 4)}, {vr(b, 4)}, {vr(vones, 4)}, {vr(acs[x], 4)}")
        else:
            for mt in range(MT):
                ar = areg[ks % 4][mt] if a_lds else areg[c % RA][ks % CH][mt]
                a(f"v_mfma_f32_16x16x32_bf16 {vr(acc[mt][t], 4)}, {vr(b, 4)}, {vr(ar, 4)}, {vr(acc[mt][t], 4)}")
            if ln and t < 4 and stats_src is None:
                for mt in range(MT):
                    ar = areg[ks % 4][mt] if a_lds else areg[c % RA][ks % CH][mt]
                    a(f"v_dot2c_f32_bf16 v{vsum[mt]}, v{ar + t}, v{vones}")
                    a(f"v_dot2c_f32_bf16 v{vsq[mt]}, v{ar + t}, v{ar + t}")
        emit_pending(1)
    stamp(a, st)
    a("s_nop 7")
    a("s_nop 1")
    if ln:
        a("s_barrier")
        a(f"v_lshlrev_b32 v{t0}, 4, v{vg}")
        for x in range(NX):
            a(f"s_add_u32 s9, s7, {x * W}")
            a(f"s_min_u32 s9, s9, {NT - 1}")
            a("s_lshl_b32 s9, s9, 6")
            a(f"v_add_u32 v{t1}, s9, v{t0}")
            a(f"ds_write_b128 v{t1}, {vr(acs[x], 4)}")
        for mt in range(MT):
            if stats_src is not None:
                vst = ctxs[mt]['vst']
                a(f"v_add_f32 v{vsum[mt]}, v{vst}, v{vst + 2}")
                a(f"v_add_f32 v{vsq[mt]}, v{vst + 1}, v{vst + 3}")
            reduce_g(a, vsum[mt], t2)
            reduce_g(a, vsq[mt], t2)
        a("s_waitcnt lgkmcnt(0)")
        a("s_barrier")
        vcs = {}
        pool = list(breg)
        for x_ in areg:
            for y_ in x_:
                pool += (y_ if isinstance(y_, list) else [y_])
        for t in range(NT):
            vcs[t] = pool[t]
            a(f"ds_read_b128 {vr(vcs[t], 4)}, v{t0} offset:{t * 64}")

        def ln_stats(mean, var, mb, sqb):
            bf16r(a, mb, mean)
            bf16r(a, sqb, var)
            a(f"v_add_f32 v{sqb}, s9, v{sqb}")
            bf16r(a, sqb, sqb)
            a(f"v_sqrt_f32 v{sqb}, v{sqb}")
            a("s_nop 0")
            bf16r(a, sqb, sqb)

        vab = []
        for mt in range(MT):
            vmean, vvar, vmb, vsqb, va, vbb = vsum[mt], vsq[mt], a.v(), a.v(), a.v(), a.v()
            a(f"s_mov_b32 s9, {f32bits(1.0 / K):#x}")
            a(f"v_mul_f32 v{vmean}, s9, v{vmean}")
            a(f"v_mul_f32 v{vvar}, s9, v{vvar}")
            a(f"v_fma_f32 v{vvar}, -v{vmean}, v{vmean}, v{vvar}")
            a(f"v_max_f32 v{vvar}, 0, v{vvar}")
            a(f"s_mov_b32 s9, {f32bits(1e-5):#x}")
            ln_stats(vmean, vvar, vmb, vsqb)
            a(f"v_rcp_f32 v{va}, v{vsqb}")
            a("s_nop 0")
            a(f"v_mul_f32 v{vbb}, v{vmb}, v{va}")
            a(f"v_sub_f32 v{vbb}, 0, v{vbb}")
            if ln == 2:
                m2, s2 = a.v(), a.v()
                a(f"v_sub_f32 v{t2}, v{vmean}, v{vmb}")
                a(f"v_mul_f32 v{t2}, v{t2}, v{va}")
                a(f"v_mul_f32 v{t3}, v{vvar}, v{va}")
                a(f"v_mul_f32 v{t3}, v{t3}, v{va}")
                ln_stats(t2, t3, m2, s2)
                a(f"v_rcp_f32 v{s2}, v{s2}")
                a("s_nop 0")
                a(f"v_sub_f32 v{vbb}, v{vbb}, v{m2}")
                a(f"v_mul_f32 v{vbb}, v{vbb}, v{s2}")
                a(f"v_mul_f32 v{va}, v{va}, v{s2}")
            vab.append((va, vbb))
        a("s_waitcnt lgkmcnt(0)")
        for mt in range(MT):
            va, vbb = vab[mt]
            for t in range(NT):
                for i in range(4):
                    a(f"v_mul_f32 v{acc[mt][t] + i}, v{acc[mt][t] + i}, v{va}")
                    a(f"v_fma_f32 v{acc[mt][t] + i}, v{vcs[t] + i}, v{vbb}, v{acc[mt][t] + i}")
    for mt in range(MT):
        epis[mt].post(ctxs[mt])
    if pf is not None and os.environ.get("PFEND"):
        pass
    if STAMP:
        a("s_waitcnt vmcnt(0)")
    stamp(a, st)
    stamp_flush(a, st, name)
    a.label(f"{name}_end")
    a("s_endpgm")
    assert a.maxv <= 256, a.maxv
    return a, lds_bytes, NWG, 64 * W


class EpiQKV:
    def pre(self, c):
        a = c['a']
        srd(a, 48, P_WS, WS_Q, 3 * ACT_BYTES)
        self.vo = tiled_offset(c, 60)

    def post(self, c):
        a, NT, acc = c['a'], c['NT'], c['acc']
        for t in range(NT):
            a(f"v_cvt_pk_bf16_f32 v{acc[t]}, v{acc[t]}, v{acc[t] + 1}")
            a(f"v_cvt_pk_bf16_f32 v{acc[t] + 1}, v{acc[t] + 2}, v{acc[t] + 3}")
            a(f"buffer_store_dwordx2 {vr(acc[t], 2)}, v{self.vo}, s[48:51], 0 offen offset:{t * 512}")


def out_offset(c, ld):
    a = c['a']
    vo = a.v()
    a(f"v_mul_u32_u24 v{vo}, {ld}, v{c['vrow']}")
    a(f"v_lshl_add_u32 v{vo}, v{c['vg']}, 3, v{vo}")
    a(f"v_lshl_add_u32 v{vo}, s6, 1, v{vo}")
    return vo


def reduce_g(a, vv, tmp):
    a(f"v_mov_b32 v{tmp}, v{vv}")
    a("s_nop 1")
    a(f"v_permlane16_swap_b32 v{vv}, v{tmp}")
    a("s_nop 1")
    a(f"v_add_f32 v{vv}, v{vv}, v{tmp}")
    a(f"v_mov_b32 v{tmp}, v{vv}")
    a("s_nop 1")
    a(f"v_permlane32_swap_b32 v{vv}, v{tmp}")
    a("s_nop 1")
    a(f"v_add_f32 v{vv}, v{vv}, v{tmp}")


class StatOut:
    def __init__(self, c, off):
        a = c['a']
        self.c, self.off = c, off
        self.s = a.v(2, 2)
        a(f"v_mov_b32 v{self.s}, 0")
        a(f"v_mov_b32 v{self.s + 1}, 0")

    def add_packed(self, pk, t0, t1):
        a = self.c['a']
        unpack2(a, t0, t1, pk)
        a(f"v_add_f32 v{self.s}, v{self.s}, v{t0}")
        a(f"v_fmac_f32 v{self.s + 1}, v{t0}, v{t0}")
        a(f"v_add_f32 v{self.s}, v{self.s}, v{t1}")
        a(f"v_fmac_f32 v{self.s + 1}, v{t1}, v{t1}")

    def finish(self):
        c = self.c
        a = c['a']
        t0, t1, t2, t3 = c['t']
        reduce_g(a, self.s, t0)
        reduce_g(a, self.s + 1, t0)
        srd(a, 60, P_WS, self.off, S * 64)
        a(f"v_lshlrev_b32 v{t0}, 6, v{c['vrow']}")
        a("s_lshl_b32 s9, s4, 3")
        a(f"v_add_u32 v{t0}, s9, v{t0}")
        a("s_mov_b32 s9, 0x80000000")
        a(f"v_mov_b32 v{t1}, s9")
        a(f"v_cmp_eq_u32 vcc, 0, v{c['vg']}")
        a("s_nop 1")
        a(f"v_cndmask_b32 v{t0}, v{t1}, v{t0}, vcc")
        a(f"buffer_store_dwordx2 {vr(self.s, 2)}, v{t0}, s[60:63], 0 offen")


def tiled_offset(c, ks_out):
    a = c['a']
    t0 = c['t'][0]
    vo = a.v()
    a(f"s_mul_i32 s9, s{c['stile']}, {ks_out * 1024}")
    a("s_lshl_b32 s14, s6, 5")
    a("s_add_u32 s9, s9, s14")
    a(f"v_lshrrev_b32 v{t0}, 1, v{c['vg']}")
    a(f"v_lshl_add_u32 v{t0}, v{t0}, 4, v{c['vr16']}")
    a(f"v_lshlrev_b32 v{vo}, 4, v{t0}")
    a(f"v_and_b32 v{t0}, 1, v{c['vg']}")
    a(f"v_lshl_add_u32 v{vo}, v{t0}, 3, v{vo}")
    a(f"v_add_u32 v{vo}, s9, v{vo}")
    return vo


def unpack2(a, lo, hi, src):
    if lo == src:
        a(f"v_and_b32 v{hi}, 0xffff0000, v{src}")
        a(f"v_lshlrev_b32 v{lo}, 16, v{src}")
    else:
        a(f"v_lshlrev_b32 v{lo}, 16, v{src}")
        a(f"v_and_b32 v{hi}, 0xffff0000, v{src}")


class EpiResid:
    def __init__(self, res_ptr, res_off, out_ptr, out_off):
        self.r = (res_ptr, res_off)
        self.o = (out_ptr, out_off)

    def pre(self, c):
        a, NT = c['a'], c['NT']
        srd(a, 48, self.o[0], self.o[1], ACT_BYTES)
        srd(a, 52, self.r[0], self.r[1], ACT_BYTES)
        self.vr = out_offset(c, D * 2)
        self.vo = tiled_offset(c, 20)
        self.res = [a.v(2, 2) for _ in range(NT)]
        for t in range(NT):
            a(f"buffer_load_dwordx2 {vr(self.res[t], 2)}, v{self.vr}, s[52:55], 0 offen offset:{t * 32}")
            c['vm'].append('r')

    def post(self, c):
        a, NT, acc = c['a'], c['NT'], c['acc']
        t0, t1, t2, t3 = c['t']
        so = StatOut(c, WS_STH)
        for t in range(NT):
            for hh in range(2):
                a(f"v_cvt_pk_bf16_f32 v{t0}, v{acc[t] + 2 * hh}, v{acc[t] + 2 * hh + 1}")
                unpack2(a, t1, t2, t0)
                unpack2(a, t0, t3, self.res[t] + hh)
                a(f"v_add_f32 v{t1}, v{t1}, v{t0}")
                a(f"v_add_f32 v{t2}, v{t2}, v{t3}")
                a(f"v_cvt_pk_bf16_f32 v{acc[t] + hh}, v{t1}, v{t2}")
                so.add_packed(acc[t] + hh, t0, t1)
            a(f"buffer_store_dwordx2 {vr(acc[t], 2)}, v{self.vo}, s[48:51], 0 offen offset:{t * 512}")
        so.finish()


GC1 = -2.0 * math.log2(math.e) * math.sqrt(2.0 / math.pi)
GC3 = GC1 * 0.044715


class EpiGelu:
    def __init__(self, out_off, ld, size):
        self.out_off, self.ld, self.size = out_off, ld, size

    def pre(self, c):
        a = c['a']
        srd(a, 48, P_WS, self.out_off, self.size)
        self.vo = tiled_offset(c, self.ld // 64)
        self.vc1 = a.v()
        a(f"v_mov_b32 v{self.vc1}, {f32bits(GC1):#x}")
        a(f"s_mov_b32 s11, {f32bits(GC3):#x}")

    def post(self, c):
        a, NT, acc = c['a'], c['NT'], c['acc']
        tt = c['t']
        for t in range(NT):
            r = [acc[t] + i for i in range(4)]
            a(f"v_cvt_pk_bf16_f32 v{tt[0]}, v{r[0]}, v{r[1]}")
            a(f"v_cvt_pk_bf16_f32 v{tt[1]}, v{r[2]}, v{r[3]}")
            unpack2(a, r[0], r[1], tt[0])
            unpack2(a, r[2], r[3], tt[1])
            for i in range(4):
                a(f"v_mul_f32 v{tt[i]}, v{r[i]}, v{r[i]}")
            for i in range(4):
                a(f"v_fma_f32 v{tt[i]}, v{tt[i]}, s11, v{self.vc1}")
            for i in range(4):
                a(f"v_mul_f32 v{tt[i]}, v{tt[i]}, v{r[i]}")
            for i in range(4):
                a(f"v_exp_f32 v{tt[i]}, v{tt[i]}")
            for i in range(4):
                a(f"v_add_f32 v{tt[i]}, 1.0, v{tt[i]}")
            for i in range(4):
                a(f"v_rcp_f32 v{tt[i]}, v{tt[i]}")
            for i in range(4):
                a(f"v_mul_f32 v{r[i]}, v{r[i]}, v{tt[i]}")
            a(f"v_cvt_pk_bf16_f32 v{acc[t]}, v{acc[t]}, v{acc[t] + 1}")
            a(f"v_cvt_pk_bf16_f32 v{acc[t] + 1}, v{acc[t] + 2}, v{acc[t] + 3}")
            a(f"buffer_store_dwordx2 {vr(acc[t], 2)}, v{self.vo}, s[48:51], 0 offen offset:{t * 512}")


class EpiX1:
    def pre(self, c):
        a, NT = c['a'], c['NT']
        srd(a, 48, P_WS, WS_X1, ACT_BYTES)
        srd(a, 52, P_WS, WS_H, ACT_BYTES)
        self.vo = tiled_offset(c, 20)
        self.res = [a.v(2, 2) for _ in range(NT)]
        for t in range(NT):
            a(f"buffer_load_dwordx2 {vr(self.res[t], 2)}, v{self.vo}, s[52:55], 0 offen offset:{t * 512}")
            c['vm'].append('r')

    def post(self, c):
        a, NT, acc = c['a'], c['NT'], c['acc']
        t0, t1, t2, t3 = c['t']
        vst = c['vst']
        mb, rs = vst, vst + 1
        a(f"v_add_f32 v{vst}, v{vst}, v{vst + 2}")
        a(f"v_add_f32 v{vst + 1}, v{vst + 1}, v{vst + 3}")
        reduce_g(a, vst, t0)
        reduce_g(a, vst + 1, t0)
        a(f"s_mov_b32 s9, {f32bits(1.0 / D):#x}")
        a(f"v_mul_f32 v{vst}, s9, v{vst}")
        a(f"v_mul_f32 v{vst + 1}, s9, v{vst + 1}")
        a(f"v_fma_f32 v{vst + 1}, -v{vst}, v{vst}, v{vst + 1}")
        a(f"v_max_f32 v{vst + 1}, 0, v{vst + 1}")
        a(f"s_mov_b32 s9, {f32bits(1e-5):#x}")
        bf16r(a, mb, mb)
        bf16r(a, rs, rs)
        a(f"v_add_f32 v{rs}, s9, v{rs}")
        bf16r(a, rs, rs)
        a(f"v_sqrt_f32 v{rs}, v{rs}")
        a("s_nop 0")
        bf16r(a, rs, rs)
        a(f"v_rcp_f32 v{rs}, v{rs}")
        so = StatOut(c, WS_STX)
        for t in range(NT):
            for hh in range(2):
                unpack2(a, t0, t1, self.res[t] + hh)
                a(f"v_sub_f32 v{t0}, v{t0}, v{mb}")
                a(f"v_sub_f32 v{t1}, v{t1}, v{mb}")
                a(f"v_cvt_pk_bf16_f32 v{t0}, v{t0}, v{t1}")
                unpack2(a, t0, t1, t0)
                a(f"v_mul_f32 v{t0}, v{t0}, v{rs}")
                a(f"v_mul_f32 v{t1}, v{t1}, v{rs}")
                a(f"v_cvt_pk_bf16_f32 v{t0}, v{t0}, v{t1}")
                unpack2(a, t0, t1, t0)
                a(f"v_cvt_pk_bf16_f32 v{t2}, v{acc[t] + 2 * hh}, v{acc[t] + 2 * hh + 1}")
                unpack2(a, t2, t3, t2)
                a(f"v_add_f32 v{t0}, v{t0}, v{t2}")
                a(f"v_add_f32 v{t1}, v{t1}, v{t3}")
                a(f"v_cvt_pk_bf16_f32 v{acc[t] + hh}, v{t0}, v{t1}")
                so.add_packed(acc[t] + hh, t0, t1)
            a(f"buffer_store_dwordx2 {vr(acc[t], 2)}, v{self.vo}, s[48:51], 0 offen offset:{t * 512}")
        so.finish()


class EpiFinal:
    def pre(self, c):
        a, NT = c['a'], c['NT']
        srd(a, 48, P_OUT, 0, ACT_BYTES)
        srd(a, 52, P_WS, WS_H, ACT_BYTES)
        srd(a, 56, P_WS, WS_X1, ACT_BYTES)
        self.vo = out_offset(c, D * 2)
        self.vt = tiled_offset(c, 20)
        self.h = [a.v(2, 2) for _ in range(NT)]
        self.x = [a.v(2, 2) for _ in range(NT)]
        for t in range(NT):
            a(f"buffer_load_dwordx2 {vr(self.h[t], 2)}, v{self.vt}, s[52:55], 0 offen offset:{t * 512}")
            c['vm'].append('r')
            a(f"buffer_load_dwordx2 {vr(self.x[t], 2)}, v{self.vt}, s[56:59], 0 offen offset:{t * 512}")
            c['vm'].append('r')

    def post(self, c):
        a, NT, acc = c['a'], c['NT'], c['acc']
        t0, t1, t2, t3 = c['t']
        for t in range(NT):
            for hh in range(2):
                a(f"v_cvt_pk_bf16_f32 v{t0}, v{acc[t] + 2 * hh}, v{acc[t] + 2 * hh + 1}")
                unpack2(a, t0, t1, t0)
                unpack2(a, t2, t3, self.x[t] + hh)
                a(f"v_add_f32 v{t0}, v{t0}, v{t2}")
                a(f"v_add_f32 v{t1}, v{t1}, v{t3}")
                a(f"v_cvt_pk_bf16_f32 v{t0}, v{t0}, v{t1}")
                unpack2(a, t0, t1, t0)
                unpack2(a, t2, t3, self.h[t] + hh)
                a(f"v_add_f32 v{t0}, v{t0}, v{t2}")
                a(f"v_add_f32 v{t1}, v{t1}, v{t3}")
                a(f"v_cvt_pk_bf16_f32 v{acc[t] + hh}, v{t0}, v{t1}")
            a(f"buffer_store_dwordx2 {vr(acc[t], 2)}, v{self.vo}, s[48:51], 0 offen offset:{t * 32}")


def gen_attn(name):
    a = Asm()
    W = 8
    PK = 8192
    PV = 8192 + 128
    L_K = 0
    L_BIAS = 3 * PK
    L_V = 4 * PK
    L_ONE = L_V + 3 * PV
    lds_bytes = L_ONE + 64
    a("s_cmp_ge_u32 s2, 256")
    a(f"s_cbranch_scc1 {name}_end")
    st = [0]
    stamp(a, st)
    load_kernargs(a)
    a("s_and_b32 s3, s2, 7")
    a("s_lshr_b32 s4, s2, 3")
    a("s_lshl_b32 s5, s3, 8")
    vw, vl, vr16, vg = a.v(), a.v(), a.v(), a.v()
    t0, t1, t2, t3 = a.v(), a.v(), a.v(), a.v()
    a(f"v_lshrrev_b32 v{vw}, 6, v0")
    a(f"v_and_b32 v{vl}, 63, v0")
    a(f"v_and_b32 v{vr16}, 15, v0")
    a(f"v_bfe_u32 v{vg}, v0, 4, 2")
    a("s_nop 0")
    a(f"v_readfirstlane_b32 s7, v{vw}")
    a("s_lshl_b32 s8, s7, 10")
    a("s_mul_i32 s6, s4, 20")
    a("s_lshr_b32 s6, s6, 3")
    a("s_lshl_b32 s6, s6, 8")
    a("s_and_b32 s66, s4, 1")
    a("s_sub_u32 s9, s5, 256")
    a("s_mov_b32 s12, 0x80000000")
    a(f"v_add_u32 v{t1}, s9, v0")
    a(f"v_ashrrev_i32 v{t2}, 4, v{t1}")
    a(f"v_mul_i32_i24 v{t2}, 61440, v{t2}")
    a(f"v_lshl_add_u32 v{t2}, v{vr16}, 4, v{t2}")
    a(f"v_cmp_gt_i32 vcc, 0, v{t1}")
    a(f"v_mov_b32 v{t3}, s12")
    a("s_nop 1")
    a(f"v_cndmask_b32 v{t2}, v{t2}, v{t3}, vcc")
    a("s_waitcnt lgkmcnt(0)")
    srd(a, 40, P_WS, WS_Q, 3 * ACT_BYTES)
    srd(a, 52, P_WS, WS_O, ACT_BYTES)
    for sec, base, pitch in ((1, L_K, PK), (2, L_V, PV)):
        for g in range(3):
            a(f"s_add_u32 s10, s6, {sec * 80 * 256 + g * 256}")
            a(f"s_add_u32 m0, s8, {base + g * pitch}")
            a("s_nop 0")
            a(f"buffer_load_dwordx4 v{t2}, s[40:43], s10 offen lds")
    vz = a.v(4, 4)
    a(f"v_mov_b32 v{vz}, 0")
    a(f"v_mov_b32 v{t3}, 0xf149")
    a(f"v_cndmask_b32 v{vz}, v{vz}, v{t3}, vcc")
    a(f"v_mov_b32 v{vz + 1}, 0")
    a(f"v_mov_b32 v{vz + 2}, 0")
    a(f"v_mov_b32 v{vz + 3}, 0")
    a(f"v_lshlrev_b32 v{t0}, 4, v0")
    a(f"ds_write_b128 v{t0}, {vr(vz, 4)} offset:{L_BIAS}")
    a(f"v_mov_b32 v{vz}, 0x3f80")
    a(f"v_mov_b32 v{t0}, {L_ONE}")
    a(f"ds_write_b128 v{t0}, {vr(vz, 4)}")
    vq = [a.v(4, 4) for _ in range(2)]
    vtok = a.v()
    a(f"v_lshl_add_u32 v{vtok}, v{vw}, 5, v{vr16}")
    a(f"v_add_u32 v{vtok}, s5, v{vtok}")
    a(f"v_lshrrev_b32 v{t0}, 4, v{vtok}")
    a(f"v_mul_u32_u24 v{t0}, 61440, v{t0}")
    a(f"v_lshl_add_u32 v{t0}, v{vr16}, 4, v{t0}")
    a(f"v_lshl_add_u32 v{t0}, v{vg}, 8, v{t0}")
    a(f"v_mov_b32 v{t3}, s12")
    a(f"v_cmp_gt_u32 vcc, 3, v{vg}")
    a("s_nop 1")
    a(f"v_cndmask_b32 v{t1}, v{t3}, v{t0}, vcc")
    for qt in range(2):
        a(f"s_add_u32 s10, s6, {qt * 61440}")
        a(f"buffer_load_dwordx4 {vr(vq[qt], 4)}, v{t1}, s[40:43], s10 offen")
    srd(a, 96, P_W1, 0, 819200)
    vpd = a.v(4, 4)
    a("s_lshr_b32 s15, s2, 3")
    a("s_mul_i32 s15, s15, 25600")
    a(f"v_lshlrev_b32 v{t0}, 6, v0")
    a(f"v_add_u32 v{t0}, s15, v{t0}")
    a(f"buffer_load_dword v{vpd}, v{t0}, s[96:99], 0 offen")
    mfirst = a.v(4, 4)
    mlast = a.v(4, 4)
    a(f"v_mov_b32 v{t3}, 0xf149f2ca")
    a(f"v_lshlrev_b32 v{t0}, 2, v{vg}")
    for r in range(4):
        a(f"v_add_u32 v{t1}, {r}, v{t0}")
        a(f"v_cmp_gt_u32 vcc, v{t1}, v{vr16}")
        a("s_nop 1")
        a(f"v_cndmask_b32 v{mfirst + r}, v{t3}, 0, vcc")
        a(f"v_cndmask_b32 v{mlast + r}, 0, v{t3}, vcc")
    vka = a.v()
    a(f"v_lshlrev_b32 v{t0}, 4, v{vr16}")
    a(f"v_lshl_add_u32 v{t0}, v{vw}, 9, v{t0}")
    a(f"v_mul_u32_u24 v{t1}, {PK}, v{vg}")
    a(f"v_add_u32 v{vka}, v{t0}, v{t1}")
    vva = a.v()
    vvb = a.v()
    vvs = a.v()
    a(f"v_bfe_u32 v{t0}, v0, 2, 2")
    a(f"v_lshl_add_u32 v{t0}, v{vg}, 2, v{t0}")
    a(f"v_lshl_add_u32 v{t0}, v{vw}, 5, v{t0}")
    a(f"v_lshlrev_b32 v{t0}, 4, v{t0}")
    a(f"v_add_u32 v{t0}, {L_V}, v{t0}")
    a(f"v_and_b32 v{t1}, 3, v0")
    a(f"v_add_u32 v{t2}, s66, v{t1}")
    a(f"v_lshrrev_b32 v{t3}, 1, v{t2}")
    a(f"v_mul_u32_u24 v{t3}, {PV}, v{t3}")
    a(f"v_and_b32 v{t2}, 1, v{t2}")
    a(f"v_lshl_add_u32 v{t3}, v{t2}, 3, v{t3}")
    a(f"v_add_u32 v{vva}, v{t0}, v{t3}")
    a("s_lshl_b32 s67, s66, 3")
    a(f"s_add_u32 s67, s67, {2 * PV}")
    a(f"v_add_u32 v{vvb}, s67, v{t0}")
    a(f"v_cmp_eq_u32 vcc, 1, v{t1}")
    a(f"v_mov_b32 v{t3}, {L_ONE}")
    a(f"v_mov_b32 v{vvs}, 1")
    a(f"v_cndmask_b32 v{vvb}, v{vvb}, v{t3}, vcc")
    a(f"v_cndmask_b32 v{vvs}, v{vvs}, 0, vcc")
    CS = (DH ** -0.5) * math.log2(math.e)
    a(f"s_mov_b32 s13, {f32bits(CS):#x}")
    stamp(a, st)
    a("s_waitcnt vmcnt(1) lgkmcnt(0)")
    stamp(a, st)
    a(f"v_cmp_eq_u32 vcc, 3, v{vg}")
    a(f"v_mov_b32 v{t3}, 0x3f80")
    a("s_nop 0")
    for qt in range(2):
        a(f"v_cndmask_b32 v{vq[qt]}, v{vq[qt]}, v{t3}, vcc")
    a("s_lshl_b32 s10, s66, 1")
    a("s_sub_u32 s10, 2, s10")
    a(f"v_cmp_eq_u32 vcc, s10, v{vg}")
    a("s_cmp_eq_u32 s66, 0")
    a(f"s_cbranch_scc1 {name}_even")
    for qt in range(2):
        a(f"v_cndmask_b32 v{vq[qt]}, v{vq[qt]}, 0, vcc")
        a(f"v_cndmask_b32 v{vq[qt] + 1}, v{vq[qt] + 1}, 0, vcc")
    a(f"s_branch {name}_qdone")
    a.label(f"{name}_even")
    for qt in range(2):
        a(f"v_cndmask_b32 v{vq[qt] + 2}, v{vq[qt] + 2}, 0, vcc")
        a(f"v_cndmask_b32 v{vq[qt] + 3}, v{vq[qt] + 3}, 0, vcc")
    a.label(f"{name}_qdone")
    a("s_barrier")
    sreg = [a.v(4, 4) for _ in range(18)]
    kf = [a.v(4, 4) for _ in range(4)]
    vf = [a.v(4, 4) for _ in range(4)]
    oacc = [a.v(4, 4) for _ in range(2)]
    preg = [a.v(4, 4) for _ in range(9)]
    vtmp = a.v()
    vadr = a.v()
    vm_, vmc = a.v(), a.v()
    for qt in range(2):
        def kread(i):
            a(f"ds_read_b128 {vr(kf[i % 4], 4)}, v{vka} offset:{(qt + i) * 256}")
        for i in range(3):
            kread(i)
        for i in range(17):
            if i + 3 < 17:
                kread(i + 3)
            ahead = min(3, 16 - i)
            a(f"s_waitcnt lgkmcnt({ahead})")
            cop = vr(mfirst, 4) if i == 0 else (vr(mlast, 4) if i == 16 else "0")
            a(f"v_mfma_f32_16x16x32_bf16 {vr(sreg[i], 4)}, {vr(kf[i % 4], 4)}, {vr(vq[qt], 4)}, {cop}")
        a("s_nop 7")
        a("s_nop 1")
        stamp(a, st)
        vals = [sreg[i] + r for i in range(17) for r in range(4)]
        a(f"v_max3_f32 v{vm_}, v{vals[0]}, v{vals[1]}, v{vals[2]}")
        j = 3
        while j + 1 < len(vals):
            a(f"v_max3_f32 v{vm_}, v{vm_}, v{vals[j]}, v{vals[j + 1]}")
            j += 2
        if j < len(vals):
            a(f"v_max_f32 v{vm_}, v{vm_}, v{vals[j]}")
        a(f"v_mov_b32 v{vtmp}, v{vm_}")
        a("s_nop 1")
        a(f"v_permlane16_swap_b32 v{vm_}, v{vtmp}")
        a("s_nop 1")
        a(f"v_max_f32 v{vm_}, v{vm_}, v{vtmp}")
        a(f"v_mov_b32 v{vtmp}, v{vm_}")
        a("s_nop 1")
        a(f"v_permlane32_swap_b32 v{vm_}, v{vtmp}")
        a("s_nop 1")
        a(f"v_max_f32 v{vm_}, v{vm_}, v{vtmp}")
        a(f"v_mul_f32 v{vmc}, s13, v{vm_}")
        for v in vals:
            a(f"v_fma_f32 v{v}, v{v}, s13, -v{vmc}")
        for v in vals:
            a(f"v_exp_f32 v{v}, v{v}")
        a("s_nop 0")
        for p in range(9):
            ta, tb = 2 * p, 2 * p + 1
            a(f"v_cvt_pk_bf16_f32 v{preg[p]}, v{sreg[ta]}, v{sreg[ta] + 1}")
            a(f"v_cvt_pk_bf16_f32 v{preg[p] + 1}, v{sreg[ta] + 2}, v{sreg[ta] + 3}")
            if tb < 17:
                a(f"v_cvt_pk_bf16_f32 v{preg[p] + 2}, v{sreg[tb]}, v{sreg[tb] + 1}")
                a(f"v_cvt_pk_bf16_f32 v{preg[p] + 3}, v{sreg[tb] + 2}, v{sreg[tb] + 3}")
            else:
                a(f"v_mov_b32 v{preg[p] + 2}, 0")
                a(f"v_mov_b32 v{preg[p] + 3}, 0")
        def vread(p):
            k0 = 16 * (qt + 2 * p)
            k1 = k0 + 16 if 2 * p + 1 < 17 else k0
            fa, fb = vf[(2 * p) % 4], vf[(2 * p + 1) % 4]
            a(f"ds_read_b64_tr_b16 {vr(fa, 2)}, v{vva} offset:{k0 * 16}")
            a(f"ds_read_b64_tr_b16 {vr(fa + 2, 2)}, v{vva} offset:{k1 * 16}")
            a(f"v_mad_u32_u24 v{vadr}, v{vvs}, {k0 * 16 // 16}, 0")
            a.lines.pop()
            a(f"v_mul_u32_u24 v{vadr}, {k0 * 16}, v{vvs}")
            a(f"v_add_u32 v{vadr}, v{vadr}, v{vvb}")
            a(f"ds_read_b64_tr_b16 {vr(fb, 2)}, v{vadr}")
            a(f"v_mul_u32_u24 v{vtmp}, {k1 * 16}, v{vvs}")
            a(f"v_add_u32 v{vtmp}, v{vtmp}, v{vvb}")
            a(f"ds_read_b64_tr_b16 {vr(fb + 2, 2)}, v{vtmp}")
        stamp(a, st)
        vread(0)
        for p in range(9):
            if p + 1 < 9:
                vread(p + 1)
                a("s_waitcnt lgkmcnt(4)")
            else:
                a("s_waitcnt lgkmcnt(0)")
            fa, fb = vf[(2 * p) % 4], vf[(2 * p + 1) % 4]
            c0 = "0" if p == 0 else vr(oacc[0], 4)
            c1 = "0" if p == 0 else vr(oacc[1], 4)
            a(f"v_mfma_f32_16x16x32_bf16 {vr(oacc[0], 4)}, {vr(fa, 4)}, {vr(preg[p], 4)}, {c0}")
            a(f"v_mfma_f32_16x16x32_bf16 {vr(oacc[1], 4)}, {vr(fb, 4)}, {vr(preg[p], 4)}, {c1}")
        a("s_nop 7")
        a("s_nop 1")
        a(f"v_lshlrev_b32 v{vtmp}, 2, v{vr16}")
        a(f"v_add_u32 v{vtmp}, 64, v{vtmp}")
        a(f"ds_bpermute_b32 v{vm_}, v{vtmp}, v{oacc[1]}")
        a("s_waitcnt lgkmcnt(0)")
        a(f"v_rcp_f32 v{vm_}, v{vm_}")
        a("s_nop 0")
        for r in range(4):
            a(f"v_mul_f32 v{oacc[0] + r}, v{oacc[0] + r}, v{vm_}")
            a(f"v_mul_f32 v{oacc[1] + r}, v{oacc[1] + r}, v{vm_}")
        a(f"v_cvt_pk_bf16_f32 v{oacc[0]}, v{oacc[0]}, v{oacc[0] + 1}")
        a(f"v_cvt_pk_bf16_f32 v{oacc[0] + 1}, v{oacc[0] + 2}, v{oacc[0] + 3}")
        a(f"v_cvt_pk_bf16_f32 v{oacc[1]}, v{oacc[1]}, v{oacc[1] + 1}")
        a(f"v_cvt_pk_bf16_f32 v{oacc[1] + 1}, v{oacc[1] + 2}, v{oacc[1] + 3}")
        a(f"v_add_u32 v{vtmp}, {16 * qt}, v{vtok}")
        a(f"v_lshrrev_b32 v{vtmp}, 4, v{vtmp}")
        a(f"v_mul_u32_u24 v{vtmp}, 20480, v{vtmp}")
        a(f"v_lshl_add_u32 v{vtmp}, v{vr16}, 4, v{vtmp}")
        a("s_mul_i32 s14, s4, 20")
        for which in range(2):
            if which == 0:
                a(f"v_lshl_add_u32 v{vadr}, v{vg}, 2, s14")
            else:
                a(f"v_mov_b32 v{vadr}, s14")
                a(f"v_add_u32 v{vadr}, 16, v{vadr}")
            a(f"v_lshrrev_b32 v{vm_}, 3, v{vadr}")
            a(f"v_and_b32 v{vadr}, 7, v{vadr}")
            a(f"v_lshlrev_b32 v{vadr}, 1, v{vadr}")
            a(f"v_lshl_add_u32 v{vadr}, v{vm_}, 8, v{vadr}")
            a(f"v_add_u32 v{vadr}, v{vadr}, v{vtmp}")
            if which == 1:
                a(f"v_mov_b32 v{vm_}, s12")
                a(f"v_cmp_eq_u32 vcc, 0, v{vg}")
                a("s_nop 1")
                a(f"v_cndmask_b32 v{vadr}, v{vm_}, v{vadr}, vcc")
            a(f"buffer_store_dwordx2 {vr(oacc[which], 2)}, v{vadr}, s[52:55], 0 offen")
        stamp(a, st)
    if STAMP:
        a("s_waitcnt vmcnt(0)")
    stamp(a, st)
    stamp_flush(a, st, name)
    a.label(f"{name}_end")
    a("s_endpgm")
    return a, lds_bytes, 256, 512


def build():
    cfg = os.environ.get("CFG", "A")
    ks = []

    def add(name, **kw):
        ks.append((name,) + gen_gemm(name, **kw))

    add("k1_qkv_kernel", NT=8, W=4, MT=2, KS=20, ldb=3840, n_ntiles=15, ring=5, CH=2, a_lds=True, LA=3,
        a_src=(P_X, 0, ACT_BYTES), b_ptr=P_WQKV, b_size=640 * 1920 * 2, ln=1, shift=False, epi=EpiQKV, pf=[(P_WO, 819200, True)])
    ks.append(("k2_attn_kernel",) + gen_attn("k2_attn_kernel"))
    small = dict(NT=5, W=4, MT=1, n_ntiles=8) if cfg == "A" else dict(NT=4, W=4, MT=2, n_ntiles=10)
    add("k3_wo_kernel", KS=20, ldb=1280, ring=5, a_src=(P_WS, WS_O, ACT_BYTES), b_ptr=P_WO, b_size=640 * 640 * 2, ln=0,
        shift=False, epi=lambda: EpiResid(P_X, 0, P_WS, WS_H), pf=[(P_W2, 819200, True)], **small)
    add("k4_w1_kernel", KS=20, ldb=1280, ring=5, a_src=(P_WS, WS_H, ACT_BYTES), b_ptr=P_W1, b_size=640 * 640 * 2, ln=2,
        shift=False, epi=lambda: EpiGelu(WS_G, 1280, ACT_BYTES), stats_src=WS_STH, pf=[(P_W3, 1966080, True)], **small)
    add("k5_w2_kernel", KS=20, ldb=1280, ring=5, a_src=(P_WS, WS_G, ACT_BYTES), b_ptr=P_W2, b_size=640 * 640 * 2, ln=0,
        shift=True, epi=EpiX1, stats_src=WS_STH, pf=[(P_W4, 1966080, True)], **small)
    add("k6_w3_kernel", NT=6, W=4, MT=2, KS=20, ldb=3072, n_ntiles=16, ring=10, a_src=(P_WS, WS_X1, ACT_BYTES), b_ptr=P_W3,
        b_size=640 * 1536 * 2, ln=1, shift=False, epi=lambda: EpiGelu(WS_T, 3072, S * F * 2), stats_src=WS_STX, CH=2, LA=4)
    add("k7_w4_kernel", KS=48, ldb=1280, ring=7, a_src=(P_WS, WS_T, S * F * 2), b_ptr=P_W4, b_size=1536 * 640 * 2, ln=0,
        shift=False, epi=EpiFinal, LA=3, **small)
    ref = open("sequential_preLN__sliding_block__mixer_s_mlp__prompt.s.ref").read()
    head = []
    for line in ref.splitlines():
        if not line.startswith(";"):
            break
        if "@launch" in line or "Override launch" in line or "grid=ceil" in line:
            continue
        head.append(line)
    out = "\n".join(head) + "\n"
    for name, a, lds, nwg, thr in ks:
        out += f"; @launch kernel={name} grid=({nwg},1,1) block=({thr},1,1) lds={lds}\n"
    out += '.amdgcn_target "amdgcn-amd-amdhsa--gfx950"\n.text\n'
    for name, a, lds, nwg, thr in ks:
        out += kernel_header(name) + a.text()
    out += '.section .rodata,"a"\n'
    for name, a, lds, nwg, thr in ks:
        out += ".p2align 6\n" + kernel_desc(name, a.maxv)
        print(name, "vgprs", a.maxv, "lds", lds, "wgs", nwg, "instrs", len(a.lines), file=sys.stderr)
    return out


if __name__ == "__main__":
    if len(sys.argv) > 2 and sys.argv[2] == "stamp":
        STAMP = True
    path = sys.argv[1] if len(sys.argv) > 1 else "sequential_preLN__sliding_block__mixer_s_mlp__prompt.s"
    open(path, "w").write(build())
```

```python
import sys, os

S = 2048
D = 640
F = 1536
NH = 32
DH = 20

WS_Q = 0
WS_K = 2621440
WS_V = 5242880
WS_O = 0x800000
WS_H = 0xB00000
WS_G = 0xE00000
WS_X1 = 0x1100000
WS_T = 0x1400000
WS_ST = 0x1B00000
WS_STH = 0x1B00000
WS_STX = 0x1B40000
WS_CNT = 0x1B80000
ACT_BYTES = S * D * 2

P_X, P_WQKV, P_WO, P_BX, P_W1, P_W2, P_W3, P_W4 = 16, 18, 20, 22, 24, 26, 28, 30
P_OUT, P_DBG, P_WS = 32, 34, 36


class Asm:
    def __init__(self):
        self.lines = []
        self.nv = 1
        self.maxv = 1

    def __call__(self, s):
        self.lines.append("    " + s)

    def label(self, s):
        self.lines.append(s + ":")

    def comment(self, s):
        self.lines.append("    ; " + s)

    def v(self, n=1, align=1):
        self.nv = (self.nv + align - 1) // align * align
        r = self.nv
        self.nv += n
        self.maxv = max(self.maxv, self.nv)
        return r

    def text(self):
        return "\n".join(self.lines) + "\n"


def vr(b, n):
    return f"v[{b}:{b + n - 1}]" if n > 1 else f"v{b}"


def sr(b, n):
    return f"s[{b}:{b + n - 1}]" if n > 1 else f"s{b}"


def magic(d, maxval):
    for sh in range(0, 32):
        m = ((1 << sh) + d - 1) // d
        if m >= (1 << 24) or m * maxval >= (1 << 32):
            continue
        if all((x * m) >> sh == x // d for x in range(maxval + 1)):
            return m, sh
    raise ValueError("no magic")


def udiv(a, dst, src, d, maxval):
    if d & (d - 1) == 0:
        a(f"v_lshrrev_b32 v{dst}, {d.bit_length() - 1}, v{src}")
        return
    m, sh = magic(d, maxval)
    a(f"v_mul_u32_u24 v{dst}, {m}, v{src}")
    a(f"v_lshrrev_b32 v{dst}, {sh}, v{dst}")


def srd(a, dst, ptr, off, size):
    if off:
        a(f"s_add_u32 s{dst}, s{ptr}, {off}")
        a(f"s_addc_u32 s{dst + 1}, s{ptr + 1}, 0")
    else:
        a(f"s_mov_b32 s{dst}, s{ptr}")
        a(f"s_mov_b32 s{dst + 1}, s{ptr + 1}")
    a(f"s_and_b32 s{dst + 1}, s{dst + 1}, 0xffff")
    a(f"s_mov_b32 s{dst + 2}, {size}")
    a(f"s_mov_b32 s{dst + 3}, 0x00020000")


def load_kernargs(a):
    a("s_load_dwordx16 s[16:31], s[0:1], 0")
    a("s_load_dwordx4 s[32:35], s[0:1], 64")
    a("s_load_dwordx2 s[36:37], s[0:1], 80")


def bf16r(a, dst, src):
    a(f"v_cvt_pk_bf16_f32 v{dst}, v{src}, v{src}")
    a(f"v_lshlrev_b32 v{dst}, 16, v{dst}")


STAMP = False
def stamp(a, st):
    if not STAMP:
        return
    i = st[0]
    st[0] += 1
    if i == 0:
        a("s_memrealtime s[68:69]")
    a(f"s_memtime s[{70 + 2 * i}:{71 + 2 * i}]")
    a("s_waitcnt lgkmcnt(0)")


KIDX = [0]


def stamp_flush(a, st, name):
    if not STAMP:
        return
    a("s_memrealtime s[100:101]")
    a("s_waitcnt lgkmcnt(0)")
    a("s_cmp_lg_u32 s7, 0")
    a(f"s_cbranch_scc1 {name}_nod")
    srd(a, 60, P_WS, 0x8000000 + KIDX[0] * 8192, 8192)
    KIDX[0] += 1
    t = a.v(2, 2)
    u = a.v()
    a(f"v_mov_b32 v{t}, s68")
    a(f"v_mov_b32 v{t + 1}, s100")
    a(f"v_mov_b32 v{u}, s2")
    a(f"v_lshlrev_b32 v{u}, 3, v{u}")
    a(f"buffer_store_dwordx2 {vr(t, 2)}, v{u}, s[60:63], 0 offen")
    a.label(f"{name}_nod")
    a("s_cmp_lg_u32 s2, 37")
    a(f"s_cbranch_scc1 {name}_nost")
    a("s_cmp_lg_u32 s7, 0")
    a(f"s_cbranch_scc1 {name}_nost")
    srd(a, 60, P_DBG, 0, 256)
    t = a.v()
    u = a.v()
    a(f"v_mov_b32 v{u}, 0")
    for i in range(st[0]):
        a(f"v_mov_b32 v{t}, s{70 + 2 * i}")
        a(f"buffer_store_dword v{t}, v{u}, s[60:63], 0 offen offset:{128 + 4 * i}")
    a.label(f"{name}_nost")


def kernel_header(name):
    return (f".globl {name}\n.p2align 8\n.type {name},@function\n{name}:\n")


def kernel_desc(name, nvgpr, nsgpr=102):
    acc = (nvgpr + 3) // 4 * 4
    return f""".amdhsa_kernel {name}
  .amdhsa_next_free_vgpr {nvgpr}
  .amdhsa_next_free_sgpr {nsgpr}
  .amdhsa_accum_offset {acc}
  .amdhsa_group_segment_fixed_size 0
  .amdhsa_kernarg_size 88
  .amdhsa_user_sgpr_count 2
  .amdhsa_user_sgpr_kernarg_segment_ptr 1
  .amdhsa_system_sgpr_workgroup_id_x 1
.end_amdhsa_kernel
"""


def gelu(a, x, t0, t1, sc):
    a(f"v_mul_f32 v{t0}, v{x}, v{x}")
    a(f"v_fma_f32 v{t0}, v{t0}, s{sc['c3']}, v{sc['vc1']}")
    a(f"v_mul_f32 v{t0}, v{t0}, v{x}")
    a(f"v_exp_f32 v{t0}, v{t0}")
    a("s_nop 0")
    a(f"v_add_f32 v{t0}, 1.0, v{t0}")
    a(f"v_rcp_f32 v{t0}, v{t0}")
    a("s_nop 0")
    a(f"v_mul_f32 v{x}, v{x}, v{t0}")


import struct
import math


def f32bits(x):
    return struct.unpack("<I", struct.pack("<f", x))[0]


def gen_gemm(name, NT, W, KS, ldb, n_ntiles, ring, a_src, b_ptr, b_size, ln, shift, epi, PD=5, CH=4, a_lds=False, LA=2,
             stats_src=None, MT=1, pf=None, map2d=False):
    a = Asm()
    BM = 16 * W * MT
    n_mtiles = S // BM
    NWG = n_mtiles * n_ntiles
    if map2d:
        NWG = 256
    mper = n_mtiles // 8
    NCH = KS // CH
    RPC = CH * NT // W
    assert CH * NT % W == 0
    BSLOT = NT * 1024 * CH
    ASLOT = (W * MT * 2048) if a_lds else 0
    if a_lds:
        assert CH == 2
    ring = min(ring, NCH)
    RA = min(NCH, LA + 2)
    A_LDS0 = ring * BSLOT
    lds_bytes = ring * (BSLOT + ASLOT)
    K = KS * 32
    PER = {4: 4, 5: 1, 6: 2, 8: 8}[NT]

    def swz(dst, ri):
        if PER == 8:
            a(f"v_mov_b32 v{dst}, v{ri}")
        elif PER == 4:
            a(f"v_lshrrev_b32 v{dst}, 1, v{ri}")
        elif PER == 2:
            a(f"v_lshrrev_b32 v{dst}, 2, v{ri}")

    a(f"s_cmp_ge_u32 s2, {NWG}")
    a(f"s_cbranch_scc1 {name}_end")
    st = [0]
    stamp(a, st)
    load_kernargs(a)
    a("s_and_b32 s3, s2, 7")
    a("s_lshr_b32 s4, s2, 3")
    sh = mper.bit_length() - 1
    assert 1 << sh == mper
    if map2d:
        a("s_and_b32 s5, s3, 1")
        a("s_lshr_b32 s9, s3, 1")
        a("s_lshl_b32 s3, s5, 3")
        a("s_and_b32 s5, s4, 7")
        a("s_add_u32 s3, s3, s5")
        a("s_lshr_b32 s4, s4, 3")
        a("s_lshl_b32 s9, s9, 2")
        a("s_add_u32 s4, s4, s9")
        a(f"s_cmp_ge_u32 s4, {n_ntiles}")
        a(f"s_cbranch_scc1 {name}_end")
    else:
        a(f"s_lshl_b32 s3, s3, {sh}")
        a(f"s_and_b32 s5, s4, {mper - 1}")
        a("s_add_u32 s3, s3, s5")
        a(f"s_lshr_b32 s4, s4, {sh}")
    a(f"s_mul_i32 s5, s3, {BM}")
    a(f"s_mul_i32 s6, s4, {16 * NT}")
    vw, vl, vr16, vg = a.v(), a.v(), a.v(), a.v()
    a(f"v_lshrrev_b32 v{vw}, 6, v0")
    a(f"v_and_b32 v{vl}, 63, v0")
    a(f"v_and_b32 v{vr16}, 15, v0")
    a(f"v_bfe_u32 v{vg}, v0, 4, 2")
    a("s_nop 0")
    a(f"v_readfirstlane_b32 s7, v{vw}")
    a("s_lshl_b32 s8, s7, 10")
    a("s_lshr_b32 s9, s5, 4")
    a(f"s_mul_i32 s64, s7, {MT}")
    a("s_add_u32 s64, s64, s9")
    vrow = []
    for mt in range(MT):
        if mt:
            a(f"s_add_u32 s{64 + mt}, s64, {mt}")
        vrow.append(a.v())
        a(f"v_lshl_add_u32 v{vrow[mt]}, s{64 + mt}, 4, v{vr16}")
    t0 = a.v(4, 4)
    t1, t2, t3 = t0 + 1, t0 + 2, t0 + 3
    SA, SB = 40, 44
    if a_lds:
        vaoff = [a.v()]
        a(f"v_bfe_u32 v{t0}, v0, 3, 3")
        a(f"v_and_b32 v{t1}, 7, v0")
        a(f"v_xor_b32 v{t1}, v{t1}, v{t0}")
        a(f"v_lshl_add_u32 v{t0}, s64, 4, v{t0}")
        a(f"v_mul_u32_u24 v{t0}, {K * 2}, v{t0}")
        a(f"v_lshl_add_u32 v{vaoff[0]}, v{t1}, 4, v{t0}")
        nab = (lds_bytes + 65535) // 65536
        vard = [[a.v() for _ in range(nab)] for _ in range(2)]
        a(f"v_and_b32 v{t0}, 7, v{vr16}")
        a(f"v_lshrrev_b32 v{t1}, 3, v{vr16}")
        a(f"v_lshlrev_b32 v{t1}, 10, v{t1}")
        a(f"v_lshl_add_u32 v{t1}, v{t0}, 7, v{t1}")
        a(f"v_mul_u32_u24 v{t3}, {2048 * MT}, v{vw}")
        a(f"v_add_u32 v{t1}, v{t1}, v{t3}")
        for sl in range(2):
            a(f"v_or_b32 v{t2}, {4 * sl}, v{vg}")
            a(f"v_xor_b32 v{t2}, v{t2}, v{t0}")
            a(f"v_lshl_add_u32 v{vard[sl][0]}, v{t2}, 4, v{t1}")
            for i in range(1, nab):
                a(f"v_add_u32 v{vard[sl][i]}, {65536 * i}, v{vard[sl][0]}")
        a(f"s_mul_i32 s15, s7, {2048 * MT}")
    elif not shift:
        vaoff = [a.v() for _ in range(MT)]
        a(f"v_lshlrev_b32 v{t0}, 4, v{vl}")
        for mt in range(MT):
            a(f"s_mul_i32 s9, s{64 + mt}, {KS * 1024}")
            a(f"v_add_u32 v{vaoff[mt]}, s9, v{t0}")
    else:
        vaoff = [[a.v() for _ in range(4)] for _ in range(MT)]
        a("s_mov_b32 s9, 0x80000000")
        for mt in range(MT):
            for i, d in enumerate((-1, 1, -2, 2)):
                a(f"v_add_u32 v{t0}, {d}, v{vrow[mt]}")
                a(f"v_lshrrev_b32 v{t2}, 4, v{t0}")
                a(f"v_mul_u32_u24 v{t2}, {KS * 1024}, v{t2}")
                a(f"v_and_b32 v{t3}, 15, v{t0}")
                a(f"v_lshl_add_u32 v{t3}, v{vg}, 4, v{t3}")
                a(f"v_lshl_add_u32 v{vaoff[mt][i]}, v{t3}, 4, v{t2}")
                a(f"v_cmp_gt_u32 vcc, {S}, v{t0}")
                a(f"v_mov_b32 v{t1}, s9")
                a("s_nop 1")
                a(f"v_cndmask_b32 v{vaoff[mt][i]}, v{t1}, v{vaoff[mt][i]}, vcc")
    vdma = [a.v() for _ in range(RPC)]
    for p in range(RPC):
        Fv, sl, rr = t0, t1, t2
        d = vdma[p]
        a(f"v_add_u32 v{Fv}, {p * 64 * W}, v0")
        udiv(a, sl, Fv, 2 * NT, 64 * NT * CH)
        a(f"v_mul_u32_u24 v{rr}, {2 * NT}, v{sl}")
        a(f"v_sub_u32 v{rr}, v{Fv}, v{rr}")
        a(f"v_and_b32 v{d}, 0xfffffff3, v{sl}")
        a(f"v_bfe_u32 v{t0}, v{sl}, 2, 1")
        a(f"v_lshl_add_u32 v{d}, v{t0}, 3, v{d}")
        a(f"v_bfe_u32 v{t0}, v{sl}, 3, 1")
        a(f"v_lshl_add_u32 v{d}, v{t0}, 2, v{d}")
        a(f"v_mul_u32_u24 v{d}, {ldb}, v{d}")
        if PER > 1:
            a(f"v_and_b32 v{t0}, 7, v{sl}")
            swz(t0, t0)
            a(f"v_lshlrev_b32 v{t0}, 1, v{t0}")
            a(f"v_xor_b32 v{rr}, v{rr}, v{t0}")
        a(f"v_lshl_add_u32 v{d}, v{rr}, 4, v{d}")
        a(f"v_lshl_add_u32 v{d}, s6, 1, v{d}")
    nbase = (A_LDS0 + 65535) // 65536
    vb = [[a.v() for _ in range(nbase)] for _ in range(PER)]
    a(f"v_bfe_u32 v{t0}, v0, 2, 3")
    a(f"v_bfe_u32 v{t1}, v0, 5, 1")
    a(f"v_lshl_add_u32 v{t1}, v{t1}, 4, v{t0}")
    a(f"v_mul_u32_u24 v{t1}, {NT * 32}, v{t1}")
    a(f"v_and_b32 v{t2}, 3, v0")
    a(f"v_lshl_add_u32 v{t1}, v{t2}, 3, v{t1}")
    swz(t0, t0)
    for tp in range(PER):
        if PER > 1:
            a(f"v_xor_b32 v{t2}, {tp}, v{t0}")
            a(f"v_lshl_add_u32 v{vb[tp][0]}, v{t2}, 5, v{t1}")
        else:
            a(f"v_mov_b32 v{vb[0][0]}, v{t1}")
        for i in range(1, nbase):
            a(f"v_add_u32 v{vb[tp][i]}, {65536 * i}, v{vb[tp][0]}")
    if ln:
        NX = (NT + W - 1) // W
        vbx = [[a.v() for _ in range(nbase)] for _ in range(NX)]
        for x in range(NX):
            a(f"s_add_u32 s9, s7, {x * W}")
            a(f"s_min_u32 s9, s9, {NT - 1}")
            if PER > 1:
                a(f"v_xor_b32 v{t2}, s9, v{t0}")
            else:
                a(f"v_mov_b32 v{t2}, s9")
            a(f"v_lshl_add_u32 v{vbx[x][0]}, v{t2}, 5, v{t1}")
            for i in range(1, nbase):
                a(f"v_add_u32 v{vbx[x][i]}, {65536 * i}, v{vbx[x][0]}")
        vones = a.v(4, 4)
        for i in range(4):
            a(f"v_mov_b32 v{vones + i}, 0x3f803f80")
        vsum = [a.v() for _ in range(MT)]
        vsq = [a.v() for _ in range(MT)]
        for mt in range(MT):
            a(f"v_mov_b32 v{vsum[mt]}, 0")
            a(f"v_mov_b32 v{vsq[mt]}, 0")
        acs = [a.v(4, 4) for _ in range(NX)]
        if stats_src is None:
            accs = [a.v(4, 4) for _ in range(MT)]
            accq = [a.v(4, 4) for _ in range(MT)]
            for mt in range(MT):
                for i in range(4):
                    a(f"v_mov_b32 v{accs[mt] + i}, 0")
                    a(f"v_mov_b32 v{accq[mt] + i}, 0")
    acc = [[a.v(4, 4) for _ in range(NT)] for _ in range(MT)]
    if a_lds:
        areg = [[a.v(4, 4) for _ in range(MT)] for _ in range(4)]
    else:
        areg = [[[a.v(4, 4) for _ in range(MT)] for _ in range(CH)] for _ in range(RA)]
    a("s_waitcnt lgkmcnt(0)")
    stamp(a, st)
    aptr, aoff, asize = a_src
    srd(a, SA, aptr, aoff, asize)
    srd(a, SB, b_ptr, 0, b_size)
    pfl = []
    if pf is not None:
        PSTEP = W * 64 * 128
        vpd = a.v()
        vp7 = a.v()
        a(f"v_lshlrev_b32 v{vp7}, 7, v0")
        for (pptr, pbytes, pstart, plen) in pf:
            pper = (plen // 32 + 127) // 128 * 128
            npf = (pper + PSTEP - 1) // PSTEP
            for i in range(npf):
                lines = [f"s_mov_b32 s96, s{pptr}", f"s_and_b32 s97, s{pptr + 1}, 0xffff", f"s_mov_b32 s98, {min(pbytes, pstart + plen)}",
                         "s_mov_b32 s99, 0x00020000", "s_lshr_b32 s10, s2, 3", f"s_mul_i32 s10, s10, {pper}",
                         f"s_add_u32 s10, s10, {pstart + i * PSTEP}", f"buffer_load_dword v{vpd}, v{vp7}, s[96:99], s10 offen"]
                pfl.append((lines, 'p'))
    vm = []
    ctxs = [dict(a=a, NT=NT, vrow=vrow[mt], vg=vg, vr16=vr16, vl=vl, t=(t0, t1, t2, t3), acc=acc[mt], vm=vm,
                 name=name, stile=64 + mt, mt=mt) for mt in range(MT)]
    epis = [epi() for _ in range(MT)]
    pend = []

    def queue_chunk(c):
        slot = c % ring
        if a_lds:
            for i in range(2 * MT):
                pend.append(([f"s_mov_b32 s10, {i * 8 * K * 2 + c * 128}",
                              f"s_add_u32 m0, s15, {A_LDS0 + slot * ASLOT + i * 1024}",
                              "s_nop 0",
                              f"buffer_load_dwordx4 v{vaoff[0]}, s[{SA}:{SA + 3}], s10 offen lds"], c))
        else:
            for s in range(CH):
                ks = c * CH + s
                for mt in range(MT):
                    vo = vaoff[mt][ks // 5] if shift else vaoff[mt]
                    pend.append(([f"s_mov_b32 s10, {c * CH * 1024}",
                                  f"buffer_load_dwordx4 {vr(areg[c % RA][s][mt], 4)}, v{vo}, s[{SA}:{SA + 3}], s10 offen offset:{s * 1024}"], c))
        for p in range(RPC):
            pend.append(([f"s_mov_b32 s10, {c * CH * 32 * ldb}",
                          f"s_add_u32 m0, s8, {slot * BSLOT + p * W * 1024}",
                          "s_nop 0",
                          f"buffer_load_dwordx4 v{vdma[p]}, s[{SB}:{SB + 3}], s10 offen lds"], c))

    def emit_pending(n=1):
        for _ in range(n):
            if not pend:
                return
            lines, tag = pend.pop(0)
            for l in lines:
                a(l)
            vm.append(tag)

    if ring < NCH:
        assert LA <= ring - 2
    stamp(a, st)
    for c in range(min(LA, NCH)):
        queue_chunk(c)
        emit_pending(1000)
        if c == 0:
            for mt in range(MT):
                if stats_src is not None:
                    vst = a.v(4, 4)
                    srd(a, 60, P_WS, stats_src, S * 64)
                    a(f"v_lshlrev_b32 v{t0}, 6, v{vrow[mt]}")
                    a(f"v_lshl_add_u32 v{t0}, v{vg}, 4, v{t0}")
                    a(f"buffer_load_dwordx4 {vr(vst, 4)}, v{t0}, s[60:63], 0 offen")
                    vm.append('r')
                    ctxs[mt]['vst'] = vst
                epis[mt].pre(ctxs[mt])
    stamp(a, st)
    for mt in range(MT):
        for t in range(NT):
            for i in range(4):
                a(f"v_mov_b32 v{acc[mt][t] + i}, 0")
    if ln:
        for x in range(NX):
            for i in range(4):
                a(f"v_mov_b32 v{acs[x] + i}, 0")

    def wait_chunk(c):
        last = max(i for i, tg in enumerate(vm) if isinstance(tg, int) and tg <= c)
        n = min(63, len(vm) - 1 - last)
        a(f"s_waitcnt vmcnt({n})")

    units = []
    for ks in range(KS):
        for t in range(NT):
            units.append((ks, t))
        if ln:
            for x in range(NX):
                units.append((ks, ('x', x)))
    NB = PD + 2
    breg = [a.v(4, 4) for _ in range(NB)]
    nrd = []

    def issue_read(i):
        ks, t = units[i]
        c = ks // CH
        slot = c % ring
        n = 0
        if a_lds and t == 0:
            for mt in range(MT):
                o = A_LDS0 + slot * ASLOT + mt * 2048
                a(f"ds_read_b128 {vr(areg[ks % 4][mt], 4)}, v{vard[ks % 2][o // 65536]} offset:{o % 65536}")
                n += 1
        off = slot * BSLOT + (ks % CH) * NT * 1024
        if isinstance(t, tuple):
            base = vbx[t[1]]
        else:
            base = vb[t % PER]
            off += (t - t % PER) * 32
        r = breg[i % NB]
        for h in range(2):
            o = off + h * 8 * NT * 32
            a(f"ds_read_b64_tr_b16 {vr(r + 2 * h, 2)}, v{base[o // 65536]} offset:{o % 65536}")
            n += 1
        nrd.append(n)

    nread = 0

    def advance_reads(upto):
        nonlocal nread
        while nread < min(upto, len(units)):
            ks, t = units[nread]
            if t == 0 and ks % CH == 0:
                c = ks // CH
                emit_pending(1000)
                wait_chunk(c)
                a("s_barrier")
                if NCH <= 5:
                    stamp(a, st)
                if c + LA < NCH:
                    queue_chunk(c + LA)
                elif c + LA == NCH and pf is not None and not os.environ.get("PFEND"):
                    pend.extend(pfl)
            issue_read(nread)
            nread += 1

    for i, (ks, t) in enumerate(units):
        advance_reads(i + PD + 1)
        ahead = sum(nrd[i + 1:nread])
        assert ahead <= 15
        a(f"s_waitcnt lgkmcnt({ahead})")
        c = ks // CH
        b = breg[i % NB]
        if isinstance(t, tuple):
            x = t[1]
            a(f"v_mfma_f32_16x16x32_bf16 {vr(acs[x], 4)}, {vr(b, 4)}, {vr(vones, 4)}, {vr(acs[x], 4)}")
        else:
            for mt in range(MT):
                ar = areg[ks % 4][mt] if a_lds else areg[c % RA][ks % CH][mt]
                a(f"v_mfma_f32_16x16x32_bf16 {vr(acc[mt][t], 4)}, {vr(b, 4)}, {vr(ar, 4)}, {vr(acc[mt][t], 4)}")
            if ln and t < 2 * MT and stats_src is None:
                mt = t // 2
                ar = areg[ks % 4][mt] if a_lds else areg[c % RA][ks % CH][mt]
                if t % 2 == 0:
                    a(f"v_mfma_f32_16x16x32_bf16 {vr(accs[mt], 4)}, {vr(vones, 4)}, {vr(ar, 4)}, {vr(accs[mt], 4)}")
                else:
                    a(f"v_mfma_f32_16x16x32_bf16 {vr(accq[mt], 4)}, {vr(ar, 4)}, {vr(ar, 4)}, {vr(accq[mt], 4)}")
        emit_pending(1)
    stamp(a, st)
    a("s_nop 7")
    a("s_nop 1")
    if ln:
        a("s_barrier")
        a(f"v_lshlrev_b32 v{t0}, 4, v{vg}")
        for x in range(NX):
            a(f"s_add_u32 s9, s7, {x * W}")
            a(f"s_min_u32 s9, s9, {NT - 1}")
            a("s_lshl_b32 s9, s9, 6")
            a(f"v_add_u32 v{t1}, s9, v{t0}")
            a(f"ds_write_b128 v{t1}, {vr(acs[x], 4)}")
        for mt in range(MT):
            if stats_src is not None:
                vst = ctxs[mt]['vst']
                a(f"v_add_f32 v{vsum[mt]}, v{vst}, v{vst + 2}")
                a(f"v_add_f32 v{vsq[mt]}, v{vst + 1}, v{vst + 3}")
                reduce_g(a, vsum[mt], t2)
                reduce_g(a, vsq[mt], t2)
            else:
                a(f"v_mov_b32 v{vsum[mt]}, v{accs[mt]}")
                a(f"v_and_b32 v{t2}, 3, v{vr16}")
                a(f"v_mov_b32 v{t3}, v{accq[mt]}")
                for i in range(1, 4):
                    a(f"v_cmp_eq_u32 vcc, {i}, v{t2}")
                    a("s_nop 1")
                    a(f"v_cndmask_b32 v{t3}, v{t3}, v{accq[mt] + i}, vcc")
                a(f"v_lshrrev_b32 v{t2}, 2, v{vr16}")
                a(f"v_lshl_add_u32 v{t2}, v{t2}, 4, v{vr16}")
                a(f"v_lshlrev_b32 v{t2}, 2, v{t2}")
                a(f"ds_bpermute_b32 v{vsq[mt]}, v{t2}, v{t3}")
        a("s_waitcnt lgkmcnt(0)")
        a("s_barrier")
        vcs = {}
        pool = list(breg)
        for x_ in areg:
            for y_ in x_:
                pool += (y_ if isinstance(y_, list) else [y_])
        for t in range(NT):
            vcs[t] = pool[t]
            a(f"ds_read_b128 {vr(vcs[t], 4)}, v{t0} offset:{t * 64}")

        def ln_stats(mean, var, mb, sqb):
            bf16r(a, mb, mean)
            bf16r(a, sqb, var)
            a(f"v_add_f32 v{sqb}, s9, v{sqb}")
            bf16r(a, sqb, sqb)
            a(f"v_sqrt_f32 v{sqb}, v{sqb}")
            a("s_nop 0")
            bf16r(a, sqb, sqb)

        vab = []
        for mt in range(MT):
            vmean, vvar, vmb, vsqb, va, vbb = vsum[mt], vsq[mt], a.v(), a.v(), a.v(), a.v()
            a(f"s_mov_b32 s9, {f32bits(1.0 / K):#x}")
            a(f"v_mul_f32 v{vmean}, s9, v{vmean}")
            a(f"v_mul_f32 v{vvar}, s9, v{vvar}")
            a(f"v_fma_f32 v{vvar}, -v{vmean}, v{vmean}, v{vvar}")
            a(f"v_max_f32 v{vvar}, 0, v{vvar}")
            a(f"s_mov_b32 s9, {f32bits(1e-5):#x}")
            ln_stats(vmean, vvar, vmb, vsqb)
            a(f"v_rcp_f32 v{va}, v{vsqb}")
            a("s_nop 0")
            a(f"v_mul_f32 v{vbb}, v{vmb}, v{va}")
            a(f"v_sub_f32 v{vbb}, 0, v{vbb}")
            if ln == 2:
                m2, s2 = a.v(), a.v()
                a(f"v_sub_f32 v{t2}, v{vmean}, v{vmb}")
                a(f"v_mul_f32 v{t2}, v{t2}, v{va}")
                a(f"v_mul_f32 v{t3}, v{vvar}, v{va}")
                a(f"v_mul_f32 v{t3}, v{t3}, v{va}")
                ln_stats(t2, t3, m2, s2)
                a(f"v_rcp_f32 v{s2}, v{s2}")
                a("s_nop 0")
                a(f"v_sub_f32 v{vbb}, v{vbb}, v{m2}")
                a(f"v_mul_f32 v{vbb}, v{vbb}, v{s2}")
                a(f"v_mul_f32 v{va}, v{va}, v{s2}")
            vab.append((va, vbb))
        a("s_waitcnt lgkmcnt(0)")
        for mt in range(MT):
            va, vbb = vab[mt]
            a(f"v_mov_b32 v{t0}, v{va}")
            a(f"v_mov_b32 v{t1}, v{va}")
            a(f"v_mov_b32 v{t2}, v{vbb}")
            a(f"v_mov_b32 v{t3}, v{vbb}")
            for t in range(NT):
                for i in (0, 2):
                    r = vr(acc[mt][t] + i, 2)
                    a(f"v_pk_mul_f32 {r}, {r}, {vr(t0, 2)}")
                    a(f"v_pk_fma_f32 {r}, {vr(vcs[t] + i, 2)}, {vr(t2, 2)}, {r}")
    for mt in range(MT):
        epis[mt].post(ctxs[mt])
    if pf is not None and os.environ.get("PFEND"):
        pass
    if STAMP:
        a("s_waitcnt vmcnt(0)")
    stamp(a, st)
    stamp_flush(a, st, name)
    a.label(f"{name}_end")
    a("s_endpgm")
    assert a.maxv <= 256, a.maxv
    return a, lds_bytes, NWG, 64 * W


class EpiQKV:
    def pre(self, c):
        a = c['a']
        srd(a, 48, P_WS, WS_Q, 3 * ACT_BYTES)
        self.vo = tiled_offset(c, 60)

    def post(self, c):
        a, NT, acc = c['a'], c['NT'], c['acc']
        for t in range(NT):
            a(f"v_cvt_pk_bf16_f32 v{acc[t]}, v{acc[t]}, v{acc[t] + 1}")
            a(f"v_cvt_pk_bf16_f32 v{acc[t] + 1}, v{acc[t] + 2}, v{acc[t] + 3}")
            a(f"buffer_store_dwordx2 {vr(acc[t], 2)}, v{self.vo}, s[48:51], 0 offen offset:{t * 512}")


def out_offset(c, ld):
    a = c['a']
    vo = a.v()
    a(f"v_mul_u32_u24 v{vo}, {ld}, v{c['vrow']}")
    a(f"v_lshl_add_u32 v{vo}, v{c['vg']}, 3, v{vo}")
    a(f"v_lshl_add_u32 v{vo}, s6, 1, v{vo}")
    return vo


def reduce_g(a, vv, tmp):
    a(f"v_mov_b32 v{tmp}, v{vv}")
    a("s_nop 1")
    a(f"v_permlane16_swap_b32 v{vv}, v{tmp}")
    a("s_nop 1")
    a(f"v_add_f32 v{vv}, v{vv}, v{tmp}")
    a(f"v_mov_b32 v{tmp}, v{vv}")
    a("s_nop 1")
    a(f"v_permlane32_swap_b32 v{vv}, v{tmp}")
    a("s_nop 1")
    a(f"v_add_f32 v{vv}, v{vv}, v{tmp}")


class StatOut:
    def __init__(self, c, off):
        a = c['a']
        self.c, self.off = c, off
        self.s = a.v(2, 2)
        a(f"v_mov_b32 v{self.s}, 0")
        a(f"v_mov_b32 v{self.s + 1}, 0")

    def add_packed(self, pk, t0, t1):
        a = self.c['a']
        unpack2(a, t0, t1, pk)
        a(f"v_add_f32 v{self.s}, v{self.s}, v{t0}")
        a(f"v_fmac_f32 v{self.s + 1}, v{t0}, v{t0}")
        a(f"v_add_f32 v{self.s}, v{self.s}, v{t1}")
        a(f"v_fmac_f32 v{self.s + 1}, v{t1}, v{t1}")

    def finish(self):
        c = self.c
        a = c['a']
        t0, t1, t2, t3 = c['t']
        reduce_g(a, self.s, t0)
        reduce_g(a, self.s + 1, t0)
        srd(a, 60, P_WS, self.off, S * 64)
        a(f"v_lshlrev_b32 v{t0}, 6, v{c['vrow']}")
        a("s_lshl_b32 s9, s4, 3")
        a(f"v_add_u32 v{t0}, s9, v{t0}")
        a("s_mov_b32 s9, 0x80000000")
        a(f"v_mov_b32 v{t1}, s9")
        a(f"v_cmp_eq_u32 vcc, 0, v{c['vg']}")
        a("s_nop 1")
        a(f"v_cndmask_b32 v{t0}, v{t1}, v{t0}, vcc")
        a(f"buffer_store_dwordx2 {vr(self.s, 2)}, v{t0}, s[60:63], 0 offen")


def tiled_offset(c, ks_out):
    a = c['a']
    t0 = c['t'][0]
    vo = a.v()
    a(f"s_mul_i32 s9, s{c['stile']}, {ks_out * 1024}")
    a("s_lshl_b32 s14, s6, 5")
    a("s_add_u32 s9, s9, s14")
    a(f"v_lshrrev_b32 v{t0}, 1, v{c['vg']}")
    a(f"v_lshl_add_u32 v{t0}, v{t0}, 4, v{c['vr16']}")
    a(f"v_lshlrev_b32 v{vo}, 4, v{t0}")
    a(f"v_and_b32 v{t0}, 1, v{c['vg']}")
    a(f"v_lshl_add_u32 v{vo}, v{t0}, 3, v{vo}")
    a(f"v_add_u32 v{vo}, s9, v{vo}")
    return vo


def unpack2(a, lo, hi, src):
    if lo == src:
        a(f"v_and_b32 v{hi}, 0xffff0000, v{src}")
        a(f"v_lshlrev_b32 v{lo}, 16, v{src}")
    else:
        a(f"v_lshlrev_b32 v{lo}, 16, v{src}")
        a(f"v_and_b32 v{hi}, 0xffff0000, v{src}")


class EpiResid:
    def __init__(self, res_ptr, res_off, out_ptr, out_off):
        self.r = (res_ptr, res_off)
        self.o = (out_ptr, out_off)

    def pre(self, c):
        a, NT = c['a'], c['NT']
        srd(a, 48, self.o[0], self.o[1], ACT_BYTES)
        srd(a, 52, self.r[0], self.r[1], ACT_BYTES)
        self.vr = out_offset(c, D * 2)
        self.vo = tiled_offset(c, 20)
        self.res = [a.v(2, 2) for _ in range(NT)]
        for t in range(NT):
            a(f"buffer_load_dwordx2 {vr(self.res[t], 2)}, v{self.vr}, s[52:55], 0 offen offset:{t * 32}")
            c['vm'].append('r')

    def post(self, c):
        a, NT, acc = c['a'], c['NT'], c['acc']
        t0, t1, t2, t3 = c['t']
        so = StatOut(c, WS_STH)
        for t in range(NT):
            for hh in range(2):
                a(f"v_cvt_pk_bf16_f32 v{t0}, v{acc[t] + 2 * hh}, v{acc[t] + 2 * hh + 1}")
                unpack2(a, t1, t2, t0)
                unpack2(a, t0, t3, self.res[t] + hh)
                a(f"v_add_f32 v{t1}, v{t1}, v{t0}")
                a(f"v_add_f32 v{t2}, v{t2}, v{t3}")
                a(f"v_cvt_pk_bf16_f32 v{acc[t] + hh}, v{t1}, v{t2}")
                so.add_packed(acc[t] + hh, t0, t1)
            a(f"buffer_store_dwordx2 {vr(acc[t], 2)}, v{self.vo}, s[48:51], 0 offen offset:{t * 512}")
        so.finish()


GC1 = -2.0 * math.log2(math.e) * math.sqrt(2.0 / math.pi)
GC3 = GC1 * 0.044715


class EpiGelu:
    def __init__(self, out_off, ld, size):
        self.out_off, self.ld, self.size = out_off, ld, size

    def pre(self, c):
        a = c['a']
        srd(a, 48, P_WS, self.out_off, self.size)
        self.vo = tiled_offset(c, self.ld // 64)
        self.vc1 = a.v(6, 2)
        for i, cv in enumerate((GC1, GC1, GC3, GC3, 1.0, 1.0)):
            a(f"v_mov_b32 v{self.vc1 + i}, {f32bits(cv):#x}")

    def post(self, c):
        a, NT, acc = c['a'], c['NT'], c['acc']
        tt = c['t']
        for t in range(NT):
            r = [acc[t] + i for i in range(4)]
            a(f"v_cvt_pk_bf16_f32 v{tt[0]}, v{r[0]}, v{r[1]}")
            a(f"v_cvt_pk_bf16_f32 v{tt[1]}, v{r[2]}, v{r[3]}")
            unpack2(a, r[0], r[1], tt[0])
            unpack2(a, r[2], r[3], tt[1])
            for i in (0, 2):
                a(f"v_pk_mul_f32 {vr(tt[i], 2)}, {vr(r[i], 2)}, {vr(r[i], 2)}")
            for i in (0, 2):
                a(f"v_pk_fma_f32 {vr(tt[i], 2)}, {vr(tt[i], 2)}, {vr(self.vc1 + 2, 2)}, {vr(self.vc1, 2)}")
            for i in (0, 2):
                a(f"v_pk_mul_f32 {vr(tt[i], 2)}, {vr(tt[i], 2)}, {vr(r[i], 2)}")
            for i in range(4):
                a(f"v_exp_f32 v{tt[i]}, v{tt[i]}")
            a("s_nop 0")
            for i in (0, 2):
                a(f"v_pk_add_f32 {vr(tt[i], 2)}, {vr(tt[i], 2)}, {vr(self.vc1 + 4, 2)}")
            for i in range(4):
                a(f"v_rcp_f32 v{tt[i]}, v{tt[i]}")
            a("s_nop 0")
            for i in (0, 2):
                a(f"v_pk_mul_f32 {vr(r[i], 2)}, {vr(r[i], 2)}, {vr(tt[i], 2)}")
            a(f"v_cvt_pk_bf16_f32 v{acc[t]}, v{acc[t]}, v{acc[t] + 1}")
            a(f"v_cvt_pk_bf16_f32 v{acc[t] + 1}, v{acc[t] + 2}, v{acc[t] + 3}")
            a(f"buffer_store_dwordx2 {vr(acc[t], 2)}, v{self.vo}, s[48:51], 0 offen offset:{t * 512}")


class EpiX1:
    def pre(self, c):
        a, NT = c['a'], c['NT']
        srd(a, 48, P_WS, WS_X1, ACT_BYTES)
        srd(a, 52, P_WS, WS_H, ACT_BYTES)
        self.vo = tiled_offset(c, 20)
        self.res = [a.v(2, 2) for _ in range(NT)]
        for t in range(NT):
            a(f"buffer_load_dwordx2 {vr(self.res[t], 2)}, v{self.vo}, s[52:55], 0 offen offset:{t * 512}")
            c['vm'].append('r')

    def post(self, c):
        a, NT, acc = c['a'], c['NT'], c['acc']
        t0, t1, t2, t3 = c['t']
        vst = c['vst']
        mb, rs = vst, vst + 1
        a(f"v_add_f32 v{vst}, v{vst}, v{vst + 2}")
        a(f"v_add_f32 v{vst + 1}, v{vst + 1}, v{vst + 3}")
        reduce_g(a, vst, t0)
        reduce_g(a, vst + 1, t0)
        a(f"s_mov_b32 s9, {f32bits(1.0 / D):#x}")
        a(f"v_mul_f32 v{vst}, s9, v{vst}")
        a(f"v_mul_f32 v{vst + 1}, s9, v{vst + 1}")
        a(f"v_fma_f32 v{vst + 1}, -v{vst}, v{vst}, v{vst + 1}")
        a(f"v_max_f32 v{vst + 1}, 0, v{vst + 1}")
        a(f"s_mov_b32 s9, {f32bits(1e-5):#x}")
        bf16r(a, mb, mb)
        bf16r(a, rs, rs)
        a(f"v_add_f32 v{rs}, s9, v{rs}")
        bf16r(a, rs, rs)
        a(f"v_sqrt_f32 v{rs}, v{rs}")
        a("s_nop 0")
        bf16r(a, rs, rs)
        a(f"v_rcp_f32 v{rs}, v{rs}")
        so = StatOut(c, WS_STX)
        for t in range(NT):
            for hh in range(2):
                unpack2(a, t0, t1, self.res[t] + hh)
                a(f"v_sub_f32 v{t0}, v{t0}, v{mb}")
                a(f"v_sub_f32 v{t1}, v{t1}, v{mb}")
                a(f"v_cvt_pk_bf16_f32 v{t0}, v{t0}, v{t1}")
                unpack2(a, t0, t1, t0)
                a(f"v_mul_f32 v{t0}, v{t0}, v{rs}")
                a(f"v_mul_f32 v{t1}, v{t1}, v{rs}")
                a(f"v_cvt_pk_bf16_f32 v{t0}, v{t0}, v{t1}")
                unpack2(a, t0, t1, t0)
                a(f"v_cvt_pk_bf16_f32 v{t2}, v{acc[t] + 2 * hh}, v{acc[t] + 2 * hh + 1}")
                unpack2(a, t2, t3, t2)
                a(f"v_add_f32 v{t0}, v{t0}, v{t2}")
                a(f"v_add_f32 v{t1}, v{t1}, v{t3}")
                a(f"v_cvt_pk_bf16_f32 v{acc[t] + hh}, v{t0}, v{t1}")
                so.add_packed(acc[t] + hh, t0, t1)
            a(f"buffer_store_dwordx2 {vr(acc[t], 2)}, v{self.vo}, s[48:51], 0 offen offset:{t * 512}")
        so.finish()


class EpiFinal:
    def pre(self, c):
        a, NT = c['a'], c['NT']
        srd(a, 48, P_OUT, 0, ACT_BYTES)
        srd(a, 52, P_WS, WS_H, ACT_BYTES)
        srd(a, 56, P_WS, WS_X1, ACT_BYTES)
        self.vo = out_offset(c, D * 2)
        self.vt = tiled_offset(c, 20)
        self.h = [a.v(2, 2) for _ in range(NT)]
        self.x = [a.v(2, 2) for _ in range(NT)]
        for t in range(NT):
            a(f"buffer_load_dwordx2 {vr(self.h[t], 2)}, v{self.vt}, s[52:55], 0 offen offset:{t * 512}")
            c['vm'].append('r')
            a(f"buffer_load_dwordx2 {vr(self.x[t], 2)}, v{self.vt}, s[56:59], 0 offen offset:{t * 512}")
            c['vm'].append('r')

    def post(self, c):
        a, NT, acc = c['a'], c['NT'], c['acc']
        t0, t1, t2, t3 = c['t']
        for t in range(NT):
            for hh in range(2):
                a(f"v_cvt_pk_bf16_f32 v{t0}, v{acc[t] + 2 * hh}, v{acc[t] + 2 * hh + 1}")
                unpack2(a, t0, t1, t0)
                unpack2(a, t2, t3, self.x[t] + hh)
                a(f"v_add_f32 v{t0}, v{t0}, v{t2}")
                a(f"v_add_f32 v{t1}, v{t1}, v{t3}")
                a(f"v_cvt_pk_bf16_f32 v{t0}, v{t0}, v{t1}")
                unpack2(a, t0, t1, t0)
                unpack2(a, t2, t3, self.h[t] + hh)
                a(f"v_add_f32 v{t0}, v{t0}, v{t2}")
                a(f"v_add_f32 v{t1}, v{t1}, v{t3}")
                a(f"v_cvt_pk_bf16_f32 v{acc[t] + hh}, v{t0}, v{t1}")
            a(f"buffer_store_dwordx2 {vr(acc[t], 2)}, v{self.vo}, s[48:51], 0 offen offset:{t * 32}")


def gen_attn(name):
    a = Asm()
    W = 8
    PK = 8192
    PV = 8192 + 128
    L_K = 0
    L_BIAS = 3 * PK
    L_V = 4 * PK
    L_ONE = L_V + 3 * PV
    lds_bytes = L_ONE + 64
    a("s_cmp_ge_u32 s2, 256")
    a(f"s_cbranch_scc1 {name}_end")
    st = [0]
    stamp(a, st)
    load_kernargs(a)
    a("s_and_b32 s4, s2, 7")
    a("s_lshr_b32 s3, s2, 3")
    a("s_lshl_b32 s4, s4, 2")
    a("s_and_b32 s5, s3, 3")
    a("s_add_u32 s4, s4, s5")
    a("s_lshr_b32 s3, s3, 2")
    a("s_lshl_b32 s5, s3, 8")
    vw, vl, vr16, vg = a.v(), a.v(), a.v(), a.v()
    t0, t1, t2, t3 = a.v(), a.v(), a.v(), a.v()
    a(f"v_lshrrev_b32 v{vw}, 6, v0")
    a(f"v_and_b32 v{vl}, 63, v0")
    a(f"v_and_b32 v{vr16}, 15, v0")
    a(f"v_bfe_u32 v{vg}, v0, 4, 2")
    a("s_nop 0")
    a(f"v_readfirstlane_b32 s7, v{vw}")
    a("s_lshl_b32 s8, s7, 10")
    a("s_mul_i32 s6, s4, 20")
    a("s_lshr_b32 s6, s6, 3")
    a("s_lshl_b32 s6, s6, 8")
    a("s_and_b32 s66, s4, 1")
    a("s_sub_u32 s9, s5, 256")
    a("s_mov_b32 s12, 0x80000000")
    a(f"v_add_u32 v{t1}, s9, v0")
    a(f"v_ashrrev_i32 v{t2}, 4, v{t1}")
    a(f"v_mul_i32_i24 v{t2}, 61440, v{t2}")
    a(f"v_lshl_add_u32 v{t2}, v{vr16}, 4, v{t2}")
    a(f"v_cmp_gt_i32 vcc, 0, v{t1}")
    a(f"v_mov_b32 v{t3}, s12")
    a("s_nop 1")
    a(f"v_cndmask_b32 v{t2}, v{t2}, v{t3}, vcc")
    a("s_waitcnt lgkmcnt(0)")
    srd(a, 40, P_WS, WS_Q, 3 * ACT_BYTES)
    srd(a, 52, P_WS, WS_O, ACT_BYTES)
    a("s_cmp_ge_u32 s2, 32")
    a(f"s_cbranch_scc1 {name}_nz")
    srd(a, 56, P_WS, WS_CNT, 32 * 256)
    a("s_lshl_b32 s10, s2, 8")
    a(f"v_mov_b32 v{t0}, 0")
    a(f"buffer_store_dword v{t0}, v{t0}, s[56:59], s10 offen")
    a.label(f"{name}_nz")
    for sec, base, pitch in ((1, L_K, PK), (2, L_V, PV)):
        for g in range(3):
            a(f"s_add_u32 s10, s6, {sec * 80 * 256 + g * 256}")
            a(f"s_add_u32 m0, s8, {base + g * pitch}")
            a("s_nop 0")
            a(f"buffer_load_dwordx4 v{t2}, s[40:43], s10 offen lds")
    vz = a.v(4, 4)
    a(f"v_mov_b32 v{vz}, 0")
    a(f"v_mov_b32 v{t3}, 0xf149")
    a(f"v_cndmask_b32 v{vz}, v{vz}, v{t3}, vcc")
    a(f"v_mov_b32 v{vz + 1}, 0")
    a(f"v_mov_b32 v{vz + 2}, 0")
    a(f"v_mov_b32 v{vz + 3}, 0")
    a(f"v_lshlrev_b32 v{t0}, 4, v0")
    a(f"ds_write_b128 v{t0}, {vr(vz, 4)} offset:{L_BIAS}")
    a(f"v_mov_b32 v{vz}, 0x3f80")
    a(f"v_mov_b32 v{t0}, {L_ONE}")
    a(f"ds_write_b128 v{t0}, {vr(vz, 4)}")
    vq = [a.v(4, 4) for _ in range(2)]
    vtok = a.v()
    a(f"v_lshl_add_u32 v{vtok}, v{vw}, 5, v{vr16}")
    a(f"v_add_u32 v{vtok}, s5, v{vtok}")
    a(f"v_lshrrev_b32 v{t0}, 4, v{vtok}")
    a(f"v_mul_u32_u24 v{t0}, 61440, v{t0}")
    a(f"v_lshl_add_u32 v{t0}, v{vr16}, 4, v{t0}")
    a(f"v_lshl_add_u32 v{t0}, v{vg}, 8, v{t0}")
    a(f"v_mov_b32 v{t3}, s12")
    a(f"v_cmp_gt_u32 vcc, 3, v{vg}")
    a("s_nop 1")
    a(f"v_cndmask_b32 v{t1}, v{t3}, v{t0}, vcc")
    for qt in range(2):
        a(f"s_add_u32 s10, s6, {qt * 61440}")
        a(f"buffer_load_dwordx4 {vr(vq[qt], 4)}, v{t1}, s[40:43], s10 offen")
    mfirst = a.v(4, 4)
    mlast = a.v(4, 4)
    a(f"v_mov_b32 v{t3}, 0xf149f2ca")
    a(f"v_lshlrev_b32 v{t0}, 2, v{vg}")
    for r in range(4):
        a(f"v_add_u32 v{t1}, {r}, v{t0}")
        a(f"v_cmp_gt_u32 vcc, v{t1}, v{vr16}")
        a("s_nop 1")
        a(f"v_cndmask_b32 v{mfirst + r}, v{t3}, 0, vcc")
        a(f"v_cndmask_b32 v{mlast + r}, 0, v{t3}, vcc")
    vka = a.v()
    a(f"v_lshlrev_b32 v{t0}, 4, v{vr16}")
    a(f"v_lshl_add_u32 v{t0}, v{vw}, 9, v{t0}")
    a(f"v_mul_u32_u24 v{t1}, {PK}, v{vg}")
    a(f"v_add_u32 v{vka}, v{t0}, v{t1}")
    vva = a.v()
    vvb = a.v()
    vvs = a.v()
    a(f"v_bfe_u32 v{t0}, v0, 2, 2")
    a(f"v_lshl_add_u32 v{t0}, v{vg}, 2, v{t0}")
    a(f"v_lshl_add_u32 v{t0}, v{vw}, 5, v{t0}")
    a(f"v_lshlrev_b32 v{t0}, 4, v{t0}")
    a(f"v_add_u32 v{t0}, {L_V}, v{t0}")
    a(f"v_and_b32 v{t1}, 3, v0")
    a(f"v_add_u32 v{t2}, s66, v{t1}")
    a(f"v_lshrrev_b32 v{t3}, 1, v{t2}")
    a(f"v_mul_u32_u24 v{t3}, {PV}, v{t3}")
    a(f"v_and_b32 v{t2}, 1, v{t2}")
    a(f"v_lshl_add_u32 v{t3}, v{t2}, 3, v{t3}")
    a(f"v_add_u32 v{vva}, v{t0}, v{t3}")
    a("s_lshl_b32 s67, s66, 3")
    a(f"s_add_u32 s67, s67, {2 * PV}")
    a(f"v_add_u32 v{vvb}, s67, v{t0}")
    a(f"v_cmp_eq_u32 vcc, 1, v{t1}")
    a(f"v_mov_b32 v{t3}, {L_ONE}")
    a(f"v_mov_b32 v{vvs}, 1")
    a(f"v_cndmask_b32 v{vvb}, v{vvb}, v{t3}, vcc")
    a(f"v_cndmask_b32 v{vvs}, v{vvs}, 0, vcc")
    CS = (DH ** -0.5) * math.log2(math.e)
    a(f"s_mov_b32 s13, {f32bits(CS):#x}")
    stamp(a, st)
    a("s_waitcnt vmcnt(0) lgkmcnt(0)")
    stamp(a, st)
    a(f"v_cmp_eq_u32 vcc, 3, v{vg}")
    a(f"v_mov_b32 v{t3}, 0x3f80")
    a("s_nop 0")
    for qt in range(2):
        a(f"v_cndmask_b32 v{vq[qt]}, v{vq[qt]}, v{t3}, vcc")
    a("s_lshl_b32 s10, s66, 1")
    a("s_sub_u32 s10, 2, s10")
    a(f"v_cmp_eq_u32 vcc, s10, v{vg}")
    a("s_cmp_eq_u32 s66, 0")
    a(f"s_cbranch_scc1 {name}_even")
    for qt in range(2):
        a(f"v_cndmask_b32 v{vq[qt]}, v{vq[qt]}, 0, vcc")
        a(f"v_cndmask_b32 v{vq[qt] + 1}, v{vq[qt] + 1}, 0, vcc")
    a(f"s_branch {name}_qdone")
    a.label(f"{name}_even")
    for qt in range(2):
        a(f"v_cndmask_b32 v{vq[qt] + 2}, v{vq[qt] + 2}, 0, vcc")
        a(f"v_cndmask_b32 v{vq[qt] + 3}, v{vq[qt] + 3}, 0, vcc")
    a.label(f"{name}_qdone")
    a("s_barrier")
    srd(a, 96, P_W1, 0, 819200)
    vpd = a.v(4, 4)
    a("s_lshr_b32 s15, s2, 3")
    a("s_mul_i32 s15, s15, 25600")
    a(f"v_lshlrev_b32 v{t0}, 6, v0")
    a(f"v_add_u32 v{t0}, s15, v{t0}")
    a(f"buffer_load_dword v{vpd}, v{t0}, s[96:99], 0 offen")
    srd(a, 92, P_W2, 0, 819200)
    a(f"buffer_load_dword v{vpd + 1}, v{t0}, s[92:95], 0 offen")
    sreg = [a.v(4, 4) for _ in range(18)]
    kf = [a.v(4, 4) for _ in range(4)]
    vf = [a.v(4, 4) for _ in range(4)]
    oacc = [a.v(4, 4) for _ in range(2)]
    preg = [a.v(4, 4) for _ in range(9)]
    vtmp = a.v()
    vadr = a.v()
    vm_, vmc = a.v(), a.v()
    for qt in range(2):
        def kread(i):
            a(f"ds_read_b128 {vr(kf[i % 4], 4)}, v{vka} offset:{(qt + i) * 256}")
        for i in range(3):
            kread(i)
        for i in range(17):
            if i + 3 < 17:
                kread(i + 3)
            ahead = min(3, 16 - i)
            a(f"s_waitcnt lgkmcnt({ahead})")
            cop = vr(mfirst, 4) if i == 0 else (vr(mlast, 4) if i == 16 else "0")
            a(f"v_mfma_f32_16x16x32_bf16 {vr(sreg[i], 4)}, {vr(kf[i % 4], 4)}, {vr(vq[qt], 4)}, {cop}")
        a("s_nop 7")
        a("s_nop 1")
        stamp(a, st)
        vals = [sreg[i] + r for i in range(17) for r in range(4)]
        a(f"v_max3_f32 v{vm_}, v{vals[0]}, v{vals[1]}, v{vals[2]}")
        j = 3
        while j + 1 < len(vals):
            a(f"v_max3_f32 v{vm_}, v{vm_}, v{vals[j]}, v{vals[j + 1]}")
            j += 2
        if j < len(vals):
            a(f"v_max_f32 v{vm_}, v{vm_}, v{vals[j]}")
        a(f"v_mov_b32 v{vtmp}, v{vm_}")
        a("s_nop 1")
        a(f"v_permlane16_swap_b32 v{vm_}, v{vtmp}")
        a("s_nop 1")
        a(f"v_max_f32 v{vm_}, v{vm_}, v{vtmp}")
        a(f"v_mov_b32 v{vtmp}, v{vm_}")
        a("s_nop 1")
        a(f"v_permlane32_swap_b32 v{vm_}, v{vtmp}")
        a("s_nop 1")
        a(f"v_max_f32 v{vm_}, v{vm_}, v{vtmp}")
        a(f"v_mul_f32 v{vmc}, s13, v{vm_}")
        for v in vals:
            a(f"v_fma_f32 v{v}, v{v}, s13, -v{vmc}")
        for v in vals:
            a(f"v_exp_f32 v{v}, v{v}")
        a("s_nop 0")
        for p in range(9):
            ta, tb = 2 * p, 2 * p + 1
            a(f"v_cvt_pk_bf16_f32 v{preg[p]}, v{sreg[ta]}, v{sreg[ta] + 1}")
            a(f"v_cvt_pk_bf16_f32 v{preg[p] + 1}, v{sreg[ta] + 2}, v{sreg[ta] + 3}")
            if tb < 17:
                a(f"v_cvt_pk_bf16_f32 v{preg[p] + 2}, v{sreg[tb]}, v{sreg[tb] + 1}")
                a(f"v_cvt_pk_bf16_f32 v{preg[p] + 3}, v{sreg[tb] + 2}, v{sreg[tb] + 3}")
            else:
                a(f"v_mov_b32 v{preg[p] + 2}, 0")
                a(f"v_mov_b32 v{preg[p] + 3}, 0")
        def vread(p):
            k0 = 16 * (qt + 2 * p)
            k1 = k0 + 16 if 2 * p + 1 < 17 else k0
            fa, fb = vf[(2 * p) % 4], vf[(2 * p + 1) % 4]
            a(f"ds_read_b64_tr_b16 {vr(fa, 2)}, v{vva} offset:{k0 * 16}")
            a(f"ds_read_b64_tr_b16 {vr(fa + 2, 2)}, v{vva} offset:{k1 * 16}")
            a(f"v_mad_u32_u24 v{vadr}, v{vvs}, {k0 * 16 // 16}, 0")
            a.lines.pop()
            a(f"v_mul_u32_u24 v{vadr}, {k0 * 16}, v{vvs}")
            a(f"v_add_u32 v{vadr}, v{vadr}, v{vvb}")
            a(f"ds_read_b64_tr_b16 {vr(fb, 2)}, v{vadr}")
            a(f"v_mul_u32_u24 v{vtmp}, {k1 * 16}, v{vvs}")
            a(f"v_add_u32 v{vtmp}, v{vtmp}, v{vvb}")
            a(f"ds_read_b64_tr_b16 {vr(fb + 2, 2)}, v{vtmp}")
        stamp(a, st)
        vread(0)
        for p in range(9):
            if p + 1 < 9:
                vread(p + 1)
                a("s_waitcnt lgkmcnt(4)")
            else:
                a("s_waitcnt lgkmcnt(0)")
            fa, fb = vf[(2 * p) % 4], vf[(2 * p + 1) % 4]
            c0 = "0" if p == 0 else vr(oacc[0], 4)
            c1 = "0" if p == 0 else vr(oacc[1], 4)
            a(f"v_mfma_f32_16x16x32_bf16 {vr(oacc[0], 4)}, {vr(fa, 4)}, {vr(preg[p], 4)}, {c0}")
            a(f"v_mfma_f32_16x16x32_bf16 {vr(oacc[1], 4)}, {vr(fb, 4)}, {vr(preg[p], 4)}, {c1}")
        a("s_nop 7")
        a("s_nop 1")
        a(f"v_lshlrev_b32 v{vtmp}, 2, v{vr16}")
        a(f"v_add_u32 v{vtmp}, 64, v{vtmp}")
        a(f"ds_bpermute_b32 v{vm_}, v{vtmp}, v{oacc[1]}")
        a("s_waitcnt lgkmcnt(0)")
        a(f"v_rcp_f32 v{vm_}, v{vm_}")
        a("s_nop 0")
        for r in range(4):
            a(f"v_mul_f32 v{oacc[0] + r}, v{oacc[0] + r}, v{vm_}")
            a(f"v_mul_f32 v{oacc[1] + r}, v{oacc[1] + r}, v{vm_}")
        a(f"v_cvt_pk_bf16_f32 v{oacc[0]}, v{oacc[0]}, v{oacc[0] + 1}")
        a(f"v_cvt_pk_bf16_f32 v{oacc[0] + 1}, v{oacc[0] + 2}, v{oacc[0] + 3}")
        a(f"v_cvt_pk_bf16_f32 v{oacc[1]}, v{oacc[1]}, v{oacc[1] + 1}")
        a(f"v_cvt_pk_bf16_f32 v{oacc[1] + 1}, v{oacc[1] + 2}, v{oacc[1] + 3}")
        a(f"v_add_u32 v{vtmp}, {16 * qt}, v{vtok}")
        a(f"v_lshrrev_b32 v{vtmp}, 4, v{vtmp}")
        a(f"v_mul_u32_u24 v{vtmp}, 20480, v{vtmp}")
        a(f"v_lshl_add_u32 v{vtmp}, v{vr16}, 4, v{vtmp}")
        a("s_mul_i32 s14, s4, 20")
        for which in range(2):
            if which == 0:
                a(f"v_lshl_add_u32 v{vadr}, v{vg}, 2, s14")
            else:
                a(f"v_mov_b32 v{vadr}, s14")
                a(f"v_add_u32 v{vadr}, 16, v{vadr}")
            a(f"v_lshrrev_b32 v{vm_}, 3, v{vadr}")
            a(f"v_and_b32 v{vadr}, 7, v{vadr}")
            a(f"v_lshlrev_b32 v{vadr}, 1, v{vadr}")
            a(f"v_lshl_add_u32 v{vadr}, v{vm_}, 8, v{vadr}")
            a(f"v_add_u32 v{vadr}, v{vadr}, v{vtmp}")
            if which == 1:
                a(f"v_mov_b32 v{vm_}, s12")
                a(f"v_cmp_eq_u32 vcc, 0, v{vg}")
                a("s_nop 1")
                a(f"v_cndmask_b32 v{vadr}, v{vm_}, v{vadr}, vcc")
            a(f"buffer_store_dwordx2 {vr(oacc[which], 2)}, v{vadr}, s[52:55], 0 offen")
        stamp(a, st)
    if STAMP:
        a("s_waitcnt vmcnt(0)")
    stamp(a, st)
    stamp_flush(a, st, name)
    a.label(f"{name}_end")
    a("s_endpgm")
    return a, lds_bytes, 256, 512


def build():
    cfg = os.environ.get("CFG", "A")
    ks = []

    def add(name, **kw):
        ks.append((name,) + gen_gemm(name, **kw))

    if os.environ.get("WARM"):
        w = Asm()
        w("s_endpgm")
        ks.append(("k0_warm_kernel", w, 0, 256, 64))
    add("k1_qkv_kernel", NT=8, W=4, MT=2, KS=20, ldb=3840, n_ntiles=15, ring=5, CH=2, a_lds=True, LA=3,
        a_src=(P_X, 0, ACT_BYTES), b_ptr=P_WQKV, b_size=640 * 1920 * 2, ln=1, shift=False, epi=EpiQKV, pf=[(P_WO, 819200, 0, 819200)], map2d=True)
    ks.append(("k2_attn_kernel",) + gen_attn("k2_attn_kernel"))
    small = dict(NT=5, W=4, MT=1, n_ntiles=8) if cfg == "A" else dict(NT=4, W=4, MT=2, n_ntiles=10)
    add("k3_wo_kernel", KS=20, ldb=1280, ring=5, a_src=(P_WS, WS_O, ACT_BYTES), b_ptr=P_WO, b_size=640 * 640 * 2, ln=0,
        shift=False, epi=lambda: EpiResid(P_X, 0, P_WS, WS_H), pf=[(P_W3, 1966080, 0, 983040)], **small)
    add("k4_w1_kernel", KS=20, ldb=1280, ring=5, a_src=(P_WS, WS_H, ACT_BYTES), b_ptr=P_W1, b_size=640 * 640 * 2, ln=2,
        shift=False, epi=lambda: EpiGelu(WS_G, 1280, ACT_BYTES), stats_src=WS_STH, pf=[(P_W3, 1966080, 983040, 983040)], **small)
    add("k5_w2_kernel", KS=20, ldb=1280, ring=5, a_src=(P_WS, WS_G, ACT_BYTES), b_ptr=P_W2, b_size=640 * 640 * 2, ln=0,
        shift=True, epi=EpiX1, stats_src=WS_STH, pf=[(P_W4, 1966080, 0, 983040)], **small)
    add("k6_w3_kernel", NT=6, W=4, MT=2, KS=20, ldb=3072, n_ntiles=16, ring=10, a_src=(P_WS, WS_X1, ACT_BYTES), b_ptr=P_W3,
        b_size=640 * 1536 * 2, ln=1, shift=False, epi=lambda: EpiGelu(WS_T, 3072, S * F * 2), stats_src=WS_STX, CH=2, LA=4, pf=[(P_W4, 1966080, 983040, 983040)])
    add("k7_w4_kernel", KS=48, ldb=1280, ring=7, a_src=(P_WS, WS_T, S * F * 2), b_ptr=P_W4, b_size=1536 * 640 * 2, ln=0,
        shift=False, epi=EpiFinal, LA=3, **small)
    ref = open("sequential_preLN__sliding_block__mixer_s_mlp__prompt.s.ref").read()
    head = []
    for line in ref.splitlines():
        if not line.startswith(";"):
            break
        if "@launch" in line or "Override launch" in line or "grid=ceil" in line:
            continue
        head.append(line)
    out = "\n".join(head) + "\n"
    for name, a, lds, nwg, thr in ks:
        out += f"; @launch kernel={name} grid=({nwg},1,1) block=({thr},1,1) lds={lds}\n"
    out += '.amdgcn_target "amdgcn-amd-amdhsa--gfx950"\n.text\n'
    for name, a, lds, nwg, thr in ks:
        out += kernel_header(name) + a.text()
    out += '.section .rodata,"a"\n'
    for name, a, lds, nwg, thr in ks:
        out += ".p2align 6\n" + kernel_desc(name, a.maxv)
        print(name, "vgprs", a.maxv, "lds", lds, "wgs", nwg, "instrs", len(a.lines), file=sys.stderr)
    return out


if __name__ == "__main__":
    if len(sys.argv) > 2 and sys.argv[2] == "stamp":
        STAMP = True
    path = sys.argv[1] if len(sys.argv) > 1 else "sequential_preLN__sliding_block__mixer_s_mlp__prompt.s"
    open(path, "w").write(build())
```

```python
import sys, os
import gen
from gen import *

SC = " sc1"
DET = int(os.environ.get("DET", "2"))
CS_OFF = 147456
SCNT = 56


class Stat2(StatOut):
    def finish(self):
        c = self.c
        a = c['a']
        t0, t1, t2, t3 = c['t']
        reduce_g(a, self.s, t0)
        reduce_g(a, self.s + 1, t0)
        srd(a, 60, P_WS, self.off, S * 64)
        a(f"v_lshlrev_b32 v{t0}, 6, v{c['vrow']}")
        a("s_lshl_b32 s9, s4, 3")
        a(f"v_add_u32 v{t0}, s9, v{t0}")
        a("s_mov_b32 s9, 0x80000000")
        a(f"v_mov_b32 v{t1}, s9")
        a(f"v_cmp_eq_u32 vcc, 0, v{c['vg']}")
        a("s_nop 1")
        a(f"v_cndmask_b32 v{t0}, v{t1}, v{t0}, vcc")
        a(f"buffer_store_dwordx2 {vr(self.s, 2)}, v{t0}, s[60:63], 0 offen{SC}")
        c['vm'].append('s')


class FResid:
    def pre(self, c):
        a, NT = c['a'], c['NT']
        srd(a, 48, P_WS, WS_H, ACT_BYTES)
        srd(a, 52, P_X, 0, ACT_BYTES)
        self.vr = out_offset(c, D * 2)
        self.vo = tiled_offset(c, 20)
        self.res = [a.v(2, 2) for _ in range(NT)]
        for t in range(NT):
            a(f"buffer_load_dwordx2 {vr(self.res[t], 2)}, v{self.vr}, s[52:55], 0 offen offset:{t * 32}")
            c['vm'].append('r')

    def post(self, c):
        a, NT, acc = c['a'], c['NT'], c['acc']
        t0, t1, t2, t3 = c['t']
        so = Stat2(c, WS_STH)
        h = c['hreg']
        for t in range(NT):
            for hh in range(2):
                a(f"v_cvt_pk_bf16_f32 v{t0}, v{acc[t] + 2 * hh}, v{acc[t] + 2 * hh + 1}")
                unpack2(a, t1, t2, t0)
                unpack2(a, t0, t3, self.res[t] + hh)
                a(f"v_add_f32 v{t1}, v{t1}, v{t0}")
                a(f"v_add_f32 v{t2}, v{t2}, v{t3}")
                a(f"v_cvt_pk_bf16_f32 v{h[t] + hh}, v{t1}, v{t2}")
                so.add_packed(h[t] + hh, t0, t1)
            a(f"buffer_store_dwordx2 {vr(h[t], 2)}, v{self.vo}, s[48:51], 0 offen offset:{t * 512}{SC}")
            c['vm'].append('s')
        so.finish()


class FGelu(EpiGelu):
    def post(self, c):
        a, NT, acc = c['a'], c['NT'], c['acc']
        tt = c['t']
        for t in range(NT):
            r = [acc[t] + i for i in range(4)]
            a(f"v_cvt_pk_bf16_f32 v{tt[0]}, v{r[0]}, v{r[1]}")
            a(f"v_cvt_pk_bf16_f32 v{tt[1]}, v{r[2]}, v{r[3]}")
            unpack2(a, r[0], r[1], tt[0])
            unpack2(a, r[2], r[3], tt[1])
            for i in (0, 2):
                a(f"v_pk_mul_f32 {vr(tt[i], 2)}, {vr(r[i], 2)}, {vr(r[i], 2)}")
            for i in (0, 2):
                a(f"v_pk_fma_f32 {vr(tt[i], 2)}, {vr(tt[i], 2)}, {vr(self.vc1 + 2, 2)}, {vr(self.vc1, 2)}")
            for i in (0, 2):
                a(f"v_pk_mul_f32 {vr(tt[i], 2)}, {vr(tt[i], 2)}, {vr(r[i], 2)}")
            for i in range(4):
                a(f"v_exp_f32 v{tt[i]}, v{tt[i]}")
            a("s_nop 0")
            for i in (0, 2):
                a(f"v_pk_add_f32 {vr(tt[i], 2)}, {vr(tt[i], 2)}, {vr(self.vc1 + 4, 2)}")
            for i in range(4):
                a(f"v_rcp_f32 v{tt[i]}, v{tt[i]}")
            a("s_nop 0")
            for i in (0, 2):
                a(f"v_pk_mul_f32 {vr(r[i], 2)}, {vr(r[i], 2)}, {vr(tt[i], 2)}")
            a(f"v_cvt_pk_bf16_f32 v{acc[t]}, v{acc[t]}, v{acc[t] + 1}")
            a(f"v_cvt_pk_bf16_f32 v{acc[t] + 1}, v{acc[t] + 2}, v{acc[t] + 3}")
            a(f"buffer_store_dwordx2 {vr(acc[t], 2)}, v{self.vo}, s[48:51], 0 offen offset:{t * 512}{SC}")
            c['vm'].append('s')


class FX1:
    def pre(self, c):
        a = c['a']
        srd(a, 48, P_WS, WS_X1, ACT_BYTES)
        self.vo = tiled_offset(c, 20)

    def post(self, c):
        a, NT, acc = c['a'], c['NT'], c['acc']
        t0, t1, t2, t3 = c['t']
        vst = c['vst']
        h, x = c['hreg'], c['xreg']
        mb, rs = vst, vst + 1
        a(f"v_add_f32 v{vst}, v{vst}, v{vst + 2}")
        a(f"v_add_f32 v{vst + 1}, v{vst + 1}, v{vst + 3}")
        reduce_g(a, vst, t0)
        reduce_g(a, vst + 1, t0)
        a(f"s_mov_b32 s9, {f32bits(1.0 / D):#x}")
        a(f"v_mul_f32 v{vst}, s9, v{vst}")
        a(f"v_mul_f32 v{vst + 1}, s9, v{vst + 1}")
        a(f"v_fma_f32 v{vst + 1}, -v{vst}, v{vst}, v{vst + 1}")
        a(f"v_max_f32 v{vst + 1}, 0, v{vst + 1}")
        a(f"s_mov_b32 s9, {f32bits(1e-5):#x}")
        bf16r(a, mb, mb)
        bf16r(a, rs, rs)
        a(f"v_add_f32 v{rs}, s9, v{rs}")
        bf16r(a, rs, rs)
        a(f"v_sqrt_f32 v{rs}, v{rs}")
        a("s_nop 0")
        bf16r(a, rs, rs)
        a(f"v_rcp_f32 v{rs}, v{rs}")
        so = Stat2(c, WS_STX)
        for t in range(NT):
            for hh in range(2):
                unpack2(a, t0, t1, h[t] + hh)
                a(f"v_sub_f32 v{t0}, v{t0}, v{mb}")
                a(f"v_sub_f32 v{t1}, v{t1}, v{mb}")
                a(f"v_cvt_pk_bf16_f32 v{t0}, v{t0}, v{t1}")
                unpack2(a, t0, t1, t0)
                a(f"v_mul_f32 v{t0}, v{t0}, v{rs}")
                a(f"v_mul_f32 v{t1}, v{t1}, v{rs}")
                a(f"v_cvt_pk_bf16_f32 v{t0}, v{t0}, v{t1}")
                unpack2(a, t0, t1, t0)
                a(f"v_cvt_pk_bf16_f32 v{t2}, v{acc[t] + 2 * hh}, v{acc[t] + 2 * hh + 1}")
                unpack2(a, t2, t3, t2)
                a(f"v_add_f32 v{t0}, v{t0}, v{t2}")
                a(f"v_add_f32 v{t1}, v{t1}, v{t3}")
                a(f"v_cvt_pk_bf16_f32 v{x[t] + hh}, v{t0}, v{t1}")
                so.add_packed(x[t] + hh, t0, t1)
            a(f"buffer_store_dwordx2 {vr(x[t], 2)}, v{self.vo}, s[48:51], 0 offen offset:{t * 512}{SC}")
            c['vm'].append('s')
        so.finish()


class FFinal:
    def pre(self, c):
        a = c['a']
        srd(a, 48, P_OUT, 0, ACT_BYTES)
        self.vo = out_offset(c, D * 2)

    def post(self, c):
        a, NT, acc = c['a'], c['NT'], c['acc']
        t0, t1, t2, t3 = c['t']
        h, x = c['hreg'], c['xreg']
        for t in range(NT):
            for hh in range(2):
                a(f"v_cvt_pk_bf16_f32 v{t0}, v{acc[t] + 2 * hh}, v{acc[t] + 2 * hh + 1}")
                unpack2(a, t0, t1, t0)
                unpack2(a, t2, t3, x[t] + hh)
                a(f"v_add_f32 v{t0}, v{t0}, v{t2}")
                a(f"v_add_f32 v{t1}, v{t1}, v{t3}")
                a(f"v_cvt_pk_bf16_f32 v{t0}, v{t0}, v{t1}")
                unpack2(a, t0, t1, t0)
                unpack2(a, t2, t3, h[t] + hh)
                a(f"v_add_f32 v{t0}, v{t0}, v{t2}")
                a(f"v_add_f32 v{t1}, v{t1}, v{t3}")
                a(f"v_cvt_pk_bf16_f32 v{acc[t] + hh}, v{t0}, v{t1}")
            a(f"buffer_store_dwordx2 {vr(acc[t], 2)}, v{self.vo}, s[48:51], 0 offen offset:{t * 32}")
            c['vm'].append('s')


def gen_fused(name, stages):
    a = Asm()
    W = 4
    a("s_cmp_ge_u32 s2, 256")
    a(f"s_cbranch_scc1 {name}_end")
    st = [0]
    stamp(a, st)
    load_kernargs(a)
    vw, vl, vr16, vg = a.v(), a.v(), a.v(), a.v()
    a(f"v_lshrrev_b32 v{vw}, 6, v0")
    a(f"v_and_b32 v{vl}, 63, v0")
    a(f"v_and_b32 v{vr16}, 15, v0")
    a(f"v_bfe_u32 v{vg}, v0, 4, 2")
    a("s_nop 0")
    a(f"v_readfirstlane_b32 s7, v{vw}")
    a("s_lshl_b32 s8, s7, 10")
    t0 = a.v(4, 4)
    t1, t2, t3 = t0 + 1, t0 + 2, t0 + 3
    hreg = [a.v(2, 2) for _ in range(5)]
    xreg = [a.v(2, 2) for _ in range(5)]
    vp7 = a.v()
    vpd = a.v()
    vdset = [[a.v() for _ in range(5)] for _ in range(2)]
    SBS = [44, 84]
    issued_next = {}

    def stage_geom(P):
        NT, MT, KS = P['NT'], P['MT'], P['KS']
        CH = P.get('CH', 4)
        return NT, MT, KS, CH, CH * NT // 4, NT * 1024 * CH, min(P['ring'], KS // CH)

    def setup_b(si):
        P = stages[si]
        NT, MT, KS, CH, RPC, BSLOT, ring = stage_geom(P)
        PER = {4: 4, 5: 1, 6: 2, 8: 8}[NT]
        mper = (S // (64 * MT)) // 8
        a("s_lshr_b32 s12, s2, 3")
        a(f"s_lshr_b32 s12, s12, {mper.bit_length() - 1}")
        a(f"s_mul_i32 s12, s12, {16 * NT}")
        for p in range(RPC):
            Fv, sl, rr = t0, t1, t2
            d = vdset[si % 2][p]
            a(f"v_add_u32 v{Fv}, {p * 256}, v0")
            udiv(a, sl, Fv, 2 * NT, 64 * NT * CH)
            a(f"v_mul_u32_u24 v{rr}, {2 * NT}, v{sl}")
            a(f"v_sub_u32 v{rr}, v{Fv}, v{rr}")
            a(f"v_and_b32 v{d}, 0xfffffff3, v{sl}")
            a(f"v_bfe_u32 v{t0}, v{sl}, 2, 1")
            a(f"v_lshl_add_u32 v{d}, v{t0}, 3, v{d}")
            a(f"v_bfe_u32 v{t0}, v{sl}, 3, 1")
            a(f"v_lshl_add_u32 v{d}, v{t0}, 2, v{d}")
            a(f"v_mul_u32_u24 v{d}, {P['ldb']}, v{d}")
            if PER > 1:
                a(f"v_and_b32 v{t0}, 7, v{sl}")
                a(f"v_lshrrev_b32 v{t0}, {({8: 0, 4: 1, 2: 2})[PER]}, v{t0}")
                a(f"v_lshlrev_b32 v{t0}, 1, v{t0}")
                a(f"v_xor_b32 v{rr}, v{rr}, v{t0}")
            a(f"v_lshl_add_u32 v{d}, v{rr}, 4, v{d}")
            a(f"v_lshl_add_u32 v{d}, s12, 1, v{d}")

    def b_items_of(si, c):
        P = stages[si]
        NT, MT, KS, CH, RPC, BSLOT, ring = stage_geom(P)
        slot = c % ring
        sb = SBS[si % 2]
        return [([f"s_mov_b32 s10, {c * CH * 32 * P['ldb']}",
                  f"s_add_u32 m0, s8, {slot * BSLOT + p * 4096}",
                  "s_nop 0",
                  f"buffer_load_dwordx4 v{vdset[si % 2][p]}, s[{sb}:{sb + 3}], s10 offen lds"], (si, c)) for p in range(RPC)]

    a(f"v_lshlrev_b32 v{vp7}, 7, v0")
    a("s_cmp_eq_u32 s7, 4")
    a(f"s_cbranch_scc1 {name}_sync")
    base_nv = a.nv
    vm = []
    nbar = [0]
    syncs = []

    def bar():
        a("s_barrier")
        nbar[0] += 1
    lds_max = CS_OFF + 512
    first = True
    prev = None
    for si, P in enumerate(stages):
        a.nv = base_nv
        NT, MT, KS, ldb, ring = P['NT'], P['MT'], P['KS'], P['ldb'], P['ring']
        CH, LA, PD = P.get('CH', 4), P.get('LA', 2), P.get('PD', 5)
        ln, shift, stats_src, pf = P.get('ln', 0), P.get('shift', False), P.get('stats_src'), P.get('pf')
        asc = SC if si > 0 else ""
        BM = 16 * W * MT
        n_mtiles = S // BM
        mper = n_mtiles // 8
        NCH = KS // CH
        RPC = CH * NT // W
        assert CH * NT % W == 0
        BSLOT = NT * 1024 * CH
        ring = min(ring, NCH)
        RA = min(NCH, LA + 2)
        assert ring * BSLOT <= CS_OFF
        K = KS * 32
        PER = {4: 4, 5: 1, 6: 2, 8: 8}[NT]
        sname = f"{name}_s{si}"

        def swz(dst, ri):
            if PER == 8:
                a(f"v_mov_b32 v{dst}, v{ri}")
            elif PER == 4:
                a(f"v_lshrrev_b32 v{dst}, 1, v{ri}")
            elif PER == 2:
                a(f"v_lshrrev_b32 v{dst}, 2, v{ri}")

        if si == DET:
            stamp(a, st)
        a("s_and_b32 s3, s2, 7")
        a("s_lshr_b32 s4, s2, 3")
        sh = mper.bit_length() - 1
        a(f"s_lshl_b32 s3, s3, {sh}")
        a(f"s_and_b32 s5, s4, {mper - 1}")
        a("s_add_u32 s3, s3, s5")
        a(f"s_lshr_b32 s4, s4, {sh}")
        a(f"s_mul_i32 s5, s3, {BM}")
        a(f"s_mul_i32 s6, s4, {16 * NT}")
        a("s_lshr_b32 s9, s5, 4")
        a(f"s_mul_i32 s64, s7, {MT}")
        a("s_add_u32 s64, s64, s9")
        vrow = []
        for mt in range(MT):
            if mt:
                a(f"s_add_u32 s{64 + mt}, s64, {mt}")
            vrow.append(a.v())
            a(f"v_lshl_add_u32 v{vrow[mt]}, s{64 + mt}, 4, v{vr16}")
        SA, SB = 40, 44
        if not shift:
            vaoff = [a.v() for _ in range(MT)]
            a(f"v_lshlrev_b32 v{t0}, 4, v{vl}")
            for mt in range(MT):
                a(f"s_mul_i32 s9, s{64 + mt}, {KS * 1024}")
                a(f"v_add_u32 v{vaoff[mt]}, s9, v{t0}")
        else:
            vaoff = [[a.v() for _ in range(4)] for _ in range(MT)]
            a("s_mov_b32 s9, 0x80000000")
            for mt in range(MT):
                for i, d in enumerate((-1, 1, -2, 2)):
                    a(f"v_add_u32 v{t0}, {d}, v{vrow[mt]}")
                    a(f"v_lshrrev_b32 v{t2}, 4, v{t0}")
                    a(f"v_mul_u32_u24 v{t2}, {KS * 1024}, v{t2}")
                    a(f"v_and_b32 v{t3}, 15, v{t0}")
                    a(f"v_lshl_add_u32 v{t3}, v{vg}, 4, v{t3}")
                    a(f"v_lshl_add_u32 v{vaoff[mt][i]}, v{t3}, 4, v{t2}")
                    a(f"v_cmp_gt_u32 vcc, {S}, v{t0}")
                    a(f"v_mov_b32 v{t1}, s9")
                    a("s_nop 1")
                    a(f"v_cndmask_b32 v{vaoff[mt][i]}, v{t1}, v{vaoff[mt][i]}, vcc")
        if si == 0:
            setup_b(0)
        if si + 1 < len(stages):
            setup_b(si + 1)
        nbase = (ring * BSLOT + 65535) // 65536
        vb = [[a.v() for _ in range(nbase)] for _ in range(PER)]
        a(f"v_bfe_u32 v{t0}, v0, 2, 3")
        a(f"v_bfe_u32 v{t1}, v0, 5, 1")
        a(f"v_lshl_add_u32 v{t1}, v{t1}, 4, v{t0}")
        a(f"v_mul_u32_u24 v{t1}, {NT * 32}, v{t1}")
        a(f"v_and_b32 v{t2}, 3, v0")
        a(f"v_lshl_add_u32 v{t1}, v{t2}, 3, v{t1}")
        swz(t0, t0)
        for tp in range(PER):
            if PER > 1:
                a(f"v_xor_b32 v{t2}, {tp}, v{t0}")
                a(f"v_lshl_add_u32 v{vb[tp][0]}, v{t2}, 5, v{t1}")
            else:
                a(f"v_mov_b32 v{vb[0][0]}, v{t1}")
            for i in range(1, nbase):
                a(f"v_add_u32 v{vb[tp][i]}, {65536 * i}, v{vb[tp][0]}")
        if ln:
            NX = (NT + W - 1) // W
            vbx = [[a.v() for _ in range(nbase)] for _ in range(NX)]
            for x in range(NX):
                a(f"s_add_u32 s9, s7, {x * W}")
                a(f"s_min_u32 s9, s9, {NT - 1}")
                if PER > 1:
                    a(f"v_xor_b32 v{t2}, s9, v{t0}")
                else:
                    a(f"v_mov_b32 v{t2}, s9")
                a(f"v_lshl_add_u32 v{vbx[x][0]}, v{t2}, 5, v{t1}")
                for i in range(1, nbase):
                    a(f"v_add_u32 v{vbx[x][i]}, {65536 * i}, v{vbx[x][0]}")
            vones = a.v(4, 4)
            for i in range(4):
                a(f"v_mov_b32 v{vones + i}, 0x3f803f80")
            vsum = [a.v() for _ in range(MT)]
            vsq = [a.v() for _ in range(MT)]
            acs = [a.v(4, 4) for _ in range(NX)]
        acc = [[a.v(4, 4) for _ in range(NT)] for _ in range(MT)]
        areg = [[[a.v(4, 4) for _ in range(MT)] for _ in range(CH)] for _ in range(RA)]
        if first:
            a("s_waitcnt lgkmcnt(0)")
            first = False
        aptr, aoff, asize = P['a_src']
        srd(a, SA, aptr, aoff, asize)
        if si == 0:
            srd(a, SBS[0], P['b_ptr'], 0, P['b_size'])
        if si + 1 < len(stages):
            srd(a, SBS[(si + 1) % 2], stages[si + 1]['b_ptr'], 0, stages[si + 1]['b_size'])
        ctxs = [dict(a=a, NT=NT, vrow=vrow[mt], vg=vg, vr16=vr16, vl=vl, t=(t0, t1, t2, t3), acc=acc[mt], vm=vm,
                     name=sname, stile=64 + mt, mt=mt, hreg=hreg, xreg=xreg) for mt in range(MT)]
        epis = [P['epi']() for _ in range(MT)]
        pend = []
        pfl = []
        if pf is not None:
            PSTEP = W * 64 * 128
            for (pptr, pbytes, pstart, plen) in pf:
                pper = (plen // 32 + 127) // 128 * 128
                npf = (pper + PSTEP - 1) // PSTEP
                for i in range(npf):
                    lines = [f"s_mov_b32 s96, s{pptr}", f"s_and_b32 s97, s{pptr + 1}, 0xffff",
                             f"s_mov_b32 s98, {min(pbytes, pstart + plen)}", "s_mov_b32 s99, 0x00020000",
                             "s_lshr_b32 s10, s2, 3", f"s_mul_i32 s10, s10, {pper}",
                             f"s_add_u32 s10, s10, {pstart + i * PSTEP}",
                             f"buffer_load_dword v{vpd}, v{vp7}, s[96:99], s10 offen"]
                    pfl.append((lines, 'p'))

        def a_items(c):
            out = []
            for s in range(CH):
                ks = c * CH + s
                for mt in range(MT):
                    vo = vaoff[mt][ks // 5] if shift else vaoff[mt]
                    out.append(([f"s_mov_b32 s10, {c * CH * 1024}",
                                 f"buffer_load_dwordx4 {vr(areg[c % RA][s][mt], 4)}, v{vo}, s[{SA}:{SA + 3}], s10 offen offset:{s * 1024}{asc}"],
                                (si, c)))
            return out

        def b_items(c):
            return b_items_of(si, c)

        def emit_pending(n=1, track=True):
            for _ in range(n):
                if not pend:
                    return
                lines, tag = pend.pop(0)
                for l in lines:
                    a(l)
                if track:
                    vm.append(tag)

        if si == DET:
            stamp(a, st)
        NB0 = 0
        for c in range(NB0):
            pend.extend(b_items(c))
        nb0 = len(pend)
        emit_pending(1000)
        rest = []
        for c in range(issued_next.get(si, 0), ring):
            rest.extend(b_items(c))
        if si > 0:
            if si == DET:
                stamp(a, st)
            a(f"s_waitcnt vmcnt({nb0})")
            syncs.append((nbar[0], prev, MT, P['dep'], P['thr']))
            nbar[0] = 0
            a("s_barrier")
            if si == DET:
                stamp(a, st)
            pend.extend(rest)
            emit_pending(1000)
            if si == DET:
                stamp(a, st)
            a("s_barrier")
        else:
            pend.extend(rest)
            emit_pending(1000)
        if DET < 0 or si in (DET - 1, DET):
            stamp(a, st)
        for c in range(min(LA, NCH)):
            pend.extend(a_items(c))
            emit_pending(1000)
            if c == 0:
                for mt in range(MT):
                    if stats_src is not None:
                        vst = a.v(4, 4)
                        srd(a, 60, P_WS, stats_src, S * 64)
                        a(f"v_lshlrev_b32 v{t0}, 6, v{vrow[mt]}")
                        a(f"v_lshl_add_u32 v{t0}, v{vg}, 4, v{t0}")
                        a(f"buffer_load_dwordx4 {vr(vst, 4)}, v{t0}, s[60:63], 0 offen{SC}")
                        vm.append('r')
                        ctxs[mt]['vst'] = vst
                    epis[mt].pre(ctxs[mt])
        for mt in range(MT):
            for t in range(NT):
                for i in range(4):
                    a(f"v_mov_b32 v{acc[mt][t] + i}, 0")
        if ln:
            for x in range(NX):
                for i in range(4):
                    a(f"v_mov_b32 v{acs[x] + i}, 0")

        def wait_chunk(c):
            last = max(i for i, tg in enumerate(vm) if isinstance(tg, tuple) and tg[0] == si and tg[1] <= c)
            n = min(63, len(vm) - 1 - last)
            a(f"s_waitcnt vmcnt({n})")

        units = []
        for ks in range(KS):
            for t in range(NT):
                units.append((ks, t))
            if ln:
                for x in range(NX):
                    units.append((ks, ('x', x)))
        NB = PD + 2
        breg = [a.v(4, 4) for _ in range(NB)]
        nrd = []

        def issue_read(i):
            ks, t = units[i]
            c = ks // CH
            slot = c % ring
            off = slot * BSLOT + (ks % CH) * NT * 1024
            if isinstance(t, tuple):
                base = vbx[t[1]]
            else:
                base = vb[t % PER]
                off += (t - t % PER) * 32
            r = breg[i % NB]
            for h in range(2):
                o = off + h * 8 * NT * 32
                a(f"ds_read_b64_tr_b16 {vr(r + 2 * h, 2)}, v{base[o // 65536]} offset:{o % 65536}")
            nrd.append(2)

        nread = [0]

        def advance_reads(upto):
            while nread[0] < min(upto, len(units)):
                ks, t = units[nread[0]]
                if t == 0 and ks % CH == 0:
                    c = ks // CH
                    emit_pending(1000)
                    wait_chunk(c)
                    bar()
                    if c >= 2 and c - 2 + ring < NCH:
                        pend.extend(b_items(c - 2 + ring))
                    if c >= 2 and si + 1 < len(stages) and ring >= NCH:
                        g2 = stage_geom(stages[si + 1])
                        while (issued_next.get(si + 1, 0) + 1) * g2[5] <= (c - 1) * BSLOT and issued_next.get(si + 1, 0) < g2[6]:
                            pend.extend(b_items_of(si + 1, issued_next.get(si + 1, 0)))
                            issued_next[si + 1] = issued_next.get(si + 1, 0) + 1
                    if c + LA < NCH:
                        pend.extend(a_items(c + LA))
                    elif c + LA == NCH or (LA > NCH and c == 0):
                        pend.extend(pfl)
                issue_read(nread[0])
                nread[0] += 1

        for i, (ks, t) in enumerate(units):
            advance_reads(i + PD + 1)
            ahead = sum(nrd[i + 1:nread[0]])
            a(f"s_waitcnt lgkmcnt({ahead})")
            c = ks // CH
            b = breg[i % NB]
            if isinstance(t, tuple):
                x = t[1]
                a(f"v_mfma_f32_16x16x32_bf16 {vr(acs[x], 4)}, {vr(b, 4)}, {vr(vones, 4)}, {vr(acs[x], 4)}")
            else:
                for mt in range(MT):
                    ar = areg[c % RA][ks % CH][mt]
                    a(f"v_mfma_f32_16x16x32_bf16 {vr(acc[mt][t], 4)}, {vr(b, 4)}, {vr(ar, 4)}, {vr(acc[mt][t], 4)}")
            emit_pending(1)
        emit_pending(1000)
        if DET < 0 or si in (DET - 1, DET):
            stamp(a, st)
        a("s_nop 7")
        a("s_nop 1")
        bar()
        if ln:
            a(f"v_lshlrev_b32 v{t0}, 4, v{vg}")
            a(f"v_add_u32 v{t0}, {CS_OFF}, v{t0}")
            for x in range(NX):
                a(f"s_add_u32 s9, s7, {x * W}")
                a(f"s_min_u32 s9, s9, {NT - 1}")
                a("s_lshl_b32 s9, s9, 6")
                a(f"v_add_u32 v{t1}, s9, v{t0}")
                a(f"ds_write_b128 v{t1}, {vr(acs[x], 4)}")
            for mt in range(MT):
                vst = ctxs[mt]['vst']
                a(f"v_add_f32 v{vsum[mt]}, v{vst}, v{vst + 2}")
                a(f"v_add_f32 v{vsq[mt]}, v{vst + 1}, v{vst + 3}")
                reduce_g(a, vsum[mt], t2)
                reduce_g(a, vsq[mt], t2)
            a("s_waitcnt lgkmcnt(0)")
            bar()
            vcs = {}
            pool = list(breg)
            for x_ in areg:
                for y_ in x_:
                    pool += y_
            for t in range(NT):
                vcs[t] = pool[t]
                a(f"ds_read_b128 {vr(vcs[t], 4)}, v{t0} offset:{t * 64}")

            def ln_stats(mean, var, mb, sqb):
                bf16r(a, mb, mean)
                bf16r(a, sqb, var)
                a(f"v_add_f32 v{sqb}, s9, v{sqb}")
                bf16r(a, sqb, sqb)
                a(f"v_sqrt_f32 v{sqb}, v{sqb}")
                a("s_nop 0")
                bf16r(a, sqb, sqb)

            vab = []
            for mt in range(MT):
                vmean, vvar, vmb, vsqb, va, vbb = vsum[mt], vsq[mt], a.v(), a.v(), a.v(), a.v()
                a(f"s_mov_b32 s9, {f32bits(1.0 / K):#x}")
                a(f"v_mul_f32 v{vmean}, s9, v{vmean}")
                a(f"v_mul_f32 v{vvar}, s9, v{vvar}")
                a(f"v_fma_f32 v{vvar}, -v{vmean}, v{vmean}, v{vvar}")
                a(f"v_max_f32 v{vvar}, 0, v{vvar}")
                a(f"s_mov_b32 s9, {f32bits(1e-5):#x}")
                ln_stats(vmean, vvar, vmb, vsqb)
                a(f"v_rcp_f32 v{va}, v{vsqb}")
                a("s_nop 0")
                a(f"v_mul_f32 v{vbb}, v{vmb}, v{va}")
                a(f"v_sub_f32 v{vbb}, 0, v{vbb}")
                if ln == 2:
                    m2, s2 = a.v(), a.v()
                    a(f"v_sub_f32 v{t2}, v{vmean}, v{vmb}")
                    a(f"v_mul_f32 v{t2}, v{t2}, v{va}")
                    a(f"v_mul_f32 v{t3}, v{vvar}, v{va}")
                    a(f"v_mul_f32 v{t3}, v{t3}, v{va}")
                    ln_stats(t2, t3, m2, s2)
                    a(f"v_rcp_f32 v{s2}, v{s2}")
                    a("s_nop 0")
                    a(f"v_sub_f32 v{vbb}, v{vbb}, v{m2}")
                    a(f"v_mul_f32 v{vbb}, v{vbb}, v{s2}")
                    a(f"v_mul_f32 v{va}, v{va}, v{s2}")
                vab.append((va, vbb))
            a("s_waitcnt lgkmcnt(0)")
            for mt in range(MT):
                va, vbb = vab[mt]
                a(f"v_mov_b32 v{t0}, v{va}")
                a(f"v_mov_b32 v{t1}, v{va}")
                a(f"v_mov_b32 v{t2}, v{vbb}")
                a(f"v_mov_b32 v{t3}, v{vbb}")
                for t in range(NT):
                    for i in (0, 2):
                        r = vr(acc[mt][t] + i, 2)
                        a(f"v_pk_mul_f32 {r}, {r}, {vr(t0, 2)}")
                        a(f"v_pk_fma_f32 {r}, {vr(vcs[t] + i, 2)}, {vr(t2, 2)}, {r}")
        for mt in range(MT):
            epis[mt].post(ctxs[mt])
        prev = MT
    if gen.STAMP:
        a("s_waitcnt vmcnt(0)")
    stamp(a, st)
    a.nv = base_nv
    stamp_flush(a, st, name)
    a("s_endpgm")
    a.label(f"{name}_sync")
    a("s_waitcnt lgkmcnt(0)")
    srd(a, SCNT, P_WS, WS_CNT, 32 * 256)
    a("s_and_b32 s3, s2, 7")
    a("s_lshr_b32 s4, s2, 3")
    a("s_lshl_b32 s5, s3, 2")
    a("s_and_b32 s9, s4, 3")
    a("s_add_u32 s5, s5, s9")
    a("s_lshl_b32 s6, s3, 1")
    a("s_and_b32 s9, s4, 1")
    a("s_add_u32 s6, s6, s9")
    a("s_lshl_b32 s6, s6, 1")
    for k, (nb, pmt, cmt, dep, thr) in enumerate(syncs):
        for _ in range(nb):
            a("s_barrier")
        a("s_barrier")
        a(f"v_add_u32 v{t0}, s{5 if pmt == 1 else 6}, v{vl}")
        a(f"v_lshlrev_b32 v{t0}, 8, v{t0}")
        a(f"v_mov_b32 v{t1}, 1")
        a(f"s_mov_b64 exec, {(1 << pmt) - 1}")
        a(f"buffer_atomic_add v{t1}, v{t0}, s[{SCNT}:{SCNT + 3}], 0 offen")
        a("s_mov_b64 exec, -1")
        if dep == 'same':
            a(f"v_mov_b32 v{t0}, s5")
        elif dep == 'halo':
            a(f"v_min_u32 v{t0}, 2, v{vl}")
            a(f"v_add_u32 v{t0}, s5, v{t0}")
            a(f"v_subrev_u32 v{t0}, 1, v{t0}")
            a(f"v_max_i32 v{t0}, 0, v{t0}")
            a(f"v_min_i32 v{t0}, 31, v{t0}")
        elif dep == 'pair':
            a(f"v_and_b32 v{t0}, 1, v{vl}")
            a(f"v_add_u32 v{t0}, s6, v{t0}")
        a(f"v_lshlrev_b32 v{t0}, 8, v{t0}")
        a("s_mov_b32 s39, 0")
        a("s_mov_b64 exec, 7")
        a.label(f"{name}_poll{k}")
        a(f"buffer_load_dword v{t1}, v{t0}, s[{SCNT}:{SCNT + 3}], 0 offen sc1")
        a("s_waitcnt vmcnt(0)")
        a(f"v_cmp_le_u32 vcc, {thr}, v{t1}")
        a("s_nop 1")
        a("s_cmp_eq_u64 vcc, 7")
        a(f"s_cbranch_scc1 {name}_ready{k}")
        a("s_add_u32 s39, s39, 1")
        a("s_cmp_lt_u32 s39, 0x40000")
        a(f"s_cbranch_scc0 {name}_ready{k}")
        a(f"s_sleep {os.environ.get('SLP', '4')}")
        a(f"s_branch {name}_poll{k}")
        a.label(f"{name}_ready{k}")
        a("s_mov_b64 exec, -1")
        a("s_barrier")
    a.label(f"{name}_end")
    a("s_endpgm")
    assert a.maxv <= 256, a.maxv
    return a, lds_max, 256, 320


def build():
    ks = []
    ks.append(("k1_qkv_kernel",) + gen_gemm("k1_qkv_kernel", NT=8, W=4, MT=2, KS=20, ldb=3840, n_ntiles=15, ring=5, CH=2,
                                            a_lds=True, LA=3, a_src=(P_X, 0, ACT_BYTES), b_ptr=P_WQKV, b_size=640 * 1920 * 2,
                                            ln=1, shift=False, epi=EpiQKV, pf=[(P_WO, 819200, 0, 819200)], map2d=True))
    ks.append(("k2_attn_kernel",) + gen_attn("k2_attn_kernel"))
    H = 983040
    small = dict(NT=5, MT=1, KS=20, ldb=1280, ring=5, b_size=640 * 640 * 2, LA=5)
    stages = [
        dict(a_src=(P_WS, WS_O, ACT_BYTES), b_ptr=P_WO, epi=FResid, pf=[(P_W3, 1966080, 0, H)], **small),
        dict(a_src=(P_WS, WS_H, ACT_BYTES), b_ptr=P_W1, ln=2, stats_src=WS_STH, epi=lambda: FGelu(WS_G, 1280, ACT_BYTES),
             dep='same', thr=8, pf=[(P_W3, 1966080, H, H)], **small),
        dict(a_src=(P_WS, WS_G, ACT_BYTES), b_ptr=P_W2, shift=True, stats_src=WS_STH, epi=FX1, dep='halo', thr=16,
             pf=[(P_W4, 1966080, 0, H)], **small),
        dict(NT=6, MT=2, KS=20, ldb=3072, ring=10, CH=2, LA=3, PD=3, a_src=(P_WS, WS_X1, ACT_BYTES), b_ptr=P_W3,
             b_size=640 * 1536 * 2, ln=1, stats_src=WS_STX, epi=lambda: FGelu(WS_T, 3072, S * F * 2), dep='pair', thr=24,
             pf=[(P_W4, 1966080, H, H)]),
        dict(NT=5, MT=1, KS=48, ldb=1280, ring=7, LA=5, a_src=(P_WS, WS_T, S * F * 2), b_ptr=P_W4, b_size=1536 * 640 * 2,
             epi=FFinal, dep='same', thr=40),
    ]
    ks.append(("k3_fused_kernel",) + gen_fused("k3_fused_kernel", stages))
    ref = open("sequential_preLN__sliding_block__mixer_s_mlp__prompt.s.ref").read()
    head = []
    for line in ref.splitlines():
        if not line.startswith(";"):
            break
        if "@launch" in line or "Override launch" in line or "grid=ceil" in line:
            continue
        head.append(line)
    out = "\n".join(head) + "\n"
    for name, a, lds, nwg, thr in ks:
        out += f"; @launch kernel={name} grid=({nwg},1,1) block=({thr},1,1) lds={lds}\n"
    out += '.amdgcn_target "amdgcn-amd-amdhsa--gfx950"\n.text\n'
    for name, a, lds, nwg, thr in ks:
        out += kernel_header(name) + a.text()
    out += '.section .rodata,"a"\n'
    for name, a, lds, nwg, thr in ks:
        out += ".p2align 6\n" + kernel_desc(name, a.maxv)
        print(name, "vgprs", a.maxv, "lds", lds, "wgs", nwg, "instrs", len(a.lines), file=sys.stderr)
    return out


if __name__ == "__main__":
    if len(sys.argv) > 2 and sys.argv[2] == "stamp":
        gen.STAMP = True
    path = sys.argv[1] if len(sys.argv) > 1 else "fused.s"
    open(path, "w").write(build())
```

```python
import sys, os

S = 2048
D = 640
F = 1536
NH = 32
DH = 20

WS_Q = 0
WS_K = 2621440
WS_V = 5242880
WS_O = 0x800000
WS_H = 0xB00000
WS_G = 0xE00000
WS_X1 = 0x1100000
WS_T = 0x1400000
WS_ST = 0x1B00000
WS_STH = 0x1B00000
WS_STX = 0x1B40000
WS_CNT = 0x1B80000
ACT_BYTES = S * D * 2

P_X, P_WQKV, P_WO, P_BX, P_W1, P_W2, P_W3, P_W4 = 16, 18, 20, 22, 24, 26, 28, 30
P_OUT, P_DBG, P_WS = 32, 34, 36


class Asm:
    def __init__(self):
        self.lines = []
        self.nv = 1
        self.maxv = 1

    def __call__(self, s):
        self.lines.append("    " + s)

    def label(self, s):
        self.lines.append(s + ":")

    def comment(self, s):
        self.lines.append("    ; " + s)

    def v(self, n=1, align=1):
        self.nv = (self.nv + align - 1) // align * align
        r = self.nv
        self.nv += n
        self.maxv = max(self.maxv, self.nv)
        return r

    def text(self):
        return "\n".join(self.lines) + "\n"


def vr(b, n):
    return f"v[{b}:{b + n - 1}]" if n > 1 else f"v{b}"


def sr(b, n):
    return f"s[{b}:{b + n - 1}]" if n > 1 else f"s{b}"


def magic(d, maxval):
    for sh in range(0, 32):
        m = ((1 << sh) + d - 1) // d
        if m >= (1 << 24) or m * maxval >= (1 << 32):
            continue
        if all((x * m) >> sh == x // d for x in range(maxval + 1)):
            return m, sh
    raise ValueError("no magic")


def udiv(a, dst, src, d, maxval):
    if d & (d - 1) == 0:
        a(f"v_lshrrev_b32 v{dst}, {d.bit_length() - 1}, v{src}")
        return
    m, sh = magic(d, maxval)
    a(f"v_mul_u32_u24 v{dst}, {m}, v{src}")
    a(f"v_lshrrev_b32 v{dst}, {sh}, v{dst}")


def srd(a, dst, ptr, off, size):
    if off:
        a(f"s_add_u32 s{dst}, s{ptr}, {off}")
        a(f"s_addc_u32 s{dst + 1}, s{ptr + 1}, 0")
    else:
        a(f"s_mov_b32 s{dst}, s{ptr}")
        a(f"s_mov_b32 s{dst + 1}, s{ptr + 1}")
    a(f"s_and_b32 s{dst + 1}, s{dst + 1}, 0xffff")
    a(f"s_mov_b32 s{dst + 2}, {size}")
    a(f"s_mov_b32 s{dst + 3}, 0x00020000")


def load_kernargs(a):
    a("s_load_dwordx16 s[16:31], s[0:1], 0")
    a("s_load_dwordx4 s[32:35], s[0:1], 64")
    a("s_load_dwordx2 s[36:37], s[0:1], 80")


def bf16r(a, dst, src):
    a(f"v_cvt_pk_bf16_f32 v{dst}, v{src}, v{src}")
    a(f"v_lshlrev_b32 v{dst}, 16, v{dst}")


STAMP = False
def stamp(a, st):
    if not STAMP:
        return
    i = st[0]
    st[0] += 1
    if i == 0:
        a("s_memrealtime s[68:69]")
    a(f"s_memtime s[{70 + 2 * i}:{71 + 2 * i}]")
    a("s_waitcnt lgkmcnt(0)")


KIDX = [0]


def stamp_flush(a, st, name):
    if not STAMP:
        return
    a("s_memrealtime s[100:101]")
    a("s_waitcnt lgkmcnt(0)")
    a("s_cmp_lg_u32 s7, 0")
    a(f"s_cbranch_scc1 {name}_nod")
    srd(a, 60, P_WS, 0x8000000 + KIDX[0] * 8192, 8192)
    KIDX[0] += 1
    t = a.v(2, 2)
    u = a.v()
    a(f"v_mov_b32 v{t}, s68")
    a(f"v_mov_b32 v{t + 1}, s100")
    a(f"v_mov_b32 v{u}, s2")
    a(f"v_lshlrev_b32 v{u}, 3, v{u}")
    a(f"buffer_store_dwordx2 {vr(t, 2)}, v{u}, s[60:63], 0 offen")
    a.label(f"{name}_nod")
    a("s_cmp_lg_u32 s2, 37")
    a(f"s_cbranch_scc1 {name}_nost")
    a("s_cmp_lg_u32 s7, 0")
    a(f"s_cbranch_scc1 {name}_nost")
    srd(a, 60, P_DBG, 0, 256)
    t = a.v()
    u = a.v()
    a(f"v_mov_b32 v{u}, 0")
    for i in range(st[0]):
        a(f"v_mov_b32 v{t}, s{70 + 2 * i}")
        a(f"buffer_store_dword v{t}, v{u}, s[60:63], 0 offen offset:{128 + 4 * i}")
    a.label(f"{name}_nost")


def kernel_header(name):
    return (f".globl {name}\n.p2align 8\n.type {name},@function\n{name}:\n")


def kernel_desc(name, nvgpr, nsgpr=102):
    acc = (nvgpr + 3) // 4 * 4
    return f""".amdhsa_kernel {name}
  .amdhsa_next_free_vgpr {nvgpr}
  .amdhsa_next_free_sgpr {nsgpr}
  .amdhsa_accum_offset {acc}
  .amdhsa_group_segment_fixed_size 0
  .amdhsa_kernarg_size 88
  .amdhsa_user_sgpr_count 2
  .amdhsa_user_sgpr_kernarg_segment_ptr 1
  .amdhsa_system_sgpr_workgroup_id_x 1
.end_amdhsa_kernel
"""


def gelu(a, x, t0, t1, sc):
    a(f"v_mul_f32 v{t0}, v{x}, v{x}")
    a(f"v_fma_f32 v{t0}, v{t0}, s{sc['c3']}, v{sc['vc1']}")
    a(f"v_mul_f32 v{t0}, v{t0}, v{x}")
    a(f"v_exp_f32 v{t0}, v{t0}")
    a("s_nop 0")
    a(f"v_add_f32 v{t0}, 1.0, v{t0}")
    a(f"v_rcp_f32 v{t0}, v{t0}")
    a("s_nop 0")
    a(f"v_mul_f32 v{x}, v{x}, v{t0}")


import struct
import math


def f32bits(x):
    return struct.unpack("<I", struct.pack("<f", x))[0]


def gen_gemm(name, NT, W, KS, ldb, n_ntiles, ring, a_src, b_ptr, b_size, ln, shift, epi, PD=5, CH=4, a_lds=False, LA=2,
             stats_src=None, MT=1, pf=None, map2d=False):
    a = Asm()
    BM = 16 * W * MT
    n_mtiles = S // BM
    NWG = n_mtiles * n_ntiles
    if map2d:
        NWG = 256
    mper = n_mtiles // 8
    NCH = KS // CH
    RPC = CH * NT // W
    assert CH * NT % W == 0
    BSLOT = NT * 1024 * CH
    ASLOT = (W * MT * 2048) if a_lds else 0
    if a_lds:
        assert CH == 2
    ring = min(ring, NCH)
    RA = min(NCH, LA + 2)
    A_LDS0 = ring * BSLOT
    lds_bytes = ring * (BSLOT + ASLOT)
    K = KS * 32
    PER = {4: 4, 5: 1, 6: 2, 8: 8}[NT]

    def swz(dst, ri):
        if PER == 8:
            a(f"v_mov_b32 v{dst}, v{ri}")
        elif PER == 4:
            a(f"v_lshrrev_b32 v{dst}, 1, v{ri}")
        elif PER == 2:
            a(f"v_lshrrev_b32 v{dst}, 2, v{ri}")

    a(f"s_cmp_ge_u32 s2, {NWG}")
    a(f"s_cbranch_scc1 {name}_end")
    st = [0]
    stamp(a, st)
    load_kernargs(a)
    a("s_and_b32 s3, s2, 7")
    a("s_lshr_b32 s4, s2, 3")
    sh = mper.bit_length() - 1
    assert 1 << sh == mper
    if map2d:
        a("s_and_b32 s5, s3, 1")
        a("s_lshr_b32 s9, s3, 1")
        a("s_lshl_b32 s3, s5, 3")
        a("s_and_b32 s5, s4, 7")
        a("s_add_u32 s3, s3, s5")
        a("s_lshr_b32 s4, s4, 3")
        a("s_lshl_b32 s9, s9, 2")
        a("s_add_u32 s4, s4, s9")
        a(f"s_cmp_ge_u32 s4, {n_ntiles}")
        a(f"s_cbranch_scc1 {name}_end")
    else:
        a(f"s_lshl_b32 s3, s3, {sh}")
        a(f"s_and_b32 s5, s4, {mper - 1}")
        a("s_add_u32 s3, s3, s5")
        a(f"s_lshr_b32 s4, s4, {sh}")
    a(f"s_mul_i32 s5, s3, {BM}")
    a(f"s_mul_i32 s6, s4, {16 * NT}")
    vw, vl, vr16, vg = a.v(), a.v(), a.v(), a.v()
    a(f"v_lshrrev_b32 v{vw}, 6, v0")
    a(f"v_and_b32 v{vl}, 63, v0")
    a(f"v_and_b32 v{vr16}, 15, v0")
    a(f"v_bfe_u32 v{vg}, v0, 4, 2")
    a("s_nop 0")
    a(f"v_readfirstlane_b32 s7, v{vw}")
    a("s_lshl_b32 s8, s7, 10")
    a("s_lshr_b32 s9, s5, 4")
    a(f"s_mul_i32 s64, s7, {MT}")
    a("s_add_u32 s64, s64, s9")
    vrow = []
    for mt in range(MT):
        if mt:
            a(f"s_add_u32 s{64 + mt}, s64, {mt}")
        vrow.append(a.v())
        a(f"v_lshl_add_u32 v{vrow[mt]}, s{64 + mt}, 4, v{vr16}")
    t0 = a.v(4, 4)
    t1, t2, t3 = t0 + 1, t0 + 2, t0 + 3
    SA, SB = 40, 44
    if a_lds:
        vaoff = [a.v()]
        a(f"v_bfe_u32 v{t0}, v0, 3, 3")
        a(f"v_and_b32 v{t1}, 7, v0")
        a(f"v_xor_b32 v{t1}, v{t1}, v{t0}")
        a(f"v_lshl_add_u32 v{t0}, s64, 4, v{t0}")
        a(f"v_mul_u32_u24 v{t0}, {K * 2}, v{t0}")
        a(f"v_lshl_add_u32 v{vaoff[0]}, v{t1}, 4, v{t0}")
        nab = (lds_bytes + 65535) // 65536
        vard = [[a.v() for _ in range(nab)] for _ in range(2)]
        a(f"v_and_b32 v{t0}, 7, v{vr16}")
        a(f"v_lshrrev_b32 v{t1}, 3, v{vr16}")
        a(f"v_lshlrev_b32 v{t1}, 10, v{t1}")
        a(f"v_lshl_add_u32 v{t1}, v{t0}, 7, v{t1}")
        a(f"v_mul_u32_u24 v{t3}, {2048 * MT}, v{vw}")
        a(f"v_add_u32 v{t1}, v{t1}, v{t3}")
        for sl in range(2):
            a(f"v_or_b32 v{t2}, {4 * sl}, v{vg}")
            a(f"v_xor_b32 v{t2}, v{t2}, v{t0}")
            a(f"v_lshl_add_u32 v{vard[sl][0]}, v{t2}, 4, v{t1}")
            for i in range(1, nab):
                a(f"v_add_u32 v{vard[sl][i]}, {65536 * i}, v{vard[sl][0]}")
        a(f"s_mul_i32 s15, s7, {2048 * MT}")
    elif not shift:
        vaoff = [a.v() for _ in range(MT)]
        a(f"v_lshlrev_b32 v{t0}, 4, v{vl}")
        for mt in range(MT):
            a(f"s_mul_i32 s9, s{64 + mt}, {KS * 1024}")
            a(f"v_add_u32 v{vaoff[mt]}, s9, v{t0}")
    else:
        vaoff = [[a.v() for _ in range(4)] for _ in range(MT)]
        a("s_mov_b32 s9, 0x80000000")
        for mt in range(MT):
            for i, d in enumerate((-1, 1, -2, 2)):
                a(f"v_add_u32 v{t0}, {d}, v{vrow[mt]}")
                a(f"v_lshrrev_b32 v{t2}, 4, v{t0}")
                a(f"v_mul_u32_u24 v{t2}, {KS * 1024}, v{t2}")
                a(f"v_and_b32 v{t3}, 15, v{t0}")
                a(f"v_lshl_add_u32 v{t3}, v{vg}, 4, v{t3}")
                a(f"v_lshl_add_u32 v{vaoff[mt][i]}, v{t3}, 4, v{t2}")
                a(f"v_cmp_gt_u32 vcc, {S}, v{t0}")
                a(f"v_mov_b32 v{t1}, s9")
                a("s_nop 1")
                a(f"v_cndmask_b32 v{vaoff[mt][i]}, v{t1}, v{vaoff[mt][i]}, vcc")
    vdma = [a.v() for _ in range(RPC)]
    for p in range(RPC):
        Fv, sl, rr = t0, t1, t2
        d = vdma[p]
        a(f"v_add_u32 v{Fv}, {p * 64 * W}, v0")
        udiv(a, sl, Fv, 2 * NT, 64 * NT * CH)
        a(f"v_mul_u32_u24 v{rr}, {2 * NT}, v{sl}")
        a(f"v_sub_u32 v{rr}, v{Fv}, v{rr}")
        a(f"v_and_b32 v{d}, 0xfffffff3, v{sl}")
        a(f"v_bfe_u32 v{t0}, v{sl}, 2, 1")
        a(f"v_lshl_add_u32 v{d}, v{t0}, 3, v{d}")
        a(f"v_bfe_u32 v{t0}, v{sl}, 3, 1")
        a(f"v_lshl_add_u32 v{d}, v{t0}, 2, v{d}")
        a(f"v_mul_u32_u24 v{d}, {ldb}, v{d}")
        if PER > 1:
            a(f"v_and_b32 v{t0}, 7, v{sl}")
            swz(t0, t0)
            a(f"v_lshlrev_b32 v{t0}, 1, v{t0}")
            a(f"v_xor_b32 v{rr}, v{rr}, v{t0}")
        a(f"v_lshl_add_u32 v{d}, v{rr}, 4, v{d}")
        a(f"v_lshl_add_u32 v{d}, s6, 1, v{d}")
    nbase = (A_LDS0 + 65535) // 65536
    vb = [[a.v() for _ in range(nbase)] for _ in range(PER)]
    a(f"v_bfe_u32 v{t0}, v0, 2, 3")
    a(f"v_bfe_u32 v{t1}, v0, 5, 1")
    a(f"v_lshl_add_u32 v{t1}, v{t1}, 4, v{t0}")
    a(f"v_mul_u32_u24 v{t1}, {NT * 32}, v{t1}")
    a(f"v_and_b32 v{t2}, 3, v0")
    a(f"v_lshl_add_u32 v{t1}, v{t2}, 3, v{t1}")
    swz(t0, t0)
    for tp in range(PER):
        if PER > 1:
            a(f"v_xor_b32 v{t2}, {tp}, v{t0}")
            a(f"v_lshl_add_u32 v{vb[tp][0]}, v{t2}, 5, v{t1}")
        else:
            a(f"v_mov_b32 v{vb[0][0]}, v{t1}")
        for i in range(1, nbase):
            a(f"v_add_u32 v{vb[tp][i]}, {65536 * i}, v{vb[tp][0]}")
    if ln:
        NX = (NT + W - 1) // W
        vbx = [[a.v() for _ in range(nbase)] for _ in range(NX)]
        for x in range(NX):
            a(f"s_add_u32 s9, s7, {x * W}")
            a(f"s_min_u32 s9, s9, {NT - 1}")
            if PER > 1:
                a(f"v_xor_b32 v{t2}, s9, v{t0}")
            else:
                a(f"v_mov_b32 v{t2}, s9")
            a(f"v_lshl_add_u32 v{vbx[x][0]}, v{t2}, 5, v{t1}")
            for i in range(1, nbase):
                a(f"v_add_u32 v{vbx[x][i]}, {65536 * i}, v{vbx[x][0]}")
        vones = a.v(4, 4)
        for i in range(4):
            a(f"v_mov_b32 v{vones + i}, 0x3f803f80")
        vsum = [a.v() for _ in range(MT)]
        vsq = [a.v() for _ in range(MT)]
        for mt in range(MT):
            a(f"v_mov_b32 v{vsum[mt]}, 0")
            a(f"v_mov_b32 v{vsq[mt]}, 0")
        acs = [a.v(4, 4) for _ in range(NX)]
        if stats_src is None:
            accs = [a.v(4, 4) for _ in range(MT)]
            accq = [a.v(4, 4) for _ in range(MT)]
            for mt in range(MT):
                for i in range(4):
                    a(f"v_mov_b32 v{accs[mt] + i}, 0")
                    a(f"v_mov_b32 v{accq[mt] + i}, 0")
    acc = [[a.v(4, 4) for _ in range(NT)] for _ in range(MT)]
    if a_lds:
        areg = [[a.v(4, 4) for _ in range(MT)] for _ in range(4)]
    else:
        areg = [[[a.v(4, 4) for _ in range(MT)] for _ in range(CH)] for _ in range(RA)]
    a("s_waitcnt lgkmcnt(0)")
    stamp(a, st)
    aptr, aoff, asize = a_src
    srd(a, SA, aptr, aoff, asize)
    srd(a, SB, b_ptr, 0, b_size)
    pfl = []
    if pf is not None:
        PSTEP = W * 64 * 128
        vpd = a.v()
        vp7 = a.v()
        a(f"v_lshlrev_b32 v{vp7}, 7, v0")
        for (pptr, pbytes, pstart, plen) in pf:
            pper = (plen // 32 + 127) // 128 * 128
            npf = (pper + PSTEP - 1) // PSTEP
            for i in range(npf):
                lines = [f"s_mov_b32 s96, s{pptr}", f"s_and_b32 s97, s{pptr + 1}, 0xffff", f"s_mov_b32 s98, {min(pbytes, pstart + plen)}",
                         "s_mov_b32 s99, 0x00020000", "s_lshr_b32 s10, s2, 3", f"s_mul_i32 s10, s10, {pper}",
                         f"s_add_u32 s10, s10, {pstart + i * PSTEP}", f"buffer_load_dword v{vpd}, v{vp7}, s[96:99], s10 offen"]
                pfl.append((lines, 'p'))
    vm = []
    ctxs = [dict(a=a, NT=NT, vrow=vrow[mt], vg=vg, vr16=vr16, vl=vl, t=(t0, t1, t2, t3), acc=acc[mt], vm=vm,
                 name=name, stile=64 + mt, mt=mt) for mt in range(MT)]
    epis = [epi() for _ in range(MT)]
    pend = []

    def queue_chunk(c):
        slot = c % ring
        if a_lds:
            for i in range(2 * MT):
                pend.append(([f"s_mov_b32 s10, {i * 8 * K * 2 + c * 128}",
                              f"s_add_u32 m0, s15, {A_LDS0 + slot * ASLOT + i * 1024}",
                              "s_nop 0",
                              f"buffer_load_dwordx4 v{vaoff[0]}, s[{SA}:{SA + 3}], s10 offen lds"], c))
        else:
            for s in range(CH):
                ks = c * CH + s
                for mt in range(MT):
                    vo = vaoff[mt][ks // 5] if shift else vaoff[mt]
                    pend.append(([f"s_mov_b32 s10, {c * CH * 1024}",
                                  f"buffer_load_dwordx4 {vr(areg[c % RA][s][mt], 4)}, v{vo}, s[{SA}:{SA + 3}], s10 offen offset:{s * 1024}"], c))
        for p in range(RPC):
            pend.append(([f"s_mov_b32 s10, {c * CH * 32 * ldb}",
                          f"s_add_u32 m0, s8, {slot * BSLOT + p * W * 1024}",
                          "s_nop 0",
                          f"buffer_load_dwordx4 v{vdma[p]}, s[{SB}:{SB + 3}], s10 offen lds"], c))

    def emit_pending(n=1):
        for _ in range(n):
            if not pend:
                return
            lines, tag = pend.pop(0)
            for l in lines:
                a(l)
            vm.append(tag)

    if ring < NCH:
        assert LA <= ring - 2
    stamp(a, st)
    for c in range(min(LA, NCH)):
        queue_chunk(c)
        emit_pending(1000)
        if c == 0:
            for mt in range(MT):
                if stats_src is not None:
                    vst = a.v(4, 4)
                    srd(a, 60, P_WS, stats_src, S * 64)
                    a(f"v_lshlrev_b32 v{t0}, 6, v{vrow[mt]}")
                    a(f"v_lshl_add_u32 v{t0}, v{vg}, 4, v{t0}")
                    a(f"buffer_load_dwordx4 {vr(vst, 4)}, v{t0}, s[60:63], 0 offen")
                    vm.append('r')
                    ctxs[mt]['vst'] = vst
                epis[mt].pre(ctxs[mt])
    stamp(a, st)
    for mt in range(MT):
        for t in range(NT):
            for i in range(4):
                a(f"v_mov_b32 v{acc[mt][t] + i}, 0")
    if ln:
        for x in range(NX):
            for i in range(4):
                a(f"v_mov_b32 v{acs[x] + i}, 0")

    def wait_chunk(c):
        last = max(i for i, tg in enumerate(vm) if isinstance(tg, int) and tg <= c)
        n = min(63, len(vm) - 1 - last)
        a(f"s_waitcnt vmcnt({n})")

    units = []
    for ks in range(KS):
        for t in range(NT):
            units.append((ks, t))
        if ln:
            for x in range(NX):
                units.append((ks, ('x', x)))
    NB = PD + 2
    breg = [a.v(4, 4) for _ in range(NB)]
    nrd = []

    def issue_read(i):
        ks, t = units[i]
        c = ks // CH
        slot = c % ring
        n = 0
        if a_lds and t == 0:
            for mt in range(MT):
                o = A_LDS0 + slot * ASLOT + mt * 2048
                a(f"ds_read_b128 {vr(areg[ks % 4][mt], 4)}, v{vard[ks % 2][o // 65536]} offset:{o % 65536}")
                n += 1
        off = slot * BSLOT + (ks % CH) * NT * 1024
        if isinstance(t, tuple):
            base = vbx[t[1]]
        else:
            base = vb[t % PER]
            off += (t - t % PER) * 32
        r = breg[i % NB]
        for h in range(2):
            o = off + h * 8 * NT * 32
            a(f"ds_read_b64_tr_b16 {vr(r + 2 * h, 2)}, v{base[o // 65536]} offset:{o % 65536}")
            n += 1
        nrd.append(n)

    nread = 0

    def advance_reads(upto):
        nonlocal nread
        while nread < min(upto, len(units)):
            ks, t = units[nread]
            if t == 0 and ks % CH == 0:
                c = ks // CH
                emit_pending(1000)
                wait_chunk(c)
                a("s_barrier")
                if NCH <= 5:
                    stamp(a, st)
                if c + LA < NCH:
                    queue_chunk(c + LA)
                elif c + LA == NCH and pf is not None and not os.environ.get("PFEND"):
                    pend.extend(pfl)
            issue_read(nread)
            nread += 1

    for i, (ks, t) in enumerate(units):
        advance_reads(i + PD + 1)
        ahead = sum(nrd[i + 1:nread])
        assert ahead <= 15
        a(f"s_waitcnt lgkmcnt({ahead})")
        c = ks // CH
        b = breg[i % NB]
        if isinstance(t, tuple):
            x = t[1]
            a(f"v_mfma_f32_16x16x32_bf16 {vr(acs[x], 4)}, {vr(b, 4)}, {vr(vones, 4)}, {vr(acs[x], 4)}")
        else:
            for mt in range(MT):
                ar = areg[ks % 4][mt] if a_lds else areg[c % RA][ks % CH][mt]
                a(f"v_mfma_f32_16x16x32_bf16 {vr(acc[mt][t], 4)}, {vr(b, 4)}, {vr(ar, 4)}, {vr(acc[mt][t], 4)}")
            if ln and t < 2 * MT and stats_src is None:
                mt = t // 2
                ar = areg[ks % 4][mt] if a_lds else areg[c % RA][ks % CH][mt]
                if t % 2 == 0:
                    a(f"v_mfma_f32_16x16x32_bf16 {vr(accs[mt], 4)}, {vr(vones, 4)}, {vr(ar, 4)}, {vr(accs[mt], 4)}")
                else:
                    a(f"v_mfma_f32_16x16x32_bf16 {vr(accq[mt], 4)}, {vr(ar, 4)}, {vr(ar, 4)}, {vr(accq[mt], 4)}")
        emit_pending(1)
    stamp(a, st)
    a("s_nop 7")
    a("s_nop 1")
    if ln:
        a("s_barrier")
        a(f"v_lshlrev_b32 v{t0}, 4, v{vg}")
        for x in range(NX):
            a(f"s_add_u32 s9, s7, {x * W}")
            a(f"s_min_u32 s9, s9, {NT - 1}")
            a("s_lshl_b32 s9, s9, 6")
            a(f"v_add_u32 v{t1}, s9, v{t0}")
            a(f"ds_write_b128 v{t1}, {vr(acs[x], 4)}")
        for mt in range(MT):
            if stats_src is not None:
                vst = ctxs[mt]['vst']
                a(f"v_add_f32 v{vsum[mt]}, v{vst}, v{vst + 2}")
                a(f"v_add_f32 v{vsq[mt]}, v{vst + 1}, v{vst + 3}")
                reduce_g(a, vsum[mt], t2)
                reduce_g(a, vsq[mt], t2)
            else:
                a(f"v_mov_b32 v{vsum[mt]}, v{accs[mt]}")
                a(f"v_and_b32 v{t2}, 3, v{vr16}")
                a(f"v_mov_b32 v{t3}, v{accq[mt]}")
                for i in range(1, 4):
                    a(f"v_cmp_eq_u32 vcc, {i}, v{t2}")
                    a("s_nop 1")
                    a(f"v_cndmask_b32 v{t3}, v{t3}, v{accq[mt] + i}, vcc")
                a(f"v_lshrrev_b32 v{t2}, 2, v{vr16}")
                a(f"v_lshl_add_u32 v{t2}, v{t2}, 4, v{vr16}")
                a(f"v_lshlrev_b32 v{t2}, 2, v{t2}")
                a(f"ds_bpermute_b32 v{vsq[mt]}, v{t2}, v{t3}")
        a("s_waitcnt lgkmcnt(0)")
        a("s_barrier")
        vcs = {}
        pool = list(breg)
        for x_ in areg:
            for y_ in x_:
                pool += (y_ if isinstance(y_, list) else [y_])
        for t in range(NT):
            vcs[t] = pool[t]
            a(f"ds_read_b128 {vr(vcs[t], 4)}, v{t0} offset:{t * 64}")

        def ln_stats(mean, var, mb, sqb):
            bf16r(a, mb, mean)
            bf16r(a, sqb, var)
            a(f"v_add_f32 v{sqb}, s9, v{sqb}")
            bf16r(a, sqb, sqb)
            a(f"v_sqrt_f32 v{sqb}, v{sqb}")
            a("s_nop 0")
            bf16r(a, sqb, sqb)

        vab = []
        for mt in range(MT):
            vmean, vvar, vmb, vsqb, va, vbb = vsum[mt], vsq[mt], a.v(), a.v(), a.v(), a.v()
            a(f"s_mov_b32 s9, {f32bits(1.0 / K):#x}")
            a(f"v_mul_f32 v{vmean}, s9, v{vmean}")
            a(f"v_mul_f32 v{vvar}, s9, v{vvar}")
            a(f"v_fma_f32 v{vvar}, -v{vmean}, v{vmean}, v{vvar}")
            a(f"v_max_f32 v{vvar}, 0, v{vvar}")
            a(f"s_mov_b32 s9, {f32bits(1e-5):#x}")
            ln_stats(vmean, vvar, vmb, vsqb)
            a(f"v_rcp_f32 v{va}, v{vsqb}")
            a("s_nop 0")
            a(f"v_mul_f32 v{vbb}, v{vmb}, v{va}")
            a(f"v_sub_f32 v{vbb}, 0, v{vbb}")
            if ln == 2:
                m2, s2 = a.v(), a.v()
                a(f"v_sub_f32 v{t2}, v{vmean}, v{vmb}")
                a(f"v_mul_f32 v{t2}, v{t2}, v{va}")
                a(f"v_mul_f32 v{t3}, v{vvar}, v{va}")
                a(f"v_mul_f32 v{t3}, v{t3}, v{va}")
                ln_stats(t2, t3, m2, s2)
                a(f"v_rcp_f32 v{s2}, v{s2}")
                a("s_nop 0")
                a(f"v_sub_f32 v{vbb}, v{vbb}, v{m2}")
                a(f"v_mul_f32 v{vbb}, v{vbb}, v{s2}")
                a(f"v_mul_f32 v{va}, v{va}, v{s2}")
            vab.append((va, vbb))
        a("s_waitcnt lgkmcnt(0)")
        for mt in range(MT):
            va, vbb = vab[mt]
            a(f"v_mov_b32 v{t0}, v{va}")
            a(f"v_mov_b32 v{t1}, v{va}")
            a(f"v_mov_b32 v{t2}, v{vbb}")
            a(f"v_mov_b32 v{t3}, v{vbb}")
            for t in range(NT):
                for i in (0, 2):
                    r = vr(acc[mt][t] + i, 2)
                    a(f"v_pk_mul_f32 {r}, {r}, {vr(t0, 2)}")
                    a(f"v_pk_fma_f32 {r}, {vr(vcs[t] + i, 2)}, {vr(t2, 2)}, {r}")
    for mt in range(MT):
        epis[mt].post(ctxs[mt])
    if pf is not None and os.environ.get("PFEND"):
        pass
    if STAMP:
        a("s_waitcnt vmcnt(0)")
    stamp(a, st)
    stamp_flush(a, st, name)
    a.label(f"{name}_end")
    a("s_endpgm")
    assert a.maxv <= 256, a.maxv
    return a, lds_bytes, NWG, 64 * W


class EpiQKV:
    def pre(self, c):
        a = c['a']
        srd(a, 48, P_WS, WS_Q, 3 * ACT_BYTES)
        self.vo = tiled_offset(c, 60)

    def post(self, c):
        a, NT, acc = c['a'], c['NT'], c['acc']
        for t in range(NT):
            a(f"v_cvt_pk_bf16_f32 v{acc[t]}, v{acc[t]}, v{acc[t] + 1}")
            a(f"v_cvt_pk_bf16_f32 v{acc[t] + 1}, v{acc[t] + 2}, v{acc[t] + 3}")
            a(f"buffer_store_dwordx2 {vr(acc[t], 2)}, v{self.vo}, s[48:51], 0 offen offset:{t * 512}")


def out_offset(c, ld):
    a = c['a']
    vo = a.v()
    a(f"v_mul_u32_u24 v{vo}, {ld}, v{c['vrow']}")
    a(f"v_lshl_add_u32 v{vo}, v{c['vg']}, 3, v{vo}")
    a(f"v_lshl_add_u32 v{vo}, s6, 1, v{vo}")
    return vo


def reduce_g(a, vv, tmp):
    a(f"v_mov_b32 v{tmp}, v{vv}")
    a("s_nop 1")
    a(f"v_permlane16_swap_b32 v{vv}, v{tmp}")
    a("s_nop 1")
    a(f"v_add_f32 v{vv}, v{vv}, v{tmp}")
    a(f"v_mov_b32 v{tmp}, v{vv}")
    a("s_nop 1")
    a(f"v_permlane32_swap_b32 v{vv}, v{tmp}")
    a("s_nop 1")
    a(f"v_add_f32 v{vv}, v{vv}, v{tmp}")


class StatOut:
    def __init__(self, c, off):
        a = c['a']
        self.c, self.off = c, off
        self.s = a.v(2, 2)
        a(f"v_mov_b32 v{self.s}, 0")
        a(f"v_mov_b32 v{self.s + 1}, 0")

    def add_packed(self, pk, t0, t1):
        a = self.c['a']
        unpack2(a, t0, t1, pk)
        a(f"v_add_f32 v{self.s}, v{self.s}, v{t0}")
        a(f"v_fmac_f32 v{self.s + 1}, v{t0}, v{t0}")
        a(f"v_add_f32 v{self.s}, v{self.s}, v{t1}")
        a(f"v_fmac_f32 v{self.s + 1}, v{t1}, v{t1}")

    def finish(self):
        c = self.c
        a = c['a']
        t0, t1, t2, t3 = c['t']
        reduce_g(a, self.s, t0)
        reduce_g(a, self.s + 1, t0)
        srd(a, 60, P_WS, self.off, S * 64)
        a(f"v_lshlrev_b32 v{t0}, 6, v{c['vrow']}")
        a("s_lshl_b32 s9, s4, 3")
        a(f"v_add_u32 v{t0}, s9, v{t0}")
        a("s_mov_b32 s9, 0x80000000")
        a(f"v_mov_b32 v{t1}, s9")
        a(f"v_cmp_eq_u32 vcc, 0, v{c['vg']}")
        a("s_nop 1")
        a(f"v_cndmask_b32 v{t0}, v{t1}, v{t0}, vcc")
        a(f"buffer_store_dwordx2 {vr(self.s, 2)}, v{t0}, s[60:63], 0 offen")


def tiled_offset(c, ks_out):
    a = c['a']
    t0 = c['t'][0]
    vo = a.v()
    a(f"s_mul_i32 s9, s{c['stile']}, {ks_out * 1024}")
    a("s_lshl_b32 s14, s6, 5")
    a("s_add_u32 s9, s9, s14")
    a(f"v_lshrrev_b32 v{t0}, 1, v{c['vg']}")
    a(f"v_lshl_add_u32 v{t0}, v{t0}, 4, v{c['vr16']}")
    a(f"v_lshlrev_b32 v{vo}, 4, v{t0}")
    a(f"v_and_b32 v{t0}, 1, v{c['vg']}")
    a(f"v_lshl_add_u32 v{vo}, v{t0}, 3, v{vo}")
    a(f"v_add_u32 v{vo}, s9, v{vo}")
    return vo


def unpack2(a, lo, hi, src):
    if lo == src:
        a(f"v_and_b32 v{hi}, 0xffff0000, v{src}")
        a(f"v_lshlrev_b32 v{lo}, 16, v{src}")
    else:
        a(f"v_lshlrev_b32 v{lo}, 16, v{src}")
        a(f"v_and_b32 v{hi}, 0xffff0000, v{src}")


class EpiResid:
    def __init__(self, res_ptr, res_off, out_ptr, out_off):
        self.r = (res_ptr, res_off)
        self.o = (out_ptr, out_off)

    def pre(self, c):
        a, NT = c['a'], c['NT']
        srd(a, 48, self.o[0], self.o[1], ACT_BYTES)
        srd(a, 52, self.r[0], self.r[1], ACT_BYTES)
        self.vr = out_offset(c, D * 2)
        self.vo = tiled_offset(c, 20)
        self.res = [a.v(2, 2) for _ in range(NT)]
        for t in range(NT):
            a(f"buffer_load_dwordx2 {vr(self.res[t], 2)}, v{self.vr}, s[52:55], 0 offen offset:{t * 32}")
            c['vm'].append('r')

    def post(self, c):
        a, NT, acc = c['a'], c['NT'], c['acc']
        t0, t1, t2, t3 = c['t']
        so = StatOut(c, WS_STH)
        for t in range(NT):
            for hh in range(2):
                a(f"v_cvt_pk_bf16_f32 v{t0}, v{acc[t] + 2 * hh}, v{acc[t] + 2 * hh + 1}")
                unpack2(a, t1, t2, t0)
                unpack2(a, t0, t3, self.res[t] + hh)
                a(f"v_add_f32 v{t1}, v{t1}, v{t0}")
                a(f"v_add_f32 v{t2}, v{t2}, v{t3}")
                a(f"v_cvt_pk_bf16_f32 v{acc[t] + hh}, v{t1}, v{t2}")
                so.add_packed(acc[t] + hh, t0, t1)
            a(f"buffer_store_dwordx2 {vr(acc[t], 2)}, v{self.vo}, s[48:51], 0 offen offset:{t * 512}")
        so.finish()


GC1 = -2.0 * math.log2(math.e) * math.sqrt(2.0 / math.pi)
GC3 = GC1 * 0.044715


class EpiGelu:
    def __init__(self, out_off, ld, size):
        self.out_off, self.ld, self.size = out_off, ld, size

    def pre(self, c):
        a = c['a']
        srd(a, 48, P_WS, self.out_off, self.size)
        self.vo = tiled_offset(c, self.ld // 64)
        self.vc1 = a.v(6, 2)
        for i, cv in enumerate((GC1, GC1, GC3, GC3, 1.0, 1.0)):
            a(f"v_mov_b32 v{self.vc1 + i}, {f32bits(cv):#x}")

    def post(self, c):
        a, NT, acc = c['a'], c['NT'], c['acc']
        tt = c['t']
        for t in range(NT):
            r = [acc[t] + i for i in range(4)]
            a(f"v_cvt_pk_bf16_f32 v{tt[0]}, v{r[0]}, v{r[1]}")
            a(f"v_cvt_pk_bf16_f32 v{tt[1]}, v{r[2]}, v{r[3]}")
            unpack2(a, r[0], r[1], tt[0])
            unpack2(a, r[2], r[3], tt[1])
            for i in (0, 2):
                a(f"v_pk_mul_f32 {vr(tt[i], 2)}, {vr(r[i], 2)}, {vr(r[i], 2)}")
            for i in (0, 2):
                a(f"v_pk_fma_f32 {vr(tt[i], 2)}, {vr(tt[i], 2)}, {vr(self.vc1 + 2, 2)}, {vr(self.vc1, 2)}")
            for i in (0, 2):
                a(f"v_pk_mul_f32 {vr(tt[i], 2)}, {vr(tt[i], 2)}, {vr(r[i], 2)}")
            for i in range(4):
                a(f"v_exp_f32 v{tt[i]}, v{tt[i]}")
            a("s_nop 0")
            for i in (0, 2):
                a(f"v_pk_add_f32 {vr(tt[i], 2)}, {vr(tt[i], 2)}, {vr(self.vc1 + 4, 2)}")
            for i in range(4):
                a(f"v_rcp_f32 v{tt[i]}, v{tt[i]}")
            a("s_nop 0")
            for i in (0, 2):
                a(f"v_pk_mul_f32 {vr(r[i], 2)}, {vr(r[i], 2)}, {vr(tt[i], 2)}")
            a(f"v_cvt_pk_bf16_f32 v{acc[t]}, v{acc[t]}, v{acc[t] + 1}")
            a(f"v_cvt_pk_bf16_f32 v{acc[t] + 1}, v{acc[t] + 2}, v{acc[t] + 3}")
            a(f"buffer_store_dwordx2 {vr(acc[t], 2)}, v{self.vo}, s[48:51], 0 offen offset:{t * 512}")


class EpiX1:
    def pre(self, c):
        a, NT = c['a'], c['NT']
        srd(a, 48, P_WS, WS_X1, ACT_BYTES)
        srd(a, 52, P_WS, WS_H, ACT_BYTES)
        self.vo = tiled_offset(c, 20)
        self.res = [a.v(2, 2) for _ in range(NT)]
        for t in range(NT):
            a(f"buffer_load_dwordx2 {vr(self.res[t], 2)}, v{self.vo}, s[52:55], 0 offen offset:{t * 512}")
            c['vm'].append('r')

    def post(self, c):
        a, NT, acc = c['a'], c['NT'], c['acc']
        t0, t1, t2, t3 = c['t']
        vst = c['vst']
        mb, rs = vst, vst + 1
        a(f"v_add_f32 v{vst}, v{vst}, v{vst + 2}")
        a(f"v_add_f32 v{vst + 1}, v{vst + 1}, v{vst + 3}")
        reduce_g(a, vst, t0)
        reduce_g(a, vst + 1, t0)
        a(f"s_mov_b32 s9, {f32bits(1.0 / D):#x}")
        a(f"v_mul_f32 v{vst}, s9, v{vst}")
        a(f"v_mul_f32 v{vst + 1}, s9, v{vst + 1}")
        a(f"v_fma_f32 v{vst + 1}, -v{vst}, v{vst}, v{vst + 1}")
        a(f"v_max_f32 v{vst + 1}, 0, v{vst + 1}")
        a(f"s_mov_b32 s9, {f32bits(1e-5):#x}")
        bf16r(a, mb, mb)
        bf16r(a, rs, rs)
        a(f"v_add_f32 v{rs}, s9, v{rs}")
        bf16r(a, rs, rs)
        a(f"v_sqrt_f32 v{rs}, v{rs}")
        a("s_nop 0")
        bf16r(a, rs, rs)
        a(f"v_rcp_f32 v{rs}, v{rs}")
        so = StatOut(c, WS_STX)
        for t in range(NT):
            for hh in range(2):
                unpack2(a, t0, t1, self.res[t] + hh)
                a(f"v_sub_f32 v{t0}, v{t0}, v{mb}")
                a(f"v_sub_f32 v{t1}, v{t1}, v{mb}")
                a(f"v_cvt_pk_bf16_f32 v{t0}, v{t0}, v{t1}")
                unpack2(a, t0, t1, t0)
                a(f"v_mul_f32 v{t0}, v{t0}, v{rs}")
                a(f"v_mul_f32 v{t1}, v{t1}, v{rs}")
                a(f"v_cvt_pk_bf16_f32 v{t0}, v{t0}, v{t1}")
                unpack2(a, t0, t1, t0)
                a(f"v_cvt_pk_bf16_f32 v{t2}, v{acc[t] + 2 * hh}, v{acc[t] + 2 * hh + 1}")
                unpack2(a, t2, t3, t2)
                a(f"v_add_f32 v{t0}, v{t0}, v{t2}")
                a(f"v_add_f32 v{t1}, v{t1}, v{t3}")
                a(f"v_cvt_pk_bf16_f32 v{acc[t] + hh}, v{t0}, v{t1}")
                so.add_packed(acc[t] + hh, t0, t1)
            a(f"buffer_store_dwordx2 {vr(acc[t], 2)}, v{self.vo}, s[48:51], 0 offen offset:{t * 512}")
        so.finish()


class EpiFinal:
    def pre(self, c):
        a, NT = c['a'], c['NT']
        srd(a, 48, P_OUT, 0, ACT_BYTES)
        srd(a, 52, P_WS, WS_H, ACT_BYTES)
        srd(a, 56, P_WS, WS_X1, ACT_BYTES)
        self.vo = out_offset(c, D * 2)
        self.vt = tiled_offset(c, 20)
        self.h = [a.v(2, 2) for _ in range(NT)]
        self.x = [a.v(2, 2) for _ in range(NT)]
        for t in range(NT):
            a(f"buffer_load_dwordx2 {vr(self.h[t], 2)}, v{self.vt}, s[52:55], 0 offen offset:{t * 512}")
            c['vm'].append('r')
            a(f"buffer_load_dwordx2 {vr(self.x[t], 2)}, v{self.vt}, s[56:59], 0 offen offset:{t * 512}")
            c['vm'].append('r')

    def post(self, c):
        a, NT, acc = c['a'], c['NT'], c['acc']
        t0, t1, t2, t3 = c['t']
        for t in range(NT):
            for hh in range(2):
                a(f"v_cvt_pk_bf16_f32 v{t0}, v{acc[t] + 2 * hh}, v{acc[t] + 2 * hh + 1}")
                unpack2(a, t0, t1, t0)
                unpack2(a, t2, t3, self.x[t] + hh)
                a(f"v_add_f32 v{t0}, v{t0}, v{t2}")
                a(f"v_add_f32 v{t1}, v{t1}, v{t3}")
                a(f"v_cvt_pk_bf16_f32 v{t0}, v{t0}, v{t1}")
                unpack2(a, t0, t1, t0)
                unpack2(a, t2, t3, self.h[t] + hh)
                a(f"v_add_f32 v{t0}, v{t0}, v{t2}")
                a(f"v_add_f32 v{t1}, v{t1}, v{t3}")
                a(f"v_cvt_pk_bf16_f32 v{acc[t] + hh}, v{t0}, v{t1}")
            a(f"buffer_store_dwordx2 {vr(acc[t], 2)}, v{self.vo}, s[48:51], 0 offen offset:{t * 32}")


def gen_attn(name):
    a = Asm()
    W = 8
    PK = 8192
    PV = 8192 + 128
    L_K = 0
    L_BIAS = 3 * PK
    L_V = 4 * PK
    L_ONE = L_V + 3 * PV
    lds_bytes = L_ONE + 8192
    a("s_cmp_ge_u32 s2, 256")
    a(f"s_cbranch_scc1 {name}_end")
    st = [0]
    stamp(a, st)
    load_kernargs(a)
    a("s_and_b32 s4, s2, 7")
    a("s_lshr_b32 s3, s2, 3")
    a("s_lshl_b32 s4, s4, 2")
    a("s_and_b32 s5, s3, 3")
    a("s_add_u32 s4, s4, s5")
    a("s_lshr_b32 s3, s3, 2")
    a("s_lshl_b32 s5, s3, 8")
    vw, vl, vr16, vg = a.v(), a.v(), a.v(), a.v()
    t0, t1, t2, t3 = a.v(), a.v(), a.v(), a.v()
    a(f"v_lshrrev_b32 v{vw}, 6, v0")
    a(f"v_and_b32 v{vl}, 63, v0")
    a(f"v_and_b32 v{vr16}, 15, v0")
    a(f"v_bfe_u32 v{vg}, v0, 4, 2")
    a("s_nop 0")
    a(f"v_readfirstlane_b32 s7, v{vw}")
    a("s_lshl_b32 s8, s7, 10")
    a("s_mul_i32 s6, s4, 20")
    a("s_lshr_b32 s6, s6, 3")
    a("s_lshl_b32 s6, s6, 8")
    a("s_and_b32 s66, s4, 1")
    a("s_sub_u32 s9, s5, 256")
    a("s_mov_b32 s12, 0x80000000")
    a(f"v_add_u32 v{t1}, s9, v0")
    a(f"v_ashrrev_i32 v{t2}, 4, v{t1}")
    a(f"v_mul_i32_i24 v{t2}, 61440, v{t2}")
    a(f"v_lshl_add_u32 v{t2}, v{vr16}, 4, v{t2}")
    a(f"v_cmp_gt_i32 vcc, 0, v{t1}")
    a(f"v_mov_b32 v{t3}, s12")
    a("s_nop 1")
    a(f"v_cndmask_b32 v{t2}, v{t2}, v{t3}, vcc")
    a("s_waitcnt lgkmcnt(0)")
    srd(a, 40, P_WS, WS_Q, 3 * ACT_BYTES)
    srd(a, 52, P_WS, WS_O, ACT_BYTES)
    a("s_cmp_ge_u32 s2, 32")
    a(f"s_cbranch_scc1 {name}_nz")
    srd(a, 56, P_WS, WS_CNT, 32 * 256)
    a("s_lshl_b32 s10, s2, 8")
    a(f"v_mov_b32 v{t0}, 0")
    a(f"buffer_store_dword v{t0}, v{t0}, s[56:59], s10 offen")
    a.label(f"{name}_nz")
    for sec, base, pitch in ((1, L_K, PK), (2, L_V, PV)):
        for g in range(3):
            a(f"s_add_u32 s10, s6, {sec * 80 * 256 + g * 256}")
            a(f"s_add_u32 m0, s8, {base + g * pitch}")
            a("s_nop 0")
            a(f"buffer_load_dwordx4 v{t2}, s[40:43], s10 offen lds")
    vz = a.v(4, 4)
    a(f"v_mov_b32 v{vz}, 0")
    a(f"v_mov_b32 v{t3}, 0xf149")
    a(f"v_cndmask_b32 v{vz}, v{vz}, v{t3}, vcc")
    a(f"v_mov_b32 v{vz + 1}, 0")
    a(f"v_mov_b32 v{vz + 2}, 0")
    a(f"v_mov_b32 v{vz + 3}, 0")
    a(f"v_lshlrev_b32 v{t0}, 4, v0")
    a(f"ds_write_b128 v{t0}, {vr(vz, 4)} offset:{L_BIAS}")
    a(f"v_mov_b32 v{vz}, 0x3f80")
    a(f"ds_write_b128 v{t0}, {vr(vz, 4)} offset:{L_ONE}")
    vq = [a.v(4, 4) for _ in range(2)]
    vtok = a.v()
    a(f"v_lshl_add_u32 v{vtok}, v{vw}, 5, v{vr16}")
    a(f"v_add_u32 v{vtok}, s5, v{vtok}")
    a(f"v_lshrrev_b32 v{t0}, 4, v{vtok}")
    a(f"v_mul_u32_u24 v{t0}, 61440, v{t0}")
    a(f"v_lshl_add_u32 v{t0}, v{vr16}, 4, v{t0}")
    a(f"v_lshl_add_u32 v{t0}, v{vg}, 8, v{t0}")
    a(f"v_mov_b32 v{t3}, s12")
    a(f"v_cmp_gt_u32 vcc, 3, v{vg}")
    a("s_nop 1")
    a(f"v_cndmask_b32 v{t1}, v{t3}, v{t0}, vcc")
    for qt in range(2):
        a(f"s_add_u32 s10, s6, {qt * 61440}")
        a(f"buffer_load_dwordx4 {vr(vq[qt], 4)}, v{t1}, s[40:43], s10 offen")
    mfirst = a.v(4, 4)
    mlast = a.v(4, 4)
    a(f"v_mov_b32 v{t3}, 0xf149f2ca")
    a(f"v_lshlrev_b32 v{t0}, 2, v{vg}")
    for r in range(4):
        a(f"v_add_u32 v{t1}, {r}, v{t0}")
        a(f"v_cmp_gt_u32 vcc, v{t1}, v{vr16}")
        a("s_nop 1")
        a(f"v_cndmask_b32 v{mfirst + r}, v{t3}, 0, vcc")
        a(f"v_cndmask_b32 v{mlast + r}, 0, v{t3}, vcc")
    vka = a.v()
    a(f"v_lshlrev_b32 v{t0}, 4, v{vr16}")
    a(f"v_lshl_add_u32 v{t0}, v{vw}, 9, v{t0}")
    a(f"v_mul_u32_u24 v{t1}, {PK}, v{vg}")
    a(f"v_add_u32 v{vka}, v{t0}, v{t1}")
    vva = a.v()
    vvb = a.v()
    vvs = a.v()
    a(f"v_bfe_u32 v{t0}, v0, 2, 2")
    a(f"v_lshl_add_u32 v{t0}, v{vg}, 2, v{t0}")
    a(f"v_lshl_add_u32 v{t0}, v{vw}, 5, v{t0}")
    a(f"v_lshlrev_b32 v{t0}, 4, v{t0}")
    a(f"v_add_u32 v{t0}, {L_V}, v{t0}")
    a(f"v_and_b32 v{t1}, 3, v0")
    a(f"v_add_u32 v{t2}, s66, v{t1}")
    a(f"v_lshrrev_b32 v{t3}, 1, v{t2}")
    a(f"v_mul_u32_u24 v{t3}, {PV}, v{t3}")
    a(f"v_and_b32 v{t2}, 1, v{t2}")
    a(f"v_lshl_add_u32 v{t3}, v{t2}, 3, v{t3}")
    a(f"v_add_u32 v{vva}, v{t0}, v{t3}")
    a("s_lshl_b32 s67, s66, 3")
    a(f"s_add_u32 s67, s67, {2 * PV}")
    a(f"v_add_u32 v{vvb}, s67, v{t0}")
    a(f"v_cmp_eq_u32 vcc, 1, v{t1}")
    a(f"v_add_u32 v{t3}, {L_ONE - L_V}, v{t0}")
    a("s_nop 0")
    a(f"v_cndmask_b32 v{vvb}, v{vvb}, v{t3}, vcc")
    CS = (DH ** -0.5) * math.log2(math.e)
    a(f"s_mov_b32 s13, {f32bits(CS):#x}")
    stamp(a, st)
    a("s_waitcnt vmcnt(0) lgkmcnt(0)")
    stamp(a, st)
    a(f"v_cmp_eq_u32 vcc, 3, v{vg}")
    a(f"v_mov_b32 v{t3}, 0x3f80")
    a("s_nop 0")
    for qt in range(2):
        a(f"v_cndmask_b32 v{vq[qt]}, v{vq[qt]}, v{t3}, vcc")
    a("s_lshl_b32 s10, s66, 1")
    a("s_sub_u32 s10, 2, s10")
    a(f"v_cmp_eq_u32 vcc, s10, v{vg}")
    a("s_cmp_eq_u32 s66, 0")
    a(f"s_cbranch_scc1 {name}_even")
    for qt in range(2):
        a(f"v_cndmask_b32 v{vq[qt]}, v{vq[qt]}, 0, vcc")
        a(f"v_cndmask_b32 v{vq[qt] + 1}, v{vq[qt] + 1}, 0, vcc")
    a(f"s_branch {name}_qdone")
    a.label(f"{name}_even")
    for qt in range(2):
        a(f"v_cndmask_b32 v{vq[qt] + 2}, v{vq[qt] + 2}, 0, vcc")
        a(f"v_cndmask_b32 v{vq[qt] + 3}, v{vq[qt] + 3}, 0, vcc")
    a.label(f"{name}_qdone")
    a("s_barrier")
    srd(a, 96, P_W1, 0, 819200)
    vpd = a.v(4, 4)
    a("s_lshr_b32 s15, s2, 3")
    a("s_mul_i32 s15, s15, 25600")
    a(f"v_lshlrev_b32 v{t0}, 6, v0")
    a(f"v_add_u32 v{t0}, s15, v{t0}")
    a(f"buffer_load_dword v{vpd}, v{t0}, s[96:99], 0 offen")
    srd(a, 92, P_W2, 0, 819200)
    a(f"buffer_load_dword v{vpd + 1}, v{t0}, s[92:95], 0 offen")
    sreg = [a.v(4, 4) for _ in range(18)]
    kf = [a.v(4, 4) for _ in range(4)]
    vf = [a.v(4, 4) for _ in range(6)]
    oacc = [a.v(4, 4) for _ in range(2)]
    preg = [a.v(4, 4) for _ in range(9)]
    vtmp = a.v()
    vadr = a.v()
    vm_, vmc = a.v(), a.v()
    for qt in range(2):
        def kread(i):
            a(f"ds_read_b128 {vr(kf[i % 4], 4)}, v{vka} offset:{(qt + i) * 256}")
        for i in range(3):
            kread(i)
        for i in range(17):
            if i + 3 < 17:
                kread(i + 3)
            ahead = min(3, 16 - i)
            a(f"s_waitcnt lgkmcnt({ahead})")
            cop = vr(mfirst, 4) if i == 0 else (vr(mlast, 4) if i == 16 else "0")
            a(f"v_mfma_f32_16x16x32_bf16 {vr(sreg[i], 4)}, {vr(kf[i % 4], 4)}, {vr(vq[qt], 4)}, {cop}")
        a("s_nop 7")
        a("s_nop 1")
        stamp(a, st)
        vals = [sreg[i] + r for i in range(17) for r in range(4)]
        a(f"v_max3_f32 v{vm_}, v{vals[0]}, v{vals[1]}, v{vals[2]}")
        j = 3
        while j + 1 < len(vals):
            a(f"v_max3_f32 v{vm_}, v{vm_}, v{vals[j]}, v{vals[j + 1]}")
            j += 2
        if j < len(vals):
            a(f"v_max_f32 v{vm_}, v{vm_}, v{vals[j]}")
        a(f"v_mov_b32 v{vtmp}, v{vm_}")
        a("s_nop 1")
        a(f"v_permlane16_swap_b32 v{vm_}, v{vtmp}")
        a("s_nop 1")
        a(f"v_max_f32 v{vm_}, v{vm_}, v{vtmp}")
        a(f"v_mov_b32 v{vtmp}, v{vm_}")
        a("s_nop 1")
        a(f"v_permlane32_swap_b32 v{vm_}, v{vtmp}")
        a("s_nop 1")
        a(f"v_max_f32 v{vm_}, v{vm_}, v{vtmp}")
        a(f"v_mul_f32 v{vmc}, s13, v{vm_}")
        for p_ in range(2):
            k0_ = 16 * (qt + 2 * p_)
            a(f"ds_read_b64_tr_b16 {vr(vf[2 * p_], 2)}, v{vva} offset:{k0_ * 16}")
            a(f"ds_read_b64_tr_b16 {vr(vf[2 * p_] + 2, 2)}, v{vva} offset:{(k0_ + 16) * 16}")
            a(f"ds_read_b64_tr_b16 {vr(vf[2 * p_ + 1], 2)}, v{vvb} offset:{k0_ * 16}")
            a(f"ds_read_b64_tr_b16 {vr(vf[2 * p_ + 1] + 2, 2)}, v{vvb} offset:{(k0_ + 16) * 16}")
        for v in vals:
            a(f"v_fma_f32 v{v}, v{v}, s13, -v{vmc}")
        for v in vals:
            a(f"v_exp_f32 v{v}, v{v}")
        a("s_nop 0")
        for p in range(9):
            ta, tb = 2 * p, 2 * p + 1
            a(f"v_cvt_pk_bf16_f32 v{preg[p]}, v{sreg[ta]}, v{sreg[ta] + 1}")
            a(f"v_cvt_pk_bf16_f32 v{preg[p] + 1}, v{sreg[ta] + 2}, v{sreg[ta] + 3}")
            if tb < 17:
                a(f"v_cvt_pk_bf16_f32 v{preg[p] + 2}, v{sreg[tb]}, v{sreg[tb] + 1}")
                a(f"v_cvt_pk_bf16_f32 v{preg[p] + 3}, v{sreg[tb] + 2}, v{sreg[tb] + 3}")
            else:
                a(f"v_mov_b32 v{preg[p] + 2}, 0")
                a(f"v_mov_b32 v{preg[p] + 3}, 0")
        def vread(p):
            k0 = 16 * (qt + 2 * p)
            k1 = k0 + 16 if 2 * p + 1 < 17 else k0
            fa, fb = vf[(2 * p) % 6], vf[(2 * p + 1) % 6]
            a(f"ds_read_b64_tr_b16 {vr(fa, 2)}, v{vva} offset:{k0 * 16}")
            a(f"ds_read_b64_tr_b16 {vr(fa + 2, 2)}, v{vva} offset:{k1 * 16}")
            a(f"ds_read_b64_tr_b16 {vr(fb, 2)}, v{vvb} offset:{k0 * 16}")
            a(f"ds_read_b64_tr_b16 {vr(fb + 2, 2)}, v{vvb} offset:{k1 * 16}")
        stamp(a, st)
        for p in range(9):
            if p + 2 < 9:
                vread(p + 2)
            a(f"s_waitcnt lgkmcnt({4 * min(2, 8 - p)})")
            fa, fb = vf[(2 * p) % 6], vf[(2 * p + 1) % 6]
            c0 = "0" if p == 0 else vr(oacc[0], 4)
            c1 = "0" if p == 0 else vr(oacc[1], 4)
            a(f"v_mfma_f32_16x16x32_bf16 {vr(oacc[0], 4)}, {vr(fa, 4)}, {vr(preg[p], 4)}, {c0}")
            a(f"v_mfma_f32_16x16x32_bf16 {vr(oacc[1], 4)}, {vr(fb, 4)}, {vr(preg[p], 4)}, {c1}")
        a("s_nop 7")
        a("s_nop 1")
        a(f"v_lshlrev_b32 v{vtmp}, 2, v{vr16}")
        a(f"v_add_u32 v{vtmp}, 64, v{vtmp}")
        a(f"ds_bpermute_b32 v{vm_}, v{vtmp}, v{oacc[1]}")
        a("s_waitcnt lgkmcnt(0)")
        a(f"v_rcp_f32 v{vm_}, v{vm_}")
        a("s_nop 0")
        for r in range(4):
            a(f"v_mul_f32 v{oacc[0] + r}, v{oacc[0] + r}, v{vm_}")
            a(f"v_mul_f32 v{oacc[1] + r}, v{oacc[1] + r}, v{vm_}")
        a(f"v_cvt_pk_bf16_f32 v{oacc[0]}, v{oacc[0]}, v{oacc[0] + 1}")
        a(f"v_cvt_pk_bf16_f32 v{oacc[0] + 1}, v{oacc[0] + 2}, v{oacc[0] + 3}")
        a(f"v_cvt_pk_bf16_f32 v{oacc[1]}, v{oacc[1]}, v{oacc[1] + 1}")
        a(f"v_cvt_pk_bf16_f32 v{oacc[1] + 1}, v{oacc[1] + 2}, v{oacc[1] + 3}")
        a(f"v_add_u32 v{vtmp}, {16 * qt}, v{vtok}")
        a(f"v_lshrrev_b32 v{vtmp}, 4, v{vtmp}")
        a(f"v_mul_u32_u24 v{vtmp}, 20480, v{vtmp}")
        a(f"v_lshl_add_u32 v{vtmp}, v{vr16}, 4, v{vtmp}")
        a("s_mul_i32 s14, s4, 20")
        for which in range(2):
            if which == 0:
                a(f"v_lshl_add_u32 v{vadr}, v{vg}, 2, s14")
            else:
                a(f"v_mov_b32 v{vadr}, s14")
                a(f"v_add_u32 v{vadr}, 16, v{vadr}")
            a(f"v_lshrrev_b32 v{vm_}, 3, v{vadr}")
            a(f"v_and_b32 v{vadr}, 7, v{vadr}")
            a(f"v_lshlrev_b32 v{vadr}, 1, v{vadr}")
            a(f"v_lshl_add_u32 v{vadr}, v{vm_}, 8, v{vadr}")
            a(f"v_add_u32 v{vadr}, v{vadr}, v{vtmp}")
            if which == 1:
                a(f"v_mov_b32 v{vm_}, s12")
                a(f"v_cmp_eq_u32 vcc, 0, v{vg}")
                a("s_nop 1")
                a(f"v_cndmask_b32 v{vadr}, v{vm_}, v{vadr}, vcc")
            a(f"buffer_store_dwordx2 {vr(oacc[which], 2)}, v{vadr}, s[52:55], 0 offen")
        stamp(a, st)
    if STAMP:
        a("s_waitcnt vmcnt(0)")
    stamp(a, st)
    stamp_flush(a, st, name)
    a.label(f"{name}_end")
    a("s_endpgm")
    return a, lds_bytes, 256, 512


def build():
    cfg = os.environ.get("CFG", "A")
    ks = []

    def add(name, **kw):
        ks.append((name,) + gen_gemm(name, **kw))

    if os.environ.get("WARM"):
        w = Asm()
        w("s_endpgm")
        ks.append(("k0_warm_kernel", w, 0, 256, 64))
    add("k1_qkv_kernel", NT=8, W=4, MT=2, KS=20, ldb=3840, n_ntiles=15, ring=5, CH=2, a_lds=True, LA=3,
        a_src=(P_X, 0, ACT_BYTES), b_ptr=P_WQKV, b_size=640 * 1920 * 2, ln=1, shift=False, epi=EpiQKV, pf=[(P_WO, 819200, 0, 819200)], map2d=True)
    ks.append(("k2_attn_kernel",) + gen_attn("k2_attn_kernel"))
    small = dict(NT=5, W=4, MT=1, n_ntiles=8) if cfg == "A" else dict(NT=4, W=4, MT=2, n_ntiles=10)
    add("k3_wo_kernel", KS=20, ldb=1280, ring=5, a_src=(P_WS, WS_O, ACT_BYTES), b_ptr=P_WO, b_size=640 * 640 * 2, ln=0,
        shift=False, epi=lambda: EpiResid(P_X, 0, P_WS, WS_H), pf=[(P_W3, 1966080, 0, 983040)], **small)
    add("k4_w1_kernel", KS=20, ldb=1280, ring=5, a_src=(P_WS, WS_H, ACT_BYTES), b_ptr=P_W1, b_size=640 * 640 * 2, ln=2,
        shift=False, epi=lambda: EpiGelu(WS_G, 1280, ACT_BYTES), stats_src=WS_STH, pf=[(P_W3, 1966080, 983040, 983040)], **small)
    add("k5_w2_kernel", KS=20, ldb=1280, ring=5, a_src=(P_WS, WS_G, ACT_BYTES), b_ptr=P_W2, b_size=640 * 640 * 2, ln=0,
        shift=True, epi=EpiX1, stats_src=WS_STH, pf=[(P_W4, 1966080, 0, 983040)], **small)
    add("k6_w3_kernel", NT=6, W=4, MT=2, KS=20, ldb=3072, n_ntiles=16, ring=10, a_src=(P_WS, WS_X1, ACT_BYTES), b_ptr=P_W3,
        b_size=640 * 1536 * 2, ln=1, shift=False, epi=lambda: EpiGelu(WS_T, 3072, S * F * 2), stats_src=WS_STX, CH=2, LA=4, pf=[(P_W4, 1966080, 983040, 983040)])
    add("k7_w4_kernel", KS=48, ldb=1280, ring=7, a_src=(P_WS, WS_T, S * F * 2), b_ptr=P_W4, b_size=1536 * 640 * 2, ln=0,
        shift=False, epi=EpiFinal, LA=3, **small)
    ref = open("sequential_preLN__sliding_block__mixer_s_mlp__prompt.s.ref").read()
    head = []
    for line in ref.splitlines():
        if not line.startswith(";"):
            break
        if "@launch" in line or "Override launch" in line or "grid=ceil" in line:
            continue
        head.append(line)
    out = "\n".join(head) + "\n"
    for name, a, lds, nwg, thr in ks:
        out += f"; @launch kernel={name} grid=({nwg},1,1) block=({thr},1,1) lds={lds}\n"
    out += '.amdgcn_target "amdgcn-amd-amdhsa--gfx950"\n.text\n'
    for name, a, lds, nwg, thr in ks:
        out += kernel_header(name) + a.text()
    out += '.section .rodata,"a"\n'
    for name, a, lds, nwg, thr in ks:
        out += ".p2align 6\n" + kernel_desc(name, a.maxv)
        print(name, "vgprs", a.maxv, "lds", lds, "wgs", nwg, "instrs", len(a.lines), file=sys.stderr)
    return out


if __name__ == "__main__":
    if len(sys.argv) > 2 and sys.argv[2] == "stamp":
        STAMP = True
    path = sys.argv[1] if len(sys.argv) > 1 else "sequential_preLN__sliding_block__mixer_s_mlp__prompt.s"
    open(path, "w").write(build())
```

```python
import sys, os
import gen
from gen import *

SC = " sc1"
DET = int(os.environ.get("DET", "2"))
CS_OFF = 147456
SCNT = 56


class Stat2(StatOut):
    def finish(self):
        c = self.c
        a = c['a']
        t0, t1, t2, t3 = c['t']
        reduce_g(a, self.s, t0)
        reduce_g(a, self.s + 1, t0)
        srd(a, 60, P_WS, self.off, S * 64)
        a(f"v_lshlrev_b32 v{t0}, 6, v{c['vrow']}")
        a("s_lshl_b32 s9, s4, 3")
        a(f"v_add_u32 v{t0}, s9, v{t0}")
        a("s_mov_b32 s9, 0x80000000")
        a(f"v_mov_b32 v{t1}, s9")
        a(f"v_cmp_eq_u32 vcc, 0, v{c['vg']}")
        a("s_nop 1")
        a(f"v_cndmask_b32 v{t0}, v{t1}, v{t0}, vcc")
        a(f"buffer_store_dwordx2 {vr(self.s, 2)}, v{t0}, s[60:63], 0 offen{SC}")
        c['vm'].append('s')


class FResid:
    def pre(self, c):
        a, NT = c['a'], c['NT']
        srd(a, 48, P_WS, WS_H, ACT_BYTES)
        srd(a, 52, P_X, 0, ACT_BYTES)
        self.vr = out_offset(c, D * 2)
        self.vo = tiled_offset(c, 20)
        self.res = [a.v(2, 2) for _ in range(NT)]
        for t in range(NT):
            a(f"buffer_load_dwordx2 {vr(self.res[t], 2)}, v{self.vr}, s[52:55], 0 offen offset:{t * 32}")
            c['vm'].append('r')

    def post(self, c):
        a, NT, acc = c['a'], c['NT'], c['acc']
        t0, t1, t2, t3 = c['t']
        so = Stat2(c, WS_STH)
        h = c['hreg']
        for t in range(NT):
            for hh in range(2):
                a(f"v_cvt_pk_bf16_f32 v{t0}, v{acc[t] + 2 * hh}, v{acc[t] + 2 * hh + 1}")
                unpack2(a, t1, t2, t0)
                unpack2(a, t0, t3, self.res[t] + hh)
                a(f"v_add_f32 v{t1}, v{t1}, v{t0}")
                a(f"v_add_f32 v{t2}, v{t2}, v{t3}")
                a(f"v_cvt_pk_bf16_f32 v{h[t] + hh}, v{t1}, v{t2}")
                so.add_packed(h[t] + hh, t0, t1)
            a(f"buffer_store_dwordx2 {vr(h[t], 2)}, v{self.vo}, s[48:51], 0 offen offset:{t * 512}{SC}")
            c['vm'].append('s')
        so.finish()


class FGelu(EpiGelu):
    def post(self, c):
        a, NT, acc = c['a'], c['NT'], c['acc']
        tt = c['t']
        for t in range(NT):
            r = [acc[t] + i for i in range(4)]
            a(f"v_cvt_pk_bf16_f32 v{tt[0]}, v{r[0]}, v{r[1]}")
            a(f"v_cvt_pk_bf16_f32 v{tt[1]}, v{r[2]}, v{r[3]}")
            unpack2(a, r[0], r[1], tt[0])
            unpack2(a, r[2], r[3], tt[1])
            for i in (0, 2):
                a(f"v_pk_mul_f32 {vr(tt[i], 2)}, {vr(r[i], 2)}, {vr(r[i], 2)}")
            for i in (0, 2):
                a(f"v_pk_fma_f32 {vr(tt[i], 2)}, {vr(tt[i], 2)}, {vr(self.vc1 + 2, 2)}, {vr(self.vc1, 2)}")
            for i in (0, 2):
                a(f"v_pk_mul_f32 {vr(tt[i], 2)}, {vr(tt[i], 2)}, {vr(r[i], 2)}")
            for i in range(4):
                a(f"v_exp_f32 v{tt[i]}, v{tt[i]}")
            a("s_nop 0")
            for i in (0, 2):
                a(f"v_pk_add_f32 {vr(tt[i], 2)}, {vr(tt[i], 2)}, {vr(self.vc1 + 4, 2)}")
            for i in range(4):
                a(f"v_rcp_f32 v{tt[i]}, v{tt[i]}")
            a("s_nop 0")
            for i in (0, 2):
                a(f"v_pk_mul_f32 {vr(r[i], 2)}, {vr(r[i], 2)}, {vr(tt[i], 2)}")
            a(f"v_cvt_pk_bf16_f32 v{acc[t]}, v{acc[t]}, v{acc[t] + 1}")
            a(f"v_cvt_pk_bf16_f32 v{acc[t] + 1}, v{acc[t] + 2}, v{acc[t] + 3}")
            a(f"buffer_store_dwordx2 {vr(acc[t], 2)}, v{self.vo}, s[48:51], 0 offen offset:{t * 512}{SC}")
            c['vm'].append('s')


class FX1:
    def pre(self, c):
        a = c['a']
        srd(a, 48, P_WS, WS_X1, ACT_BYTES)
        self.vo = tiled_offset(c, 20)

    def post(self, c):
        a, NT, acc = c['a'], c['NT'], c['acc']
        t0, t1, t2, t3 = c['t']
        vst = c['vst']
        h, x = c['hreg'], c['xreg']
        mb, rs = vst, vst + 1
        a(f"v_add_f32 v{vst}, v{vst}, v{vst + 2}")
        a(f"v_add_f32 v{vst + 1}, v{vst + 1}, v{vst + 3}")
        reduce_g(a, vst, t0)
        reduce_g(a, vst + 1, t0)
        a(f"s_mov_b32 s9, {f32bits(1.0 / D):#x}")
        a(f"v_mul_f32 v{vst}, s9, v{vst}")
        a(f"v_mul_f32 v{vst + 1}, s9, v{vst + 1}")
        a(f"v_fma_f32 v{vst + 1}, -v{vst}, v{vst}, v{vst + 1}")
        a(f"v_max_f32 v{vst + 1}, 0, v{vst + 1}")
        a(f"s_mov_b32 s9, {f32bits(1e-5):#x}")
        bf16r(a, mb, mb)
        bf16r(a, rs, rs)
        a(f"v_add_f32 v{rs}, s9, v{rs}")
        bf16r(a, rs, rs)
        a(f"v_sqrt_f32 v{rs}, v{rs}")
        a("s_nop 0")
        bf16r(a, rs, rs)
        a(f"v_rcp_f32 v{rs}, v{rs}")
        so = Stat2(c, WS_STX)
        for t in range(NT):
            for hh in range(2):
                unpack2(a, t0, t1, h[t] + hh)
                a(f"v_sub_f32 v{t0}, v{t0}, v{mb}")
                a(f"v_sub_f32 v{t1}, v{t1}, v{mb}")
                a(f"v_cvt_pk_bf16_f32 v{t0}, v{t0}, v{t1}")
                unpack2(a, t0, t1, t0)
                a(f"v_mul_f32 v{t0}, v{t0}, v{rs}")
                a(f"v_mul_f32 v{t1}, v{t1}, v{rs}")
                a(f"v_cvt_pk_bf16_f32 v{t0}, v{t0}, v{t1}")
                unpack2(a, t0, t1, t0)
                a(f"v_cvt_pk_bf16_f32 v{t2}, v{acc[t] + 2 * hh}, v{acc[t] + 2 * hh + 1}")
                unpack2(a, t2, t3, t2)
                a(f"v_add_f32 v{t0}, v{t0}, v{t2}")
                a(f"v_add_f32 v{t1}, v{t1}, v{t3}")
                a(f"v_cvt_pk_bf16_f32 v{x[t] + hh}, v{t0}, v{t1}")
                so.add_packed(x[t] + hh, t0, t1)
            a(f"buffer_store_dwordx2 {vr(x[t], 2)}, v{self.vo}, s[48:51], 0 offen offset:{t * 512}{SC}")
            c['vm'].append('s')
        so.finish()


class FFinal:
    def pre(self, c):
        a = c['a']
        srd(a, 48, P_OUT, 0, ACT_BYTES)
        self.vo = out_offset(c, D * 2)

    def post(self, c):
        a, NT, acc = c['a'], c['NT'], c['acc']
        t0, t1, t2, t3 = c['t']
        h, x = c['hreg'], c['xreg']
        for t in range(NT):
            for hh in range(2):
                a(f"v_cvt_pk_bf16_f32 v{t0}, v{acc[t] + 2 * hh}, v{acc[t] + 2 * hh + 1}")
                unpack2(a, t0, t1, t0)
                unpack2(a, t2, t3, x[t] + hh)
                a(f"v_add_f32 v{t0}, v{t0}, v{t2}")
                a(f"v_add_f32 v{t1}, v{t1}, v{t3}")
                a(f"v_cvt_pk_bf16_f32 v{t0}, v{t0}, v{t1}")
                unpack2(a, t0, t1, t0)
                unpack2(a, t2, t3, h[t] + hh)
                a(f"v_add_f32 v{t0}, v{t0}, v{t2}")
                a(f"v_add_f32 v{t1}, v{t1}, v{t3}")
                a(f"v_cvt_pk_bf16_f32 v{acc[t] + hh}, v{t0}, v{t1}")
            a(f"buffer_store_dwordx2 {vr(acc[t], 2)}, v{self.vo}, s[48:51], 0 offen offset:{t * 32}")
            c['vm'].append('s')


def gen_fused(name, stages):
    a = Asm()
    W = 4
    a("s_cmp_ge_u32 s2, 256")
    a(f"s_cbranch_scc1 {name}_end")
    st = [0]
    stamp(a, st)
    load_kernargs(a)
    vw, vl, vr16, vg = a.v(), a.v(), a.v(), a.v()
    a(f"v_lshrrev_b32 v{vw}, 6, v0")
    a(f"v_and_b32 v{vl}, 63, v0")
    a(f"v_and_b32 v{vr16}, 15, v0")
    a(f"v_bfe_u32 v{vg}, v0, 4, 2")
    a("s_nop 0")
    a(f"v_readfirstlane_b32 s7, v{vw}")
    a("s_lshl_b32 s8, s7, 10")
    t0 = a.v(4, 4)
    t1, t2, t3 = t0 + 1, t0 + 2, t0 + 3
    hreg = [a.v(2, 2) for _ in range(5)]
    xreg = [a.v(2, 2) for _ in range(5)]
    vp7 = a.v()
    vpd = a.v()
    vdset = [[a.v() for _ in range(5)] for _ in range(2)]
    SBS = [44, 84]
    issued_next = {}

    def stage_geom(P):
        NT, MT, KS = P['NT'], P['MT'], P['KS']
        CH = P.get('CH', 4)
        return NT, MT, KS, CH, CH * NT // 4, NT * 1024 * CH, min(P['ring'], KS // CH)

    def setup_b(si):
        P = stages[si]
        NT, MT, KS, CH, RPC, BSLOT, ring = stage_geom(P)
        PER = {4: 4, 5: 1, 6: 2, 8: 8}[NT]
        mper = (S // (64 * MT)) // 8
        a("s_lshr_b32 s12, s2, 3")
        a(f"s_lshr_b32 s12, s12, {mper.bit_length() - 1}")
        a(f"s_mul_i32 s12, s12, {16 * NT}")
        for p in range(RPC):
            Fv, sl, rr = t0, t1, t2
            d = vdset[si % 2][p]
            a(f"v_add_u32 v{Fv}, {p * 256}, v0")
            udiv(a, sl, Fv, 2 * NT, 64 * NT * CH)
            a(f"v_mul_u32_u24 v{rr}, {2 * NT}, v{sl}")
            a(f"v_sub_u32 v{rr}, v{Fv}, v{rr}")
            a(f"v_and_b32 v{d}, 0xfffffff3, v{sl}")
            a(f"v_bfe_u32 v{t0}, v{sl}, 2, 1")
            a(f"v_lshl_add_u32 v{d}, v{t0}, 3, v{d}")
            a(f"v_bfe_u32 v{t0}, v{sl}, 3, 1")
            a(f"v_lshl_add_u32 v{d}, v{t0}, 2, v{d}")
            a(f"v_mul_u32_u24 v{d}, {P['ldb']}, v{d}")
            if PER > 1:
                a(f"v_and_b32 v{t0}, 7, v{sl}")
                a(f"v_lshrrev_b32 v{t0}, {({8: 0, 4: 1, 2: 2})[PER]}, v{t0}")
                a(f"v_lshlrev_b32 v{t0}, 1, v{t0}")
                a(f"v_xor_b32 v{rr}, v{rr}, v{t0}")
            a(f"v_lshl_add_u32 v{d}, v{rr}, 4, v{d}")
            a(f"v_lshl_add_u32 v{d}, s12, 1, v{d}")

    def b_items_of(si, c):
        P = stages[si]
        NT, MT, KS, CH, RPC, BSLOT, ring = stage_geom(P)
        slot = c % ring
        sb = SBS[si % 2]
        return [([f"s_mov_b32 s10, {c * CH * 32 * P['ldb']}",
                  f"s_add_u32 m0, s8, {slot * BSLOT + p * 4096}",
                  "s_nop 0",
                  f"buffer_load_dwordx4 v{vdset[si % 2][p]}, s[{sb}:{sb + 3}], s10 offen lds"], (si, c)) for p in range(RPC)]

    a(f"v_lshlrev_b32 v{vp7}, 7, v0")
    a("s_cmp_eq_u32 s7, 4")
    a(f"s_cbranch_scc1 {name}_sync")
    base_nv = a.nv
    vm = []
    nbar = [0]
    syncs = []

    def bar():
        a("s_barrier")
        nbar[0] += 1
    lds_max = CS_OFF + 512
    first = True
    prev = None
    for si, P in enumerate(stages):
        a.nv = base_nv
        NT, MT, KS, ldb, ring = P['NT'], P['MT'], P['KS'], P['ldb'], P['ring']
        CH, LA, PD = P.get('CH', 4), P.get('LA', 2), P.get('PD', 5)
        ln, shift, stats_src, pf = P.get('ln', 0), P.get('shift', False), P.get('stats_src'), P.get('pf')
        asc = SC if si > 0 else ""
        BM = 16 * W * MT
        n_mtiles = S // BM
        mper = n_mtiles // 8
        NCH = KS // CH
        RPC = CH * NT // W
        assert CH * NT % W == 0
        BSLOT = NT * 1024 * CH
        ring = min(ring, NCH)
        RA = min(NCH, LA + 2)
        assert ring * BSLOT <= CS_OFF
        K = KS * 32
        PER = {4: 4, 5: 1, 6: 2, 8: 8}[NT]
        sname = f"{name}_s{si}"

        def swz(dst, ri):
            if PER == 8:
                a(f"v_mov_b32 v{dst}, v{ri}")
            elif PER == 4:
                a(f"v_lshrrev_b32 v{dst}, 1, v{ri}")
            elif PER == 2:
                a(f"v_lshrrev_b32 v{dst}, 2, v{ri}")

        if si > 0:
            a("s_waitcnt vmcnt(0)")
            syncs.append((nbar[0], prev, MT, P['dep'], P['thr']))
            nbar[0] = 0
            a("s_barrier")
        a("s_and_b32 s3, s2, 7")
        a("s_lshr_b32 s4, s2, 3")
        sh = mper.bit_length() - 1
        a(f"s_lshl_b32 s3, s3, {sh}")
        a(f"s_and_b32 s5, s4, {mper - 1}")
        a("s_add_u32 s3, s3, s5")
        a(f"s_lshr_b32 s4, s4, {sh}")
        a(f"s_mul_i32 s5, s3, {BM}")
        a(f"s_mul_i32 s6, s4, {16 * NT}")
        a("s_lshr_b32 s9, s5, 4")
        a(f"s_mul_i32 s64, s7, {MT}")
        a("s_add_u32 s64, s64, s9")
        vrow = []
        for mt in range(MT):
            if mt:
                a(f"s_add_u32 s{64 + mt}, s64, {mt}")
            vrow.append(a.v())
            a(f"v_lshl_add_u32 v{vrow[mt]}, s{64 + mt}, 4, v{vr16}")
        SA, SB = 40, 44
        if not shift:
            vaoff = [a.v() for _ in range(MT)]
            a(f"v_lshlrev_b32 v{t0}, 4, v{vl}")
            for mt in range(MT):
                a(f"s_mul_i32 s9, s{64 + mt}, {KS * 1024}")
                a(f"v_add_u32 v{vaoff[mt]}, s9, v{t0}")
        else:
            vaoff = [[a.v() for _ in range(4)] for _ in range(MT)]
            a("s_mov_b32 s9, 0x80000000")
            for mt in range(MT):
                for i, d in enumerate((-1, 1, -2, 2)):
                    a(f"v_add_u32 v{t0}, {d}, v{vrow[mt]}")
                    a(f"v_lshrrev_b32 v{t2}, 4, v{t0}")
                    a(f"v_mul_u32_u24 v{t2}, {KS * 1024}, v{t2}")
                    a(f"v_and_b32 v{t3}, 15, v{t0}")
                    a(f"v_lshl_add_u32 v{t3}, v{vg}, 4, v{t3}")
                    a(f"v_lshl_add_u32 v{vaoff[mt][i]}, v{t3}, 4, v{t2}")
                    a(f"v_cmp_gt_u32 vcc, {S}, v{t0}")
                    a(f"v_mov_b32 v{t1}, s9")
                    a("s_nop 1")
                    a(f"v_cndmask_b32 v{vaoff[mt][i]}, v{t1}, v{vaoff[mt][i]}, vcc")
        if si == 0:
            setup_b(0)
        if si + 1 < len(stages):
            setup_b(si + 1)
        nbase = (ring * BSLOT + 65535) // 65536
        vb = [[a.v() for _ in range(nbase)] for _ in range(PER)]
        a(f"v_bfe_u32 v{t0}, v0, 2, 3")
        a(f"v_bfe_u32 v{t1}, v0, 5, 1")
        a(f"v_lshl_add_u32 v{t1}, v{t1}, 4, v{t0}")
        a(f"v_mul_u32_u24 v{t1}, {NT * 32}, v{t1}")
        a(f"v_and_b32 v{t2}, 3, v0")
        a(f"v_lshl_add_u32 v{t1}, v{t2}, 3, v{t1}")
        swz(t0, t0)
        for tp in range(PER):
            if PER > 1:
                a(f"v_xor_b32 v{t2}, {tp}, v{t0}")
                a(f"v_lshl_add_u32 v{vb[tp][0]}, v{t2}, 5, v{t1}")
            else:
                a(f"v_mov_b32 v{vb[0][0]}, v{t1}")
            for i in range(1, nbase):
                a(f"v_add_u32 v{vb[tp][i]}, {65536 * i}, v{vb[tp][0]}")
        if ln:
            NX = (NT + W - 1) // W
            vbx = [[a.v() for _ in range(nbase)] for _ in range(NX)]
            for x in range(NX):
                a(f"s_add_u32 s9, s7, {x * W}")
                a(f"s_min_u32 s9, s9, {NT - 1}")
                if PER > 1:
                    a(f"v_xor_b32 v{t2}, s9, v{t0}")
                else:
                    a(f"v_mov_b32 v{t2}, s9")
                a(f"v_lshl_add_u32 v{vbx[x][0]}, v{t2}, 5, v{t1}")
                for i in range(1, nbase):
                    a(f"v_add_u32 v{vbx[x][i]}, {65536 * i}, v{vbx[x][0]}")
            vones = a.v(4, 4)
            for i in range(4):
                a(f"v_mov_b32 v{vones + i}, 0x3f803f80")
            vsum = [a.v() for _ in range(MT)]
            vsq = [a.v() for _ in range(MT)]
            acs = [a.v(4, 4) for _ in range(NX)]
        acc = [[a.v(4, 4) for _ in range(NT)] for _ in range(MT)]
        areg = [[[a.v(4, 4) for _ in range(MT)] for _ in range(CH)] for _ in range(RA)]
        if first:
            a("s_waitcnt lgkmcnt(0)")
            first = False
        aptr, aoff, asize = P['a_src']
        srd(a, SA, aptr, aoff, asize)
        if si == 0:
            srd(a, SBS[0], P['b_ptr'], 0, P['b_size'])
        if si + 1 < len(stages):
            srd(a, SBS[(si + 1) % 2], stages[si + 1]['b_ptr'], 0, stages[si + 1]['b_size'])
        ctxs = [dict(a=a, NT=NT, vrow=vrow[mt], vg=vg, vr16=vr16, vl=vl, t=(t0, t1, t2, t3), acc=acc[mt], vm=vm,
                     name=sname, stile=64 + mt, mt=mt, hreg=hreg, xreg=xreg) for mt in range(MT)]
        epis = [P['epi']() for _ in range(MT)]
        pend = []
        pfl = []
        if pf is not None:
            PSTEP = W * 64 * 128
            for (pptr, pbytes, pstart, plen) in pf:
                pper = (plen // 32 + 127) // 128 * 128
                npf = (pper + PSTEP - 1) // PSTEP
                for i in range(npf):
                    lines = [f"s_mov_b32 s96, s{pptr}", f"s_and_b32 s97, s{pptr + 1}, 0xffff",
                             f"s_mov_b32 s98, {min(pbytes, pstart + plen)}", "s_mov_b32 s99, 0x00020000",
                             "s_lshr_b32 s10, s2, 3", f"s_mul_i32 s10, s10, {pper}",
                             f"s_add_u32 s10, s10, {pstart + i * PSTEP}",
                             f"buffer_load_dword v{vpd}, v{vp7}, s[96:99], s10 offen"]
                    pfl.append((lines, 'p'))

        def a_items(c):
            out = []
            for s in range(CH):
                ks = c * CH + s
                for mt in range(MT):
                    vo = vaoff[mt][ks // 5] if shift else vaoff[mt]
                    out.append(([f"s_mov_b32 s10, {c * CH * 1024}",
                                 f"buffer_load_dwordx4 {vr(areg[c % RA][s][mt], 4)}, v{vo}, s[{SA}:{SA + 3}], s10 offen offset:{s * 1024}{asc}"],
                                (si, c)))
            return out

        def b_items(c):
            return b_items_of(si, c)

        def emit_pending(n=1, track=True):
            for _ in range(n):
                if not pend:
                    return
                lines, tag = pend.pop(0)
                for l in lines:
                    a(l)
                if track:
                    vm.append(tag)

        if si == DET:
            stamp(a, st)
        NB0 = 0
        for c in range(NB0):
            pend.extend(b_items(c))
        nb0 = len(pend)
        emit_pending(1000)
        rest = []
        for c in range(issued_next.get(si, 0), ring):
            rest.extend(b_items(c))
        if si > 0:
            pend.extend(rest)
            emit_pending(1000)
            a("s_barrier")
        else:
            pass
        if DET < 0 or si in (DET - 1, DET):
            stamp(a, st)
        for c in range(min(LA, NCH)):
            if si == 0:
                pend.extend(b_items(c))
            pend.extend(a_items(c))
            emit_pending(1000)
            if c == 0:
                for mt in range(MT):
                    if stats_src is not None:
                        vst = a.v(4, 4)
                        srd(a, 60, P_WS, stats_src, S * 64)
                        a(f"v_lshlrev_b32 v{t0}, 6, v{vrow[mt]}")
                        a(f"v_lshl_add_u32 v{t0}, v{vg}, 4, v{t0}")
                        a(f"buffer_load_dwordx4 {vr(vst, 4)}, v{t0}, s[60:63], 0 offen{SC}")
                        vm.append('r')
                        ctxs[mt]['vst'] = vst
                    epis[mt].pre(ctxs[mt])
        for mt in range(MT):
            for t in range(NT):
                for i in range(4):
                    a(f"v_mov_b32 v{acc[mt][t] + i}, 0")
        if ln:
            for x in range(NX):
                for i in range(4):
                    a(f"v_mov_b32 v{acs[x] + i}, 0")

        def wait_chunk(c):
            last = max(i for i, tg in enumerate(vm) if isinstance(tg, tuple) and tg[0] == si and tg[1] <= c)
            n = min(63, len(vm) - 1 - last)
            a(f"s_waitcnt vmcnt({n})")

        units = []
        for ks in range(KS):
            for t in range(NT):
                units.append((ks, t))
            if ln:
                for x in range(NX):
                    units.append((ks, ('x', x)))
        NB = PD + 2
        breg = [a.v(4, 4) for _ in range(NB)]
        nrd = []

        def issue_read(i):
            ks, t = units[i]
            c = ks // CH
            slot = c % ring
            off = slot * BSLOT + (ks % CH) * NT * 1024
            if isinstance(t, tuple):
                base = vbx[t[1]]
            else:
                base = vb[t % PER]
                off += (t - t % PER) * 32
            r = breg[i % NB]
            for h in range(2):
                o = off + h * 8 * NT * 32
                a(f"ds_read_b64_tr_b16 {vr(r + 2 * h, 2)}, v{base[o // 65536]} offset:{o % 65536}")
            nrd.append(2)

        nread = [0]

        def advance_reads(upto):
            while nread[0] < min(upto, len(units)):
                ks, t = units[nread[0]]
                if t == 0 and ks % CH == 0:
                    c = ks // CH
                    emit_pending(1000)
                    wait_chunk(c)
                    bar()
                    if c >= 2 and c - 2 + ring < NCH:
                        pend.extend(b_items(c - 2 + ring))
                    if c >= 2 and si + 1 < len(stages) and ring >= NCH:
                        g2 = stage_geom(stages[si + 1])
                        while (issued_next.get(si + 1, 0) + 1) * g2[5] <= (c - 1) * BSLOT and issued_next.get(si + 1, 0) < g2[6]:
                            pend.extend(b_items_of(si + 1, issued_next.get(si + 1, 0)))
                            issued_next[si + 1] = issued_next.get(si + 1, 0) + 1
                    if c + LA < NCH:
                        if si == 0:
                            pend.extend(b_items(c + LA))
                        pend.extend(a_items(c + LA))
                    elif c + LA == NCH or (LA > NCH and c == 0):
                        pend.extend(pfl)
                issue_read(nread[0])
                nread[0] += 1

        for i, (ks, t) in enumerate(units):
            advance_reads(i + PD + 1)
            ahead = sum(nrd[i + 1:nread[0]])
            a(f"s_waitcnt lgkmcnt({ahead})")
            c = ks // CH
            b = breg[i % NB]
            if isinstance(t, tuple):
                x = t[1]
                a(f"v_mfma_f32_16x16x32_bf16 {vr(acs[x], 4)}, {vr(b, 4)}, {vr(vones, 4)}, {vr(acs[x], 4)}")
            else:
                for mt in range(MT):
                    ar = areg[c % RA][ks % CH][mt]
                    a(f"v_mfma_f32_16x16x32_bf16 {vr(acc[mt][t], 4)}, {vr(b, 4)}, {vr(ar, 4)}, {vr(acc[mt][t], 4)}")
            emit_pending(1)
        emit_pending(1000)
        if DET < 0 or si in (DET - 1, DET):
            stamp(a, st)
        a("s_nop 7")
        a("s_nop 1")
        bar()
        if ln:
            a(f"v_lshlrev_b32 v{t0}, 4, v{vg}")
            a(f"v_add_u32 v{t0}, {CS_OFF}, v{t0}")
            for x in range(NX):
                a(f"s_add_u32 s9, s7, {x * W}")
                a(f"s_min_u32 s9, s9, {NT - 1}")
                a("s_lshl_b32 s9, s9, 6")
                a(f"v_add_u32 v{t1}, s9, v{t0}")
                a(f"ds_write_b128 v{t1}, {vr(acs[x], 4)}")
            for mt in range(MT):
                vst = ctxs[mt]['vst']
                a(f"v_add_f32 v{vsum[mt]}, v{vst}, v{vst + 2}")
                a(f"v_add_f32 v{vsq[mt]}, v{vst + 1}, v{vst + 3}")
                reduce_g(a, vsum[mt], t2)
                reduce_g(a, vsq[mt], t2)
            a("s_waitcnt lgkmcnt(0)")
            bar()
            vcs = {}
            pool = list(breg)
            for x_ in areg:
                for y_ in x_:
                    pool += y_
            for t in range(NT):
                vcs[t] = pool[t]
                a(f"ds_read_b128 {vr(vcs[t], 4)}, v{t0} offset:{t * 64}")

            def ln_stats(mean, var, mb, sqb):
                bf16r(a, mb, mean)
                bf16r(a, sqb, var)
                a(f"v_add_f32 v{sqb}, s9, v{sqb}")
                bf16r(a, sqb, sqb)
                a(f"v_sqrt_f32 v{sqb}, v{sqb}")
                a("s_nop 0")
                bf16r(a, sqb, sqb)

            vab = []
            for mt in range(MT):
                vmean, vvar, vmb, vsqb, va, vbb = vsum[mt], vsq[mt], a.v(), a.v(), a.v(), a.v()
                a(f"s_mov_b32 s9, {f32bits(1.0 / K):#x}")
                a(f"v_mul_f32 v{vmean}, s9, v{vmean}")
                a(f"v_mul_f32 v{vvar}, s9, v{vvar}")
                a(f"v_fma_f32 v{vvar}, -v{vmean}, v{vmean}, v{vvar}")
                a(f"v_max_f32 v{vvar}, 0, v{vvar}")
                a(f"s_mov_b32 s9, {f32bits(1e-5):#x}")
                ln_stats(vmean, vvar, vmb, vsqb)
                a(f"v_rcp_f32 v{va}, v{vsqb}")
                a("s_nop 0")
                a(f"v_mul_f32 v{vbb}, v{vmb}, v{va}")
                a(f"v_sub_f32 v{vbb}, 0, v{vbb}")
                if ln == 2:
                    m2, s2 = a.v(), a.v()
                    a(f"v_sub_f32 v{t2}, v{vmean}, v{vmb}")
                    a(f"v_mul_f32 v{t2}, v{t2}, v{va}")
                    a(f"v_mul_f32 v{t3}, v{vvar}, v{va}")
                    a(f"v_mul_f32 v{t3}, v{t3}, v{va}")
                    ln_stats(t2, t3, m2, s2)
                    a(f"v_rcp_f32 v{s2}, v{s2}")
                    a("s_nop 0")
                    a(f"v_sub_f32 v{vbb}, v{vbb}, v{m2}")
                    a(f"v_mul_f32 v{vbb}, v{vbb}, v{s2}")
                    a(f"v_mul_f32 v{va}, v{va}, v{s2}")
                vab.append((va, vbb))
            a("s_waitcnt lgkmcnt(0)")
            for mt in range(MT):
                va, vbb = vab[mt]
                a(f"v_mov_b32 v{t0}, v{va}")
                a(f"v_mov_b32 v{t1}, v{va}")
                a(f"v_mov_b32 v{t2}, v{vbb}")
                a(f"v_mov_b32 v{t3}, v{vbb}")
                for t in range(NT):
                    for i in (0, 2):
                        r = vr(acc[mt][t] + i, 2)
                        a(f"v_pk_mul_f32 {r}, {r}, {vr(t0, 2)}")
                        a(f"v_pk_fma_f32 {r}, {vr(vcs[t] + i, 2)}, {vr(t2, 2)}, {r}")
        for mt in range(MT):
            epis[mt].post(ctxs[mt])
        prev = MT
    if gen.STAMP:
        a("s_waitcnt vmcnt(0)")
    stamp(a, st)
    a.nv = base_nv
    stamp_flush(a, st, name)
    a("s_endpgm")
    a.label(f"{name}_sync")
    a("s_waitcnt lgkmcnt(0)")
    srd(a, SCNT, P_WS, WS_CNT, 32 * 256)
    a("s_and_b32 s3, s2, 7")
    a("s_lshr_b32 s4, s2, 3")
    a("s_lshl_b32 s5, s3, 2")
    a("s_and_b32 s9, s4, 3")
    a("s_add_u32 s5, s5, s9")
    a("s_lshl_b32 s6, s3, 1")
    a("s_and_b32 s9, s4, 1")
    a("s_add_u32 s6, s6, s9")
    a("s_lshl_b32 s6, s6, 1")
    for k, (nb, pmt, cmt, dep, thr) in enumerate(syncs):
        for _ in range(nb):
            a("s_barrier")
        a("s_barrier")
        a(f"v_add_u32 v{t0}, s{5 if pmt == 1 else 6}, v{vl}")
        a(f"v_lshlrev_b32 v{t0}, 8, v{t0}")
        a(f"v_mov_b32 v{t1}, 1")
        a(f"s_mov_b64 exec, {(1 << pmt) - 1}")
        a(f"buffer_atomic_add v{t1}, v{t0}, s[{SCNT}:{SCNT + 3}], 0 offen")
        a("s_mov_b64 exec, -1")
        if dep == 'same':
            a(f"v_mov_b32 v{t0}, s5")
        elif dep == 'halo':
            a(f"v_min_u32 v{t0}, 2, v{vl}")
            a(f"v_add_u32 v{t0}, s5, v{t0}")
            a(f"v_subrev_u32 v{t0}, 1, v{t0}")
            a(f"v_max_i32 v{t0}, 0, v{t0}")
            a(f"v_min_i32 v{t0}, 31, v{t0}")
        elif dep == 'pair':
            a(f"v_and_b32 v{t0}, 1, v{vl}")
            a(f"v_add_u32 v{t0}, s6, v{t0}")
        a(f"v_lshlrev_b32 v{t0}, 8, v{t0}")
        a("s_mov_b32 s39, 0")
        a("s_mov_b64 exec, 7")
        a.label(f"{name}_poll{k}")
        a(f"buffer_load_dword v{t1}, v{t0}, s[{SCNT}:{SCNT + 3}], 0 offen sc1")
        a("s_waitcnt vmcnt(0)")
        a(f"v_cmp_le_u32 vcc, {thr}, v{t1}")
        a("s_nop 1")
        a("s_cmp_eq_u64 vcc, 7")
        a(f"s_cbranch_scc1 {name}_ready{k}")
        a("s_add_u32 s39, s39, 1")
        a("s_cmp_lt_u32 s39, 0x40000")
        a(f"s_cbranch_scc0 {name}_ready{k}")
        a(f"s_sleep {os.environ.get('SLP', '4')}")
        a(f"s_branch {name}_poll{k}")
        a.label(f"{name}_ready{k}")
        a("s_mov_b64 exec, -1")
        a("s_barrier")
    a.label(f"{name}_end")
    a("s_endpgm")
    assert a.maxv <= 256, a.maxv
    return a, lds_max, 256, 320


def build():
    ks = []
    ks.append(("k1_qkv_kernel",) + gen_gemm("k1_qkv_kernel", NT=8, W=int(os.environ.get("K1W", "8")), NS=int(os.environ.get("K1W", "8")) // 4, MT=2, KS=20, ldb=3840, n_ntiles=15, ring=5, CH=2,
                                            a_lds=True, LA=3, a_src=(P_X, 0, ACT_BYTES), b_ptr=P_WQKV, b_size=640 * 1920 * 2,
                                            ln=1, shift=False, epi=EpiQKV, pf=[(P_WO, 819200, 0, 819200)], map2d=True))
    ks.append(("k2_attn_kernel",) + gen_attn("k2_attn_kernel"))
    H = 983040
    small = dict(NT=5, MT=1, KS=20, ldb=1280, ring=5, b_size=640 * 640 * 2, LA=5)
    stages = [
        dict(a_src=(P_WS, WS_O, ACT_BYTES), b_ptr=P_WO, epi=FResid, pf=[(P_W3, 1966080, 0, H)], **small),
        dict(a_src=(P_WS, WS_H, ACT_BYTES), b_ptr=P_W1, ln=2, stats_src=WS_STH, epi=lambda: FGelu(WS_G, 1280, ACT_BYTES),
             dep='same', thr=8, pf=[(P_W3, 1966080, H, H)], **small),
        dict(a_src=(P_WS, WS_G, ACT_BYTES), b_ptr=P_W2, shift=True, stats_src=WS_STH, epi=FX1, dep='halo', thr=16,
             pf=[(P_W4, 1966080, 0, H)], **small),
        dict(NT=6, MT=2, KS=20, ldb=3072, ring=10, CH=2, LA=int(os.environ.get("S6LA", "2")), PD=int(os.environ.get("S6PD", "5")), a_src=(P_WS, WS_X1, ACT_BYTES), b_ptr=P_W3,
             b_size=640 * 1536 * 2, ln=1, stats_src=WS_STX, epi=lambda: FGelu(WS_T, 3072, S * F * 2), dep='pair', thr=24,
             pf=[(P_W4, 1966080, H, H)]),
        dict(NT=5, MT=1, KS=48, ldb=1280, ring=7, LA=5, a_src=(P_WS, WS_T, S * F * 2), b_ptr=P_W4, b_size=1536 * 640 * 2,
             epi=FFinal, dep='same', thr=40),
    ]
    ks.append(("k3_fused_kernel",) + gen_fused("k3_fused_kernel", stages))
    ref = open("sequential_preLN__sliding_block__mixer_s_mlp__prompt.s.ref").read()
    head = []
    for line in ref.splitlines():
        if not line.startswith(";"):
            break
        if "@launch" in line or "Override launch" in line or "grid=ceil" in line:
            continue
        head.append(line)
    out = "\n".join(head) + "\n"
    for name, a, lds, nwg, thr in ks:
        out += f"; @launch kernel={name} grid=({nwg},1,1) block=({thr},1,1) lds={lds}\n"
    out += '.amdgcn_target "amdgcn-amd-amdhsa--gfx950"\n.text\n'
    for name, a, lds, nwg, thr in ks:
        out += kernel_header(name) + a.text()
    out += '.section .rodata,"a"\n'
    for name, a, lds, nwg, thr in ks:
        out += ".p2align 6\n" + kernel_desc(name, a.maxv)
        print(name, "vgprs", a.maxv, "lds", lds, "wgs", nwg, "instrs", len(a.lines), file=sys.stderr)
    return out


if __name__ == "__main__":
    if len(sys.argv) > 2 and sys.argv[2] == "stamp":
        gen.STAMP = True
    path = sys.argv[1] if len(sys.argv) > 1 else "fused.s"
    open(path, "w").write(build())
```

```python
import sys, os

S = 2048
D = 640
F = 1536
NH = 32
DH = 20

WS_Q = 0
WS_K = 2621440
WS_V = 5242880
WS_O = 0x800000
WS_H = 0xB00000
WS_G = 0xE00000
WS_X1 = 0x1100000
WS_T = 0x1400000
WS_ST = 0x1B00000
WS_STH = 0x1B00000
WS_STX = 0x1B40000
WS_CNT = 0x1B80000
ACT_BYTES = S * D * 2

P_X, P_WQKV, P_WO, P_BX, P_W1, P_W2, P_W3, P_W4 = 16, 18, 20, 22, 24, 26, 28, 30
P_OUT, P_DBG, P_WS = 32, 34, 36


class Asm:
    def __init__(self):
        self.lines = []
        self.nv = 1
        self.maxv = 1

    def __call__(self, s):
        self.lines.append("    " + s)

    def label(self, s):
        self.lines.append(s + ":")

    def comment(self, s):
        self.lines.append("    ; " + s)

    def v(self, n=1, align=1):
        self.nv = (self.nv + align - 1) // align * align
        r = self.nv
        self.nv += n
        self.maxv = max(self.maxv, self.nv)
        return r

    def text(self):
        return "\n".join(self.lines) + "\n"


def vr(b, n):
    return f"v[{b}:{b + n - 1}]" if n > 1 else f"v{b}"


def sr(b, n):
    return f"s[{b}:{b + n - 1}]" if n > 1 else f"s{b}"


def magic(d, maxval):
    for sh in range(0, 32):
        m = ((1 << sh) + d - 1) // d
        if m >= (1 << 24) or m * maxval >= (1 << 32):
            continue
        if all((x * m) >> sh == x // d for x in range(maxval + 1)):
            return m, sh
    raise ValueError("no magic")


def udiv(a, dst, src, d, maxval):
    if d & (d - 1) == 0:
        a(f"v_lshrrev_b32 v{dst}, {d.bit_length() - 1}, v{src}")
        return
    m, sh = magic(d, maxval)
    a(f"v_mul_u32_u24 v{dst}, {m}, v{src}")
    a(f"v_lshrrev_b32 v{dst}, {sh}, v{dst}")


def srd(a, dst, ptr, off, size):
    if off:
        a(f"s_add_u32 s{dst}, s{ptr}, {off}")
        a(f"s_addc_u32 s{dst + 1}, s{ptr + 1}, 0")
    else:
        a(f"s_mov_b32 s{dst}, s{ptr}")
        a(f"s_mov_b32 s{dst + 1}, s{ptr + 1}")
    a(f"s_and_b32 s{dst + 1}, s{dst + 1}, 0xffff")
    a(f"s_mov_b32 s{dst + 2}, {size}")
    a(f"s_mov_b32 s{dst + 3}, 0x00020000")


def load_kernargs(a):
    a("s_load_dwordx16 s[16:31], s[0:1], 0")
    a("s_load_dwordx4 s[32:35], s[0:1], 64")
    a("s_load_dwordx2 s[36:37], s[0:1], 80")


def bf16r(a, dst, src):
    a(f"v_cvt_pk_bf16_f32 v{dst}, v{src}, v{src}")
    a(f"v_lshlrev_b32 v{dst}, 16, v{dst}")


STAMP = False
def stamp(a, st):
    if not STAMP:
        return
    i = st[0]
    st[0] += 1
    if i == 0:
        a("s_memrealtime s[68:69]")
    a(f"s_memtime s[{70 + 2 * i}:{71 + 2 * i}]")
    a("s_waitcnt lgkmcnt(0)")


KIDX = [0]


def stamp_flush(a, st, name):
    if not STAMP:
        return
    a("s_memrealtime s[100:101]")
    a("s_waitcnt lgkmcnt(0)")
    a("s_cmp_lg_u32 s7, 0")
    a(f"s_cbranch_scc1 {name}_nod")
    srd(a, 60, P_WS, 0x8000000 + KIDX[0] * 8192, 8192)
    KIDX[0] += 1
    t = a.v(2, 2)
    u = a.v()
    a(f"v_mov_b32 v{t}, s68")
    a(f"v_mov_b32 v{t + 1}, s100")
    a(f"v_mov_b32 v{u}, s2")
    a(f"v_lshlrev_b32 v{u}, 3, v{u}")
    a(f"buffer_store_dwordx2 {vr(t, 2)}, v{u}, s[60:63], 0 offen")
    a.label(f"{name}_nod")
    a("s_cmp_lg_u32 s2, 37")
    a(f"s_cbranch_scc1 {name}_nost")
    a("s_cmp_lg_u32 s7, 0")
    a(f"s_cbranch_scc1 {name}_nost")
    srd(a, 60, P_DBG, 0, 256)
    t = a.v()
    u = a.v()
    a(f"v_mov_b32 v{u}, 0")
    for i in range(st[0]):
        a(f"v_mov_b32 v{t}, s{70 + 2 * i}")
        a(f"buffer_store_dword v{t}, v{u}, s[60:63], 0 offen offset:{128 + 4 * i}")
    a.label(f"{name}_nost")


def kernel_header(name):
    return (f".globl {name}\n.p2align 8\n.type {name},@function\n{name}:\n")


def kernel_desc(name, nvgpr, nsgpr=102):
    acc = (nvgpr + 3) // 4 * 4
    return f""".amdhsa_kernel {name}
  .amdhsa_next_free_vgpr {nvgpr}
  .amdhsa_next_free_sgpr {nsgpr}
  .amdhsa_accum_offset {acc}
  .amdhsa_group_segment_fixed_size 0
  .amdhsa_kernarg_size 88
  .amdhsa_user_sgpr_count 2
  .amdhsa_user_sgpr_kernarg_segment_ptr 1
  .amdhsa_system_sgpr_workgroup_id_x 1
.end_amdhsa_kernel
"""


def gelu(a, x, t0, t1, sc):
    a(f"v_mul_f32 v{t0}, v{x}, v{x}")
    a(f"v_fma_f32 v{t0}, v{t0}, s{sc['c3']}, v{sc['vc1']}")
    a(f"v_mul_f32 v{t0}, v{t0}, v{x}")
    a(f"v_exp_f32 v{t0}, v{t0}")
    a("s_nop 0")
    a(f"v_add_f32 v{t0}, 1.0, v{t0}")
    a(f"v_rcp_f32 v{t0}, v{t0}")
    a("s_nop 0")
    a(f"v_mul_f32 v{x}, v{x}, v{t0}")


import struct
import math


def f32bits(x):
    return struct.unpack("<I", struct.pack("<f", x))[0]


def gen_gemm(name, NT, W, KS, ldb, n_ntiles, ring, a_src, b_ptr, b_size, ln, shift, epi, PD=5, CH=4, a_lds=False, LA=2,
             stats_src=None, MT=1, pf=None, map2d=False, NS=1):
    a = Asm()
    WM = W // NS
    NTW = NT // NS
    assert NS == 1 or a_lds
    BM = 16 * WM * MT
    n_mtiles = S // BM
    NWG = n_mtiles * n_ntiles
    if map2d:
        NWG = 256
    mper = n_mtiles // 8
    NCH = KS // CH
    RPC = CH * NT // W
    assert CH * NT % W == 0
    BSLOT = NT * 1024 * CH
    ASLOT = (WM * MT * 2048) if a_lds else 0
    if a_lds:
        assert CH == 2
    ring = min(ring, NCH)
    RA = min(NCH, LA + 2)
    A_LDS0 = ring * BSLOT
    lds_bytes = ring * (BSLOT + ASLOT)
    K = KS * 32
    PER = {4: 4, 5: 1, 6: 2, 8: 8}[NT]

    def swz(dst, ri):
        if PER == 8:
            a(f"v_mov_b32 v{dst}, v{ri}")
        elif PER == 4:
            a(f"v_lshrrev_b32 v{dst}, 1, v{ri}")
        elif PER == 2:
            a(f"v_lshrrev_b32 v{dst}, 2, v{ri}")

    a(f"s_cmp_ge_u32 s2, {NWG}")
    a(f"s_cbranch_scc1 {name}_end")
    st = [0]
    stamp(a, st)
    load_kernargs(a)
    a("s_and_b32 s3, s2, 7")
    a("s_lshr_b32 s4, s2, 3")
    sh = mper.bit_length() - 1
    assert 1 << sh == mper
    if map2d:
        a("s_and_b32 s5, s3, 1")
        a("s_lshr_b32 s9, s3, 1")
        a("s_lshl_b32 s3, s5, 3")
        a("s_and_b32 s5, s4, 7")
        a("s_add_u32 s3, s3, s5")
        a("s_lshr_b32 s4, s4, 3")
        a("s_lshl_b32 s9, s9, 2")
        a("s_add_u32 s4, s4, s9")
        a(f"s_cmp_ge_u32 s4, {n_ntiles}")
        a(f"s_cbranch_scc1 {name}_end")
    else:
        a(f"s_lshl_b32 s3, s3, {sh}")
        a(f"s_and_b32 s5, s4, {mper - 1}")
        a("s_add_u32 s3, s3, s5")
        a(f"s_lshr_b32 s4, s4, {sh}")
    a(f"s_mul_i32 s5, s3, {BM}")
    a(f"s_mul_i32 s6, s4, {16 * NT}")
    vw, vl, vr16, vg = a.v(), a.v(), a.v(), a.v()
    a(f"v_lshrrev_b32 v{vw}, 6, v0")
    a(f"v_and_b32 v{vl}, 63, v0")
    a(f"v_and_b32 v{vr16}, 15, v0")
    a(f"v_bfe_u32 v{vg}, v0, 4, 2")
    a("s_nop 0")
    a(f"v_readfirstlane_b32 s7, v{vw}")
    a("s_lshl_b32 s8, s7, 10")
    a("s_lshr_b32 s9, s5, 4")
    a(f"s_lshr_b32 s38, s7, {NS.bit_length() - 1}")
    a(f"s_and_b32 s39, s7, {NS - 1}")
    a(f"s_mul_i32 s64, s38, {MT}")
    a("s_add_u32 s64, s64, s9")
    vrow = []
    for mt in range(MT):
        if mt:
            a(f"s_add_u32 s{64 + mt}, s64, {mt}")
        vrow.append(a.v())
        a(f"v_lshl_add_u32 v{vrow[mt]}, s{64 + mt}, 4, v{vr16}")
    t0 = a.v(4, 4)
    t1, t2, t3 = t0 + 1, t0 + 2, t0 + 3
    SA, SB = 40, 44
    if a_lds:
        APW = WM * MT // W
        vaoff = [a.v()]
        a(f"v_bfe_u32 v{t0}, v0, 3, 3")
        a(f"v_and_b32 v{t1}, 7, v0")
        a(f"v_xor_b32 v{t1}, v{t1}, v{t0}")
        a(f"s_mul_i32 s10, s7, {16 * APW}")
        a("s_add_u32 s10, s10, s5")
        a(f"v_add_u32 v{t0}, s10, v{t0}")
        a(f"v_mul_u32_u24 v{t0}, {K * 2}, v{t0}")
        a(f"v_lshl_add_u32 v{vaoff[0]}, v{t1}, 4, v{t0}")
        nab = (lds_bytes + 65535) // 65536
        vard = [[a.v() for _ in range(nab)] for _ in range(2)]
        a(f"v_and_b32 v{t0}, 7, v{vr16}")
        a(f"v_lshrrev_b32 v{t1}, 3, v{vr16}")
        a(f"v_lshlrev_b32 v{t1}, 10, v{t1}")
        a(f"v_lshl_add_u32 v{t1}, v{t0}, 7, v{t1}")
        a(f"s_mul_i32 s10, s38, {2048 * MT}")
        a(f"v_add_u32 v{t1}, s10, v{t1}")
        for sl in range(2):
            a(f"v_or_b32 v{t2}, {4 * sl}, v{vg}")
            a(f"v_xor_b32 v{t2}, v{t2}, v{t0}")
            a(f"v_lshl_add_u32 v{vard[sl][0]}, v{t2}, 4, v{t1}")
            for i in range(1, nab):
                a(f"v_add_u32 v{vard[sl][i]}, {65536 * i}, v{vard[sl][0]}")
        a(f"s_mul_i32 s15, s7, {2048 * APW}")
    elif not shift:
        vaoff = [a.v() for _ in range(MT)]
        a(f"v_lshlrev_b32 v{t0}, 4, v{vl}")
        for mt in range(MT):
            a(f"s_mul_i32 s9, s{64 + mt}, {KS * 1024}")
            a(f"v_add_u32 v{vaoff[mt]}, s9, v{t0}")
    else:
        vaoff = [[a.v() for _ in range(4)] for _ in range(MT)]
        a("s_mov_b32 s9, 0x80000000")
        for mt in range(MT):
            for i, d in enumerate((-1, 1, -2, 2)):
                a(f"v_add_u32 v{t0}, {d}, v{vrow[mt]}")
                a(f"v_lshrrev_b32 v{t2}, 4, v{t0}")
                a(f"v_mul_u32_u24 v{t2}, {KS * 1024}, v{t2}")
                a(f"v_and_b32 v{t3}, 15, v{t0}")
                a(f"v_lshl_add_u32 v{t3}, v{vg}, 4, v{t3}")
                a(f"v_lshl_add_u32 v{vaoff[mt][i]}, v{t3}, 4, v{t2}")
                a(f"v_cmp_gt_u32 vcc, {S}, v{t0}")
                a(f"v_mov_b32 v{t1}, s9")
                a("s_nop 1")
                a(f"v_cndmask_b32 v{vaoff[mt][i]}, v{t1}, v{vaoff[mt][i]}, vcc")
    vdma = [a.v() for _ in range(RPC)]
    for p in range(RPC):
        Fv, sl, rr = t0, t1, t2
        d = vdma[p]
        a(f"v_add_u32 v{Fv}, {p * 64 * W}, v0")
        udiv(a, sl, Fv, 2 * NT, 64 * NT * CH)
        a(f"v_mul_u32_u24 v{rr}, {2 * NT}, v{sl}")
        a(f"v_sub_u32 v{rr}, v{Fv}, v{rr}")
        a(f"v_and_b32 v{d}, 0xfffffff3, v{sl}")
        a(f"v_bfe_u32 v{t0}, v{sl}, 2, 1")
        a(f"v_lshl_add_u32 v{d}, v{t0}, 3, v{d}")
        a(f"v_bfe_u32 v{t0}, v{sl}, 3, 1")
        a(f"v_lshl_add_u32 v{d}, v{t0}, 2, v{d}")
        a(f"v_mul_u32_u24 v{d}, {ldb}, v{d}")
        if PER > 1:
            a(f"v_and_b32 v{t0}, 7, v{sl}")
            swz(t0, t0)
            a(f"v_lshlrev_b32 v{t0}, 1, v{t0}")
            a(f"v_xor_b32 v{rr}, v{rr}, v{t0}")
        a(f"v_lshl_add_u32 v{d}, v{rr}, 4, v{d}")
        a(f"v_lshl_add_u32 v{d}, s6, 1, v{d}")
    nbase = (A_LDS0 + 65535) // 65536
    NPB = min(PER, NTW)
    vb = [[a.v() for _ in range(nbase)] for _ in range(NPB)]
    a(f"s_mul_i32 s13, s39, {NTW}")
    a(f"v_bfe_u32 v{t0}, v0, 2, 3")
    a(f"v_bfe_u32 v{t1}, v0, 5, 1")
    a(f"v_lshl_add_u32 v{t1}, v{t1}, 4, v{t0}")
    a(f"v_mul_u32_u24 v{t1}, {NT * 32}, v{t1}")
    a(f"v_and_b32 v{t2}, 3, v0")
    a(f"v_lshl_add_u32 v{t1}, v{t2}, 3, v{t1}")
    swz(t0, t0)
    for tp in range(NPB):
        if PER > 1:
            a(f"s_add_u32 s9, s13, {tp}")
            a(f"v_xor_b32 v{t2}, s9, v{t0}")
            a(f"v_lshl_add_u32 v{vb[tp][0]}, v{t2}, 5, v{t1}")
        else:
            a(f"v_mov_b32 v{vb[0][0]}, v{t1}")
        for i in range(1, nbase):
            a(f"v_add_u32 v{vb[tp][i]}, {65536 * i}, v{vb[tp][0]}")
    if ln:
        NX = (NT + W - 1) // W
        vbx = [[a.v() for _ in range(nbase)] for _ in range(NX)]
        for x in range(NX):
            a(f"s_add_u32 s9, s7, {x * W}")
            a(f"s_min_u32 s9, s9, {NT - 1}")
            if PER > 1:
                a(f"v_xor_b32 v{t2}, s9, v{t0}")
            else:
                a(f"v_mov_b32 v{t2}, s9")
            a(f"v_lshl_add_u32 v{vbx[x][0]}, v{t2}, 5, v{t1}")
            for i in range(1, nbase):
                a(f"v_add_u32 v{vbx[x][i]}, {65536 * i}, v{vbx[x][0]}")
        vones = a.v(4, 4)
        for i in range(4):
            a(f"v_mov_b32 v{vones + i}, 0x3f803f80")
        vsum = [a.v() for _ in range(MT)]
        vsq = [a.v() for _ in range(MT)]
        for mt in range(MT):
            a(f"v_mov_b32 v{vsum[mt]}, 0")
            a(f"v_mov_b32 v{vsq[mt]}, 0")
        acs = [a.v(4, 4) for _ in range(NX)]
        if stats_src is None:
            accs = [a.v(4, 4) for _ in range(MT)]
            accq = [a.v(4, 4) for _ in range(MT)]
            for mt in range(MT):
                for i in range(4):
                    a(f"v_mov_b32 v{accs[mt] + i}, 0")
                    a(f"v_mov_b32 v{accq[mt] + i}, 0")
    acc = [[a.v(4, 4) for _ in range(NTW)] for _ in range(MT)]
    if NS > 1:
        a("s_lshl_b32 s9, s13, 4")
        a("s_add_u32 s6, s6, s9")
    if a_lds:
        areg = [[a.v(4, 4) for _ in range(MT)] for _ in range(4)]
    else:
        areg = [[[a.v(4, 4) for _ in range(MT)] for _ in range(CH)] for _ in range(RA)]
    a("s_waitcnt lgkmcnt(0)")
    stamp(a, st)
    aptr, aoff, asize = a_src
    srd(a, SA, aptr, aoff, asize)
    srd(a, SB, b_ptr, 0, b_size)
    pfl = []
    if pf is not None:
        PSTEP = W * 64 * 128
        vpd = a.v()
        vp7 = a.v()
        a(f"v_lshlrev_b32 v{vp7}, 7, v0")
        for (pptr, pbytes, pstart, plen) in pf:
            pper = (plen // 32 + 127) // 128 * 128
            npf = (pper + PSTEP - 1) // PSTEP
            for i in range(npf):
                lines = [f"s_mov_b32 s96, s{pptr}", f"s_and_b32 s97, s{pptr + 1}, 0xffff", f"s_mov_b32 s98, {min(pbytes, pstart + plen)}",
                         "s_mov_b32 s99, 0x00020000", "s_lshr_b32 s10, s2, 3", f"s_mul_i32 s10, s10, {pper}",
                         f"s_add_u32 s10, s10, {pstart + i * PSTEP}", f"buffer_load_dword v{vpd}, v{vp7}, s[96:99], s10 offen"]
                pfl.append((lines, 'p'))
    vm = []
    ctxs = [dict(a=a, NT=NTW, vrow=vrow[mt], vg=vg, vr16=vr16, vl=vl, t=(t0, t1, t2, t3), acc=acc[mt], vm=vm,
                 name=name, stile=64 + mt, mt=mt) for mt in range(MT)]
    epis = [epi() for _ in range(MT)]
    pend = []

    def queue_chunk(c):
        slot = c % ring
        if a_lds:
            for i in range(2 * APW):
                pend.append(([f"s_mov_b32 s10, {i * 8 * K * 2 + c * 128}",
                              f"s_add_u32 m0, s15, {A_LDS0 + slot * ASLOT + i * 1024}",
                              "s_nop 0",
                              f"buffer_load_dwordx4 v{vaoff[0]}, s[{SA}:{SA + 3}], s10 offen lds"], c))
        else:
            for s in range(CH):
                ks = c * CH + s
                for mt in range(MT):
                    vo = vaoff[mt][ks // 5] if shift else vaoff[mt]
                    pend.append(([f"s_mov_b32 s10, {c * CH * 1024}",
                                  f"buffer_load_dwordx4 {vr(areg[c % RA][s][mt], 4)}, v{vo}, s[{SA}:{SA + 3}], s10 offen offset:{s * 1024}"], c))
        for p in range(RPC):
            pend.append(([f"s_mov_b32 s10, {c * CH * 32 * ldb}",
                          f"s_add_u32 m0, s8, {slot * BSLOT + p * W * 1024}",
                          "s_nop 0",
                          f"buffer_load_dwordx4 v{vdma[p]}, s[{SB}:{SB + 3}], s10 offen lds"], c))

    def emit_pending(n=1):
        for _ in range(n):
            if not pend:
                return
            lines, tag = pend.pop(0)
            for l in lines:
                a(l)
            vm.append(tag)

    if ring < NCH:
        assert LA <= ring - 2
    stamp(a, st)
    for c in range(min(LA, NCH)):
        queue_chunk(c)
        emit_pending(1000)
        if c == 0:
            for mt in range(MT):
                if stats_src is not None:
                    vst = a.v(4, 4)
                    srd(a, 60, P_WS, stats_src, S * 64)
                    a(f"v_lshlrev_b32 v{t0}, 6, v{vrow[mt]}")
                    a(f"v_lshl_add_u32 v{t0}, v{vg}, 4, v{t0}")
                    a(f"buffer_load_dwordx4 {vr(vst, 4)}, v{t0}, s[60:63], 0 offen")
                    vm.append('r')
                    ctxs[mt]['vst'] = vst
                epis[mt].pre(ctxs[mt])
    stamp(a, st)
    for mt in range(MT):
        for t in range(NTW):
            for i in range(4):
                a(f"v_mov_b32 v{acc[mt][t] + i}, 0")
    if ln:
        for x in range(NX):
            for i in range(4):
                a(f"v_mov_b32 v{acs[x] + i}, 0")

    def wait_chunk(c):
        last = max(i for i, tg in enumerate(vm) if isinstance(tg, int) and tg <= c)
        n = min(63, len(vm) - 1 - last)
        a(f"s_waitcnt vmcnt({n})")

    units = []
    for ks in range(KS):
        for t in range(NTW):
            units.append((ks, t))
        if ln:
            for x in range(NX):
                units.append((ks, ('x', x)))
    NB = PD + 2
    breg = [a.v(4, 4) for _ in range(NB)]
    nrd = []

    def issue_read(i):
        ks, t = units[i]
        c = ks // CH
        slot = c % ring
        n = 0
        if a_lds and t == 0:
            for mt in range(MT):
                o = A_LDS0 + slot * ASLOT + mt * 2048
                a(f"ds_read_b128 {vr(areg[ks % 4][mt], 4)}, v{vard[ks % 2][o // 65536]} offset:{o % 65536}")
                n += 1
        off = slot * BSLOT + (ks % CH) * NT * 1024
        if isinstance(t, tuple):
            base = vbx[t[1]]
        else:
            base = vb[t % NPB]
            off += (t - t % NPB) * 32
        r = breg[i % NB]
        for h in range(2):
            o = off + h * 8 * NT * 32
            a(f"ds_read_b64_tr_b16 {vr(r + 2 * h, 2)}, v{base[o // 65536]} offset:{o % 65536}")
            n += 1
        nrd.append(n)

    nread = 0

    def advance_reads(upto):
        nonlocal nread
        while nread < min(upto, len(units)):
            ks, t = units[nread]
            if t == 0 and ks % CH == 0:
                c = ks // CH
                emit_pending(1000)
                wait_chunk(c)
                a("s_barrier")
                if NCH <= 5:
                    stamp(a, st)
                if c + LA < NCH:
                    queue_chunk(c + LA)
                elif c + LA == NCH and pf is not None and not os.environ.get("PFEND"):
                    pend.extend(pfl)
            issue_read(nread)
            nread += 1

    for i, (ks, t) in enumerate(units):
        advance_reads(i + PD + 1)
        ahead = sum(nrd[i + 1:nread])
        assert ahead <= 15
        a(f"s_waitcnt lgkmcnt({ahead})")
        c = ks // CH
        b = breg[i % NB]
        if isinstance(t, tuple):
            x = t[1]
            a(f"v_mfma_f32_16x16x32_bf16 {vr(acs[x], 4)}, {vr(b, 4)}, {vr(vones, 4)}, {vr(acs[x], 4)}")
        else:
            for mt in range(MT):
                ar = areg[ks % 4][mt] if a_lds else areg[c % RA][ks % CH][mt]
                a(f"v_mfma_f32_16x16x32_bf16 {vr(acc[mt][t], 4)}, {vr(b, 4)}, {vr(ar, 4)}, {vr(acc[mt][t], 4)}")
            if ln and t < 2 * MT and stats_src is None:
                mt = t // 2
                ar = areg[ks % 4][mt] if a_lds else areg[c % RA][ks % CH][mt]
                if t % 2 == 0:
                    a(f"v_mfma_f32_16x16x32_bf16 {vr(accs[mt], 4)}, {vr(vones, 4)}, {vr(ar, 4)}, {vr(accs[mt], 4)}")
                else:
                    a(f"v_mfma_f32_16x16x32_bf16 {vr(accq[mt], 4)}, {vr(ar, 4)}, {vr(ar, 4)}, {vr(accq[mt], 4)}")
        emit_pending(1)
    stamp(a, st)
    a("s_nop 7")
    a("s_nop 1")
    if ln:
        a("s_barrier")
        a(f"v_lshlrev_b32 v{t0}, 4, v{vg}")
        for x in range(NX):
            a(f"s_add_u32 s9, s7, {x * W}")
            a(f"s_min_u32 s9, s9, {NT - 1}")
            a("s_lshl_b32 s9, s9, 6")
            a(f"v_add_u32 v{t1}, s9, v{t0}")
            a(f"ds_write_b128 v{t1}, {vr(acs[x], 4)}")
        for mt in range(MT):
            if stats_src is not None:
                vst = ctxs[mt]['vst']
                a(f"v_add_f32 v{vsum[mt]}, v{vst}, v{vst + 2}")
                a(f"v_add_f32 v{vsq[mt]}, v{vst + 1}, v{vst + 3}")
                reduce_g(a, vsum[mt], t2)
                reduce_g(a, vsq[mt], t2)
            else:
                a(f"v_mov_b32 v{vsum[mt]}, v{accs[mt]}")
                a(f"v_and_b32 v{t2}, 3, v{vr16}")
                a(f"v_mov_b32 v{t3}, v{accq[mt]}")
                for i in range(1, 4):
                    a(f"v_cmp_eq_u32 vcc, {i}, v{t2}")
                    a("s_nop 1")
                    a(f"v_cndmask_b32 v{t3}, v{t3}, v{accq[mt] + i}, vcc")
                a(f"v_lshrrev_b32 v{t2}, 2, v{vr16}")
                a(f"v_lshl_add_u32 v{t2}, v{t2}, 4, v{vr16}")
                a(f"v_lshlrev_b32 v{t2}, 2, v{t2}")
                a(f"ds_bpermute_b32 v{vsq[mt]}, v{t2}, v{t3}")
        a("s_waitcnt lgkmcnt(0)")
        a("s_barrier")
        vcs = {}
        pool = list(breg)
        for x_ in areg:
            for y_ in x_:
                pool += (y_ if isinstance(y_, list) else [y_])
        if NS > 1:
            a("s_lshl_b32 s9, s13, 6")
            a(f"v_add_u32 v{t0}, s9, v{t0}")
        for t in range(NTW):
            vcs[t] = pool[t]
            a(f"ds_read_b128 {vr(vcs[t], 4)}, v{t0} offset:{t * 64}")

        def ln_stats(mean, var, mb, sqb):
            bf16r(a, mb, mean)
            bf16r(a, sqb, var)
            a(f"v_add_f32 v{sqb}, s9, v{sqb}")
            bf16r(a, sqb, sqb)
            a(f"v_sqrt_f32 v{sqb}, v{sqb}")
            a("s_nop 0")
            bf16r(a, sqb, sqb)

        vab = []
        for mt in range(MT):
            vmean, vvar, vmb, vsqb, va, vbb = vsum[mt], vsq[mt], a.v(), a.v(), a.v(), a.v()
            a(f"s_mov_b32 s9, {f32bits(1.0 / K):#x}")
            a(f"v_mul_f32 v{vmean}, s9, v{vmean}")
            a(f"v_mul_f32 v{vvar}, s9, v{vvar}")
            a(f"v_fma_f32 v{vvar}, -v{vmean}, v{vmean}, v{vvar}")
            a(f"v_max_f32 v{vvar}, 0, v{vvar}")
            a(f"s_mov_b32 s9, {f32bits(1e-5):#x}")
            ln_stats(vmean, vvar, vmb, vsqb)
            a(f"v_rcp_f32 v{va}, v{vsqb}")
            a("s_nop 0")
            a(f"v_mul_f32 v{vbb}, v{vmb}, v{va}")
            a(f"v_sub_f32 v{vbb}, 0, v{vbb}")
            if ln == 2:
                m2, s2 = a.v(), a.v()
                a(f"v_sub_f32 v{t2}, v{vmean}, v{vmb}")
                a(f"v_mul_f32 v{t2}, v{t2}, v{va}")
                a(f"v_mul_f32 v{t3}, v{vvar}, v{va}")
                a(f"v_mul_f32 v{t3}, v{t3}, v{va}")
                ln_stats(t2, t3, m2, s2)
                a(f"v_rcp_f32 v{s2}, v{s2}")
                a("s_nop 0")
                a(f"v_sub_f32 v{vbb}, v{vbb}, v{m2}")
                a(f"v_mul_f32 v{vbb}, v{vbb}, v{s2}")
                a(f"v_mul_f32 v{va}, v{va}, v{s2}")
            vab.append((va, vbb))
        a("s_waitcnt lgkmcnt(0)")
        for mt in range(MT):
            va, vbb = vab[mt]
            a(f"v_mov_b32 v{t0}, v{va}")
            a(f"v_mov_b32 v{t1}, v{va}")
            a(f"v_mov_b32 v{t2}, v{vbb}")
            a(f"v_mov_b32 v{t3}, v{vbb}")
            for t in range(NTW):
                for i in (0, 2):
                    r = vr(acc[mt][t] + i, 2)
                    a(f"v_pk_mul_f32 {r}, {r}, {vr(t0, 2)}")
                    a(f"v_pk_fma_f32 {r}, {vr(vcs[t] + i, 2)}, {vr(t2, 2)}, {r}")
    for mt in range(MT):
        epis[mt].post(ctxs[mt])
    if pf is not None and os.environ.get("PFEND"):
        pass
    if STAMP:
        a("s_waitcnt vmcnt(0)")
    stamp(a, st)
    stamp_flush(a, st, name)
    a.label(f"{name}_end")
    a("s_endpgm")
    assert a.maxv <= 256, a.maxv
    return a, lds_bytes, NWG, 64 * W


class EpiQKV:
    def pre(self, c):
        a = c['a']
        srd(a, 48, P_WS, WS_Q, 3 * ACT_BYTES)
        self.vo = tiled_offset(c, 60)

    def post(self, c):
        a, NT, acc = c['a'], c['NT'], c['acc']
        for t in range(NT):
            a(f"v_cvt_pk_bf16_f32 v{acc[t]}, v{acc[t]}, v{acc[t] + 1}")
            a(f"v_cvt_pk_bf16_f32 v{acc[t] + 1}, v{acc[t] + 2}, v{acc[t] + 3}")
            a(f"buffer_store_dwordx2 {vr(acc[t], 2)}, v{self.vo}, s[48:51], 0 offen offset:{t * 512}")


def out_offset(c, ld):
    a = c['a']
    vo = a.v()
    a(f"v_mul_u32_u24 v{vo}, {ld}, v{c['vrow']}")
    a(f"v_lshl_add_u32 v{vo}, v{c['vg']}, 3, v{vo}")
    a(f"v_lshl_add_u32 v{vo}, s6, 1, v{vo}")
    return vo


def reduce_g(a, vv, tmp):
    a(f"v_mov_b32 v{tmp}, v{vv}")
    a("s_nop 1")
    a(f"v_permlane16_swap_b32 v{vv}, v{tmp}")
    a("s_nop 1")
    a(f"v_add_f32 v{vv}, v{vv}, v{tmp}")
    a(f"v_mov_b32 v{tmp}, v{vv}")
    a("s_nop 1")
    a(f"v_permlane32_swap_b32 v{vv}, v{tmp}")
    a("s_nop 1")
    a(f"v_add_f32 v{vv}, v{vv}, v{tmp}")


class StatOut:
    def __init__(self, c, off):
        a = c['a']
        self.c, self.off = c, off
        self.s = a.v(2, 2)
        a(f"v_mov_b32 v{self.s}, 0")
        a(f"v_mov_b32 v{self.s + 1}, 0")

    def add_packed(self, pk, t0, t1):
        a = self.c['a']
        unpack2(a, t0, t1, pk)
        a(f"v_add_f32 v{self.s}, v{self.s}, v{t0}")
        a(f"v_fmac_f32 v{self.s + 1}, v{t0}, v{t0}")
        a(f"v_add_f32 v{self.s}, v{self.s}, v{t1}")
        a(f"v_fmac_f32 v{self.s + 1}, v{t1}, v{t1}")

    def finish(self):
        c = self.c
        a = c['a']
        t0, t1, t2, t3 = c['t']
        reduce_g(a, self.s, t0)
        reduce_g(a, self.s + 1, t0)
        srd(a, 60, P_WS, self.off, S * 64)
        a(f"v_lshlrev_b32 v{t0}, 6, v{c['vrow']}")
        a("s_lshl_b32 s9, s4, 3")
        a(f"v_add_u32 v{t0}, s9, v{t0}")
        a("s_mov_b32 s9, 0x80000000")
        a(f"v_mov_b32 v{t1}, s9")
        a(f"v_cmp_eq_u32 vcc, 0, v{c['vg']}")
        a("s_nop 1")
        a(f"v_cndmask_b32 v{t0}, v{t1}, v{t0}, vcc")
        a(f"buffer_store_dwordx2 {vr(self.s, 2)}, v{t0}, s[60:63], 0 offen")


def tiled_offset(c, ks_out):
    a = c['a']
    t0 = c['t'][0]
    vo = a.v()
    a(f"s_mul_i32 s9, s{c['stile']}, {ks_out * 1024}")
    a("s_lshl_b32 s14, s6, 5")
    a("s_add_u32 s9, s9, s14")
    a(f"v_lshrrev_b32 v{t0}, 1, v{c['vg']}")
    a(f"v_lshl_add_u32 v{t0}, v{t0}, 4, v{c['vr16']}")
    a(f"v_lshlrev_b32 v{vo}, 4, v{t0}")
    a(f"v_and_b32 v{t0}, 1, v{c['vg']}")
    a(f"v_lshl_add_u32 v{vo}, v{t0}, 3, v{vo}")
    a(f"v_add_u32 v{vo}, s9, v{vo}")
    return vo


def unpack2(a, lo, hi, src):
    if lo == src:
        a(f"v_and_b32 v{hi}, 0xffff0000, v{src}")
        a(f"v_lshlrev_b32 v{lo}, 16, v{src}")
    else:
        a(f"v_lshlrev_b32 v{lo}, 16, v{src}")
        a(f"v_and_b32 v{hi}, 0xffff0000, v{src}")


class EpiResid:
    def __init__(self, res_ptr, res_off, out_ptr, out_off):
        self.r = (res_ptr, res_off)
        self.o = (out_ptr, out_off)

    def pre(self, c):
        a, NT = c['a'], c['NT']
        srd(a, 48, self.o[0], self.o[1], ACT_BYTES)
        srd(a, 52, self.r[0], self.r[1], ACT_BYTES)
        self.vr = out_offset(c, D * 2)
        self.vo = tiled_offset(c, 20)
        self.res = [a.v(2, 2) for _ in range(NT)]
        for t in range(NT):
            a(f"buffer_load_dwordx2 {vr(self.res[t], 2)}, v{self.vr}, s[52:55], 0 offen offset:{t * 32}")
            c['vm'].append('r')

    def post(self, c):
        a, NT, acc = c['a'], c['NT'], c['acc']
        t0, t1, t2, t3 = c['t']
        so = StatOut(c, WS_STH)
        for t in range(NT):
            for hh in range(2):
                a(f"v_cvt_pk_bf16_f32 v{t0}, v{acc[t] + 2 * hh}, v{acc[t] + 2 * hh + 1}")
                unpack2(a, t1, t2, t0)
                unpack2(a, t0, t3, self.res[t] + hh)
                a(f"v_add_f32 v{t1}, v{t1}, v{t0}")
                a(f"v_add_f32 v{t2}, v{t2}, v{t3}")
                a(f"v_cvt_pk_bf16_f32 v{acc[t] + hh}, v{t1}, v{t2}")
                so.add_packed(acc[t] + hh, t0, t1)
            a(f"buffer_store_dwordx2 {vr(acc[t], 2)}, v{self.vo}, s[48:51], 0 offen offset:{t * 512}")
        so.finish()


GC1 = -2.0 * math.log2(math.e) * math.sqrt(2.0 / math.pi)
GC3 = GC1 * 0.044715


class EpiGelu:
    def __init__(self, out_off, ld, size):
        self.out_off, self.ld, self.size = out_off, ld, size

    def pre(self, c):
        a = c['a']
        srd(a, 48, P_WS, self.out_off, self.size)
        self.vo = tiled_offset(c, self.ld // 64)
        self.vc1 = a.v(6, 2)
        for i, cv in enumerate((GC1, GC1, GC3, GC3, 1.0, 1.0)):
            a(f"v_mov_b32 v{self.vc1 + i}, {f32bits(cv):#x}")

    def post(self, c):
        a, NT, acc = c['a'], c['NT'], c['acc']
        tt = c['t']
        for t in range(NT):
            r = [acc[t] + i for i in range(4)]
            a(f"v_cvt_pk_bf16_f32 v{tt[0]}, v{r[0]}, v{r[1]}")
            a(f"v_cvt_pk_bf16_f32 v{tt[1]}, v{r[2]}, v{r[3]}")
            unpack2(a, r[0], r[1], tt[0])
            unpack2(a, r[2], r[3], tt[1])
            for i in (0, 2):
                a(f"v_pk_mul_f32 {vr(tt[i], 2)}, {vr(r[i], 2)}, {vr(r[i], 2)}")
            for i in (0, 2):
                a(f"v_pk_fma_f32 {vr(tt[i], 2)}, {vr(tt[i], 2)}, {vr(self.vc1 + 2, 2)}, {vr(self.vc1, 2)}")
            for i in (0, 2):
                a(f"v_pk_mul_f32 {vr(tt[i], 2)}, {vr(tt[i], 2)}, {vr(r[i], 2)}")
            for i in range(4):
                a(f"v_exp_f32 v{tt[i]}, v{tt[i]}")
            a("s_nop 0")
            for i in (0, 2):
                a(f"v_pk_add_f32 {vr(tt[i], 2)}, {vr(tt[i], 2)}, {vr(self.vc1 + 4, 2)}")
            for i in range(4):
                a(f"v_rcp_f32 v{tt[i]}, v{tt[i]}")
            a("s_nop 0")
            for i in (0, 2):
                a(f"v_pk_mul_f32 {vr(r[i], 2)}, {vr(r[i], 2)}, {vr(tt[i], 2)}")
            a(f"v_cvt_pk_bf16_f32 v{acc[t]}, v{acc[t]}, v{acc[t] + 1}")
            a(f"v_cvt_pk_bf16_f32 v{acc[t] + 1}, v{acc[t] + 2}, v{acc[t] + 3}")
            a(f"buffer_store_dwordx2 {vr(acc[t], 2)}, v{self.vo}, s[48:51], 0 offen offset:{t * 512}")


class EpiX1:
    def pre(self, c):
        a, NT = c['a'], c['NT']
        srd(a, 48, P_WS, WS_X1, ACT_BYTES)
        srd(a, 52, P_WS, WS_H, ACT_BYTES)
        self.vo = tiled_offset(c, 20)
        self.res = [a.v(2, 2) for _ in range(NT)]
        for t in range(NT):
            a(f"buffer_load_dwordx2 {vr(self.res[t], 2)}, v{self.vo}, s[52:55], 0 offen offset:{t * 512}")
            c['vm'].append('r')

    def post(self, c):
        a, NT, acc = c['a'], c['NT'], c['acc']
        t0, t1, t2, t3 = c['t']
        vst = c['vst']
        mb, rs = vst, vst + 1
        a(f"v_add_f32 v{vst}, v{vst}, v{vst + 2}")
        a(f"v_add_f32 v{vst + 1}, v{vst + 1}, v{vst + 3}")
        reduce_g(a, vst, t0)
        reduce_g(a, vst + 1, t0)
        a(f"s_mov_b32 s9, {f32bits(1.0 / D):#x}")
        a(f"v_mul_f32 v{vst}, s9, v{vst}")
        a(f"v_mul_f32 v{vst + 1}, s9, v{vst + 1}")
        a(f"v_fma_f32 v{vst + 1}, -v{vst}, v{vst}, v{vst + 1}")
        a(f"v_max_f32 v{vst + 1}, 0, v{vst + 1}")
        a(f"s_mov_b32 s9, {f32bits(1e-5):#x}")
        bf16r(a, mb, mb)
        bf16r(a, rs, rs)
        a(f"v_add_f32 v{rs}, s9, v{rs}")
        bf16r(a, rs, rs)
        a(f"v_sqrt_f32 v{rs}, v{rs}")
        a("s_nop 0")
        bf16r(a, rs, rs)
        a(f"v_rcp_f32 v{rs}, v{rs}")
        so = StatOut(c, WS_STX)
        for t in range(NT):
            for hh in range(2):
                unpack2(a, t0, t1, self.res[t] + hh)
                a(f"v_sub_f32 v{t0}, v{t0}, v{mb}")
                a(f"v_sub_f32 v{t1}, v{t1}, v{mb}")
                a(f"v_cvt_pk_bf16_f32 v{t0}, v{t0}, v{t1}")
                unpack2(a, t0, t1, t0)
                a(f"v_mul_f32 v{t0}, v{t0}, v{rs}")
                a(f"v_mul_f32 v{t1}, v{t1}, v{rs}")
                a(f"v_cvt_pk_bf16_f32 v{t0}, v{t0}, v{t1}")
                unpack2(a, t0, t1, t0)
                a(f"v_cvt_pk_bf16_f32 v{t2}, v{acc[t] + 2 * hh}, v{acc[t] + 2 * hh + 1}")
                unpack2(a, t2, t3, t2)
                a(f"v_add_f32 v{t0}, v{t0}, v{t2}")
                a(f"v_add_f32 v{t1}, v{t1}, v{t3}")
                a(f"v_cvt_pk_bf16_f32 v{acc[t] + hh}, v{t0}, v{t1}")
                so.add_packed(acc[t] + hh, t0, t1)
            a(f"buffer_store_dwordx2 {vr(acc[t], 2)}, v{self.vo}, s[48:51], 0 offen offset:{t * 512}")
        so.finish()


class EpiFinal:
    def pre(self, c):
        a, NT = c['a'], c['NT']
        srd(a, 48, P_OUT, 0, ACT_BYTES)
        srd(a, 52, P_WS, WS_H, ACT_BYTES)
        srd(a, 56, P_WS, WS_X1, ACT_BYTES)
        self.vo = out_offset(c, D * 2)
        self.vt = tiled_offset(c, 20)
        self.h = [a.v(2, 2) for _ in range(NT)]
        self.x = [a.v(2, 2) for _ in range(NT)]
        for t in range(NT):
            a(f"buffer_load_dwordx2 {vr(self.h[t], 2)}, v{self.vt}, s[52:55], 0 offen offset:{t * 512}")
            c['vm'].append('r')
            a(f"buffer_load_dwordx2 {vr(self.x[t], 2)}, v{self.vt}, s[56:59], 0 offen offset:{t * 512}")
            c['vm'].append('r')

    def post(self, c):
        a, NT, acc = c['a'], c['NT'], c['acc']
        t0, t1, t2, t3 = c['t']
        for t in range(NT):
            for hh in range(2):
                a(f"v_cvt_pk_bf16_f32 v{t0}, v{acc[t] + 2 * hh}, v{acc[t] + 2 * hh + 1}")
                unpack2(a, t0, t1, t0)
                unpack2(a, t2, t3, self.x[t] + hh)
                a(f"v_add_f32 v{t0}, v{t0}, v{t2}")
                a(f"v_add_f32 v{t1}, v{t1}, v{t3}")
                a(f"v_cvt_pk_bf16_f32 v{t0}, v{t0}, v{t1}")
                unpack2(a, t0, t1, t0)
                unpack2(a, t2, t3, self.h[t] + hh)
                a(f"v_add_f32 v{t0}, v{t0}, v{t2}")
                a(f"v_add_f32 v{t1}, v{t1}, v{t3}")
                a(f"v_cvt_pk_bf16_f32 v{acc[t] + hh}, v{t0}, v{t1}")
            a(f"buffer_store_dwordx2 {vr(acc[t], 2)}, v{self.vo}, s[48:51], 0 offen offset:{t * 32}")


def gen_attn(name):
    a = Asm()
    W = 8
    PK = 8192
    PV = 8192 + 128
    L_K = 0
    L_BIAS = 3 * PK
    L_V = 4 * PK
    L_ONE = L_V + 3 * PV
    lds_bytes = L_ONE + 8192
    a("s_cmp_ge_u32 s2, 256")
    a(f"s_cbranch_scc1 {name}_end")
    st = [0]
    stamp(a, st)
    load_kernargs(a)
    a("s_and_b32 s4, s2, 7")
    a("s_lshr_b32 s3, s2, 3")
    a("s_lshl_b32 s4, s4, 2")
    a("s_and_b32 s5, s3, 3")
    a("s_add_u32 s4, s4, s5")
    a("s_lshr_b32 s3, s3, 2")
    a("s_lshl_b32 s5, s3, 8")
    vw, vl, vr16, vg = a.v(), a.v(), a.v(), a.v()
    t0, t1, t2, t3 = a.v(), a.v(), a.v(), a.v()
    a(f"v_lshrrev_b32 v{vw}, 6, v0")
    a(f"v_and_b32 v{vl}, 63, v0")
    a(f"v_and_b32 v{vr16}, 15, v0")
    a(f"v_bfe_u32 v{vg}, v0, 4, 2")
    a("s_nop 0")
    a(f"v_readfirstlane_b32 s7, v{vw}")
    a("s_lshl_b32 s8, s7, 10")
    a("s_mul_i32 s6, s4, 20")
    a("s_lshr_b32 s6, s6, 3")
    a("s_lshl_b32 s6, s6, 8")
    a("s_and_b32 s66, s4, 1")
    a("s_sub_u32 s9, s5, 256")
    a("s_mov_b32 s12, 0x80000000")
    a(f"v_add_u32 v{t1}, s9, v0")
    a(f"v_ashrrev_i32 v{t2}, 4, v{t1}")
    a(f"v_mul_i32_i24 v{t2}, 61440, v{t2}")
    a(f"v_lshl_add_u32 v{t2}, v{vr16}, 4, v{t2}")
    a(f"v_cmp_gt_i32 vcc, 0, v{t1}")
    a(f"v_mov_b32 v{t3}, s12")
    a("s_nop 1")
    a(f"v_cndmask_b32 v{t2}, v{t2}, v{t3}, vcc")
    a("s_waitcnt lgkmcnt(0)")
    srd(a, 40, P_WS, WS_Q, 3 * ACT_BYTES)
    srd(a, 52, P_WS, WS_O, ACT_BYTES)
    a("s_cmp_ge_u32 s2, 32")
    a(f"s_cbranch_scc1 {name}_nz")
    srd(a, 56, P_WS, WS_CNT, 32 * 256)
    a("s_lshl_b32 s10, s2, 8")
    a(f"v_mov_b32 v{t0}, 0")
    a(f"buffer_store_dword v{t0}, v{t0}, s[56:59], s10 offen")
    a.label(f"{name}_nz")
    for sec, base, pitch in ((1, L_K, PK), (2, L_V, PV)):
        for g in range(3):
            a(f"s_add_u32 s10, s6, {sec * 80 * 256 + g * 256}")
            a(f"s_add_u32 m0, s8, {base + g * pitch}")
            a("s_nop 0")
            a(f"buffer_load_dwordx4 v{t2}, s[40:43], s10 offen lds")
    vz = a.v(4, 4)
    a(f"v_mov_b32 v{vz}, 0")
    a(f"v_mov_b32 v{t3}, 0xf149")
    a(f"v_cndmask_b32 v{vz}, v{vz}, v{t3}, vcc")
    a(f"v_mov_b32 v{vz + 1}, 0")
    a(f"v_mov_b32 v{vz + 2}, 0")
    a(f"v_mov_b32 v{vz + 3}, 0")
    a(f"v_lshlrev_b32 v{t0}, 4, v0")
    a(f"ds_write_b128 v{t0}, {vr(vz, 4)} offset:{L_BIAS}")
    a(f"v_mov_b32 v{vz}, 0x3f80")
    a(f"ds_write_b128 v{t0}, {vr(vz, 4)} offset:{L_ONE}")
    vq = [a.v(4, 4) for _ in range(2)]
    vtok = a.v()
    a(f"v_lshl_add_u32 v{vtok}, v{vw}, 5, v{vr16}")
    a(f"v_add_u32 v{vtok}, s5, v{vtok}")
    a(f"v_lshrrev_b32 v{t0}, 4, v{vtok}")
    a(f"v_mul_u32_u24 v{t0}, 61440, v{t0}")
    a(f"v_lshl_add_u32 v{t0}, v{vr16}, 4, v{t0}")
    a(f"v_lshl_add_u32 v{t0}, v{vg}, 8, v{t0}")
    a(f"v_mov_b32 v{t3}, s12")
    a(f"v_cmp_gt_u32 vcc, 3, v{vg}")
    a("s_nop 1")
    a(f"v_cndmask_b32 v{t1}, v{t3}, v{t0}, vcc")
    for qt in range(2):
        a(f"s_add_u32 s10, s6, {qt * 61440}")
        a(f"buffer_load_dwordx4 {vr(vq[qt], 4)}, v{t1}, s[40:43], s10 offen")
    mfirst = a.v(4, 4)
    mlast = a.v(4, 4)
    a(f"v_mov_b32 v{t3}, 0xf149f2ca")
    a(f"v_lshlrev_b32 v{t0}, 2, v{vg}")
    for r in range(4):
        a(f"v_add_u32 v{t1}, {r}, v{t0}")
        a(f"v_cmp_gt_u32 vcc, v{t1}, v{vr16}")
        a("s_nop 1")
        a(f"v_cndmask_b32 v{mfirst + r}, v{t3}, 0, vcc")
        a(f"v_cndmask_b32 v{mlast + r}, 0, v{t3}, vcc")
    vka = a.v()
    a(f"v_lshlrev_b32 v{t0}, 4, v{vr16}")
    a(f"v_lshl_add_u32 v{t0}, v{vw}, 9, v{t0}")
    a(f"v_mul_u32_u24 v{t1}, {PK}, v{vg}")
    a(f"v_add_u32 v{vka}, v{t0}, v{t1}")
    vva = a.v()
    vvb = a.v()
    vvs = a.v()
    a(f"v_bfe_u32 v{t0}, v0, 2, 2")
    a(f"v_lshl_add_u32 v{t0}, v{vg}, 2, v{t0}")
    a(f"v_lshl_add_u32 v{t0}, v{vw}, 5, v{t0}")
    a(f"v_lshlrev_b32 v{t0}, 4, v{t0}")
    a(f"v_add_u32 v{t0}, {L_V}, v{t0}")
    a(f"v_and_b32 v{t1}, 3, v0")
    a(f"v_add_u32 v{t2}, s66, v{t1}")
    a(f"v_lshrrev_b32 v{t3}, 1, v{t2}")
    a(f"v_mul_u32_u24 v{t3}, {PV}, v{t3}")
    a(f"v_and_b32 v{t2}, 1, v{t2}")
    a(f"v_lshl_add_u32 v{t3}, v{t2}, 3, v{t3}")
    a(f"v_add_u32 v{vva}, v{t0}, v{t3}")
    a("s_lshl_b32 s67, s66, 3")
    a(f"s_add_u32 s67, s67, {2 * PV}")
    a(f"v_add_u32 v{vvb}, s67, v{t0}")
    a(f"v_cmp_eq_u32 vcc, 1, v{t1}")
    a(f"v_add_u32 v{t3}, {L_ONE - L_V}, v{t0}")
    a("s_nop 0")
    a(f"v_cndmask_b32 v{vvb}, v{vvb}, v{t3}, vcc")
    CS = (DH ** -0.5) * math.log2(math.e)
    a(f"s_mov_b32 s13, {f32bits(CS):#x}")
    stamp(a, st)
    a("s_waitcnt vmcnt(0) lgkmcnt(0)")
    stamp(a, st)
    a(f"v_cmp_eq_u32 vcc, 3, v{vg}")
    a(f"v_mov_b32 v{t3}, 0x3f80")
    a("s_nop 0")
    for qt in range(2):
        a(f"v_cndmask_b32 v{vq[qt]}, v{vq[qt]}, v{t3}, vcc")
    a("s_lshl_b32 s10, s66, 1")
    a("s_sub_u32 s10, 2, s10")
    a(f"v_cmp_eq_u32 vcc, s10, v{vg}")
    a("s_cmp_eq_u32 s66, 0")
    a(f"s_cbranch_scc1 {name}_even")
    for qt in range(2):
        a(f"v_cndmask_b32 v{vq[qt]}, v{vq[qt]}, 0, vcc")
        a(f"v_cndmask_b32 v{vq[qt] + 1}, v{vq[qt] + 1}, 0, vcc")
    a(f"s_branch {name}_qdone")
    a.label(f"{name}_even")
    for qt in range(2):
        a(f"v_cndmask_b32 v{vq[qt] + 2}, v{vq[qt] + 2}, 0, vcc")
        a(f"v_cndmask_b32 v{vq[qt] + 3}, v{vq[qt] + 3}, 0, vcc")
    a.label(f"{name}_qdone")
    a("s_barrier")
    srd(a, 96, P_W1, 0, 819200)
    vpd = a.v(4, 4)
    a("s_lshr_b32 s15, s2, 3")
    a("s_mul_i32 s15, s15, 25600")
    a(f"v_lshlrev_b32 v{t0}, 6, v0")
    a(f"v_add_u32 v{t0}, s15, v{t0}")
    a(f"buffer_load_dword v{vpd}, v{t0}, s[96:99], 0 offen")
    srd(a, 92, P_W2, 0, 819200)
    a(f"buffer_load_dword v{vpd + 1}, v{t0}, s[92:95], 0 offen")
    sreg = [a.v(4, 4) for _ in range(18)]
    kf = [a.v(4, 4) for _ in range(4)]
    vf = [a.v(4, 4) for _ in range(6)]
    oacc = [a.v(4, 4) for _ in range(2)]
    preg = [a.v(4, 4) for _ in range(9)]
    vtmp = a.v()
    vadr = a.v()
    vm_, vmc = a.v(), a.v()
    for qt in range(2):
        def kread(i):
            a(f"ds_read_b128 {vr(kf[i % 4], 4)}, v{vka} offset:{(qt + i) * 256}")
        for i in range(3):
            kread(i)
        for i in range(17):
            if i + 3 < 17:
                kread(i + 3)
            ahead = min(3, 16 - i)
            a(f"s_waitcnt lgkmcnt({ahead})")
            cop = vr(mfirst, 4) if i == 0 else (vr(mlast, 4) if i == 16 else "0")
            a(f"v_mfma_f32_16x16x32_bf16 {vr(sreg[i], 4)}, {vr(kf[i % 4], 4)}, {vr(vq[qt], 4)}, {cop}")
        a("s_nop 7")
        a("s_nop 1")
        stamp(a, st)
        vals = [sreg[i] + r for i in range(17) for r in range(4)]
        a(f"v_max3_f32 v{vm_}, v{vals[0]}, v{vals[1]}, v{vals[2]}")
        j = 3
        while j + 1 < len(vals):
            a(f"v_max3_f32 v{vm_}, v{vm_}, v{vals[j]}, v{vals[j + 1]}")
            j += 2
        if j < len(vals):
            a(f"v_max_f32 v{vm_}, v{vm_}, v{vals[j]}")
        a(f"v_mov_b32 v{vtmp}, v{vm_}")
        a("s_nop 1")
        a(f"v_permlane16_swap_b32 v{vm_}, v{vtmp}")
        a("s_nop 1")
        a(f"v_max_f32 v{vm_}, v{vm_}, v{vtmp}")
        a(f"v_mov_b32 v{vtmp}, v{vm_}")
        a("s_nop 1")
        a(f"v_permlane32_swap_b32 v{vm_}, v{vtmp}")
        a("s_nop 1")
        a(f"v_max_f32 v{vm_}, v{vm_}, v{vtmp}")
        a(f"v_mul_f32 v{vmc}, s13, v{vm_}")
        for p_ in range(2):
            k0_ = 16 * (qt + 2 * p_)
            a(f"ds_read_b64_tr_b16 {vr(vf[2 * p_], 2)}, v{vva} offset:{k0_ * 16}")
            a(f"ds_read_b64_tr_b16 {vr(vf[2 * p_] + 2, 2)}, v{vva} offset:{(k0_ + 16) * 16}")
            a(f"ds_read_b64_tr_b16 {vr(vf[2 * p_ + 1], 2)}, v{vvb} offset:{k0_ * 16}")
            a(f"ds_read_b64_tr_b16 {vr(vf[2 * p_ + 1] + 2, 2)}, v{vvb} offset:{(k0_ + 16) * 16}")
        for v in vals:
            a(f"v_fma_f32 v{v}, v{v}, s13, -v{vmc}")
        for v in vals:
            a(f"v_exp_f32 v{v}, v{v}")
        a("s_nop 0")
        for p in range(9):
            ta, tb = 2 * p, 2 * p + 1
            a(f"v_cvt_pk_bf16_f32 v{preg[p]}, v{sreg[ta]}, v{sreg[ta] + 1}")
            a(f"v_cvt_pk_bf16_f32 v{preg[p] + 1}, v{sreg[ta] + 2}, v{sreg[ta] + 3}")
            if tb < 17:
                a(f"v_cvt_pk_bf16_f32 v{preg[p] + 2}, v{sreg[tb]}, v{sreg[tb] + 1}")
                a(f"v_cvt_pk_bf16_f32 v{preg[p] + 3}, v{sreg[tb] + 2}, v{sreg[tb] + 3}")
            else:
                a(f"v_mov_b32 v{preg[p] + 2}, 0")
                a(f"v_mov_b32 v{preg[p] + 3}, 0")
        def vread(p):
            k0 = 16 * (qt + 2 * p)
            k1 = k0 + 16 if 2 * p + 1 < 17 else k0
            fa, fb = vf[(2 * p) % 6], vf[(2 * p + 1) % 6]
            a(f"ds_read_b64_tr_b16 {vr(fa, 2)}, v{vva} offset:{k0 * 16}")
            a(f"ds_read_b64_tr_b16 {vr(fa + 2, 2)}, v{vva} offset:{k1 * 16}")
            a(f"ds_read_b64_tr_b16 {vr(fb, 2)}, v{vvb} offset:{k0 * 16}")
            a(f"ds_read_b64_tr_b16 {vr(fb + 2, 2)}, v{vvb} offset:{k1 * 16}")
        stamp(a, st)
        for p in range(9):
            if p + 2 < 9:
                vread(p + 2)
            a(f"s_waitcnt lgkmcnt({4 * min(2, 8 - p)})")
            fa, fb = vf[(2 * p) % 6], vf[(2 * p + 1) % 6]
            c0 = "0" if p == 0 else vr(oacc[0], 4)
            c1 = "0" if p == 0 else vr(oacc[1], 4)
            a(f"v_mfma_f32_16x16x32_bf16 {vr(oacc[0], 4)}, {vr(fa, 4)}, {vr(preg[p], 4)}, {c0}")
            a(f"v_mfma_f32_16x16x32_bf16 {vr(oacc[1], 4)}, {vr(fb, 4)}, {vr(preg[p], 4)}, {c1}")
        a("s_nop 7")
        a("s_nop 1")
        a(f"v_lshlrev_b32 v{vtmp}, 2, v{vr16}")
        a(f"v_add_u32 v{vtmp}, 64, v{vtmp}")
        a(f"ds_bpermute_b32 v{vm_}, v{vtmp}, v{oacc[1]}")
        a("s_waitcnt lgkmcnt(0)")
        a(f"v_rcp_f32 v{vm_}, v{vm_}")
        a("s_nop 0")
        for r in range(4):
            a(f"v_mul_f32 v{oacc[0] + r}, v{oacc[0] + r}, v{vm_}")
            a(f"v_mul_f32 v{oacc[1] + r}, v{oacc[1] + r}, v{vm_}")
        a(f"v_cvt_pk_bf16_f32 v{oacc[0]}, v{oacc[0]}, v{oacc[0] + 1}")
        a(f"v_cvt_pk_bf16_f32 v{oacc[0] + 1}, v{oacc[0] + 2}, v{oacc[0] + 3}")
        a(f"v_cvt_pk_bf16_f32 v{oacc[1]}, v{oacc[1]}, v{oacc[1] + 1}")
        a(f"v_cvt_pk_bf16_f32 v{oacc[1] + 1}, v{oacc[1] + 2}, v{oacc[1] + 3}")
        a(f"v_add_u32 v{vtmp}, {16 * qt}, v{vtok}")
        a(f"v_lshrrev_b32 v{vtmp}, 4, v{vtmp}")
        a(f"v_mul_u32_u24 v{vtmp}, 20480, v{vtmp}")
        a(f"v_lshl_add_u32 v{vtmp}, v{vr16}, 4, v{vtmp}")
        a("s_mul_i32 s14, s4, 20")
        for which in range(2):
            if which == 0:
                a(f"v_lshl_add_u32 v{vadr}, v{vg}, 2, s14")
            else:
                a(f"v_mov_b32 v{vadr}, s14")
                a(f"v_add_u32 v{vadr}, 16, v{vadr}")
            a(f"v_lshrrev_b32 v{vm_}, 3, v{vadr}")
            a(f"v_and_b32 v{vadr}, 7, v{vadr}")
            a(f"v_lshlrev_b32 v{vadr}, 1, v{vadr}")
            a(f"v_lshl_add_u32 v{vadr}, v{vm_}, 8, v{vadr}")
            a(f"v_add_u32 v{vadr}, v{vadr}, v{vtmp}")
            if which == 1:
                a(f"v_mov_b32 v{vm_}, s12")
                a(f"v_cmp_eq_u32 vcc, 0, v{vg}")
                a("s_nop 1")
                a(f"v_cndmask_b32 v{vadr}, v{vm_}, v{vadr}, vcc")
            a(f"buffer_store_dwordx2 {vr(oacc[which], 2)}, v{vadr}, s[52:55], 0 offen")
        stamp(a, st)
    if STAMP:
        a("s_waitcnt vmcnt(0)")
    stamp(a, st)
    stamp_flush(a, st, name)
    a.label(f"{name}_end")
    a("s_endpgm")
    return a, lds_bytes, 256, 512


def build():
    cfg = os.environ.get("CFG", "A")
    ks = []

    def add(name, **kw):
        ks.append((name,) + gen_gemm(name, **kw))

    if os.environ.get("WARM"):
        w = Asm()
        w("s_endpgm")
        ks.append(("k0_warm_kernel", w, 0, 256, 64))
    add("k1_qkv_kernel", NT=8, W=4, MT=2, KS=20, ldb=3840, n_ntiles=15, ring=5, CH=2, a_lds=True, LA=3,
        a_src=(P_X, 0, ACT_BYTES), b_ptr=P_WQKV, b_size=640 * 1920 * 2, ln=1, shift=False, epi=EpiQKV, pf=[(P_WO, 819200, 0, 819200)], map2d=True)
    ks.append(("k2_attn_kernel",) + gen_attn("k2_attn_kernel"))
    small = dict(NT=5, W=4, MT=1, n_ntiles=8) if cfg == "A" else dict(NT=4, W=4, MT=2, n_ntiles=10)
    add("k3_wo_kernel", KS=20, ldb=1280, ring=5, a_src=(P_WS, WS_O, ACT_BYTES), b_ptr=P_WO, b_size=640 * 640 * 2, ln=0,
        shift=False, epi=lambda: EpiResid(P_X, 0, P_WS, WS_H), pf=[(P_W3, 1966080, 0, 983040)], **small)
    add("k4_w1_kernel", KS=20, ldb=1280, ring=5, a_src=(P_WS, WS_H, ACT_BYTES), b_ptr=P_W1, b_size=640 * 640 * 2, ln=2,
        shift=False, epi=lambda: EpiGelu(WS_G, 1280, ACT_BYTES), stats_src=WS_STH, pf=[(P_W3, 1966080, 983040, 983040)], **small)
    add("k5_w2_kernel", KS=20, ldb=1280, ring=5, a_src=(P_WS, WS_G, ACT_BYTES), b_ptr=P_W2, b_size=640 * 640 * 2, ln=0,
        shift=True, epi=EpiX1, stats_src=WS_STH, pf=[(P_W4, 1966080, 0, 983040)], **small)
    add("k6_w3_kernel", NT=6, W=4, MT=2, KS=20, ldb=3072, n_ntiles=16, ring=10, a_src=(P_WS, WS_X1, ACT_BYTES), b_ptr=P_W3,
        b_size=640 * 1536 * 2, ln=1, shift=False, epi=lambda: EpiGelu(WS_T, 3072, S * F * 2), stats_src=WS_STX, CH=2, LA=4, pf=[(P_W4, 1966080, 983040, 983040)])
    add("k7_w4_kernel", KS=48, ldb=1280, ring=7, a_src=(P_WS, WS_T, S * F * 2), b_ptr=P_W4, b_size=1536 * 640 * 2, ln=0,
        shift=False, epi=EpiFinal, LA=3, **small)
    ref = open("sequential_preLN__sliding_block__mixer_s_mlp__prompt.s.ref").read()
    head = []
    for line in ref.splitlines():
        if not line.startswith(";"):
            break
        if "@launch" in line or "Override launch" in line or "grid=ceil" in line:
            continue
        head.append(line)
    out = "\n".join(head) + "\n"
    for name, a, lds, nwg, thr in ks:
        out += f"; @launch kernel={name} grid=({nwg},1,1) block=({thr},1,1) lds={lds}\n"
    out += '.amdgcn_target "amdgcn-amd-amdhsa--gfx950"\n.text\n'
    for name, a, lds, nwg, thr in ks:
        out += kernel_header(name) + a.text()
    out += '.section .rodata,"a"\n'
    for name, a, lds, nwg, thr in ks:
        out += ".p2align 6\n" + kernel_desc(name, a.maxv)
        print(name, "vgprs", a.maxv, "lds", lds, "wgs", nwg, "instrs", len(a.lines), file=sys.stderr)
    return out


if __name__ == "__main__":
    if len(sys.argv) > 2 and sys.argv[2] == "stamp":
        STAMP = True
    path = sys.argv[1] if len(sys.argv) > 1 else "sequential_preLN__sliding_block__mixer_s_mlp__prompt.s"
    open(path, "w").write(build())
```

```python
import sys, os

S = 2048
D = 640
F = 1536
NH = 32
DH = 20

WS_Q = 0
WS_K = 2621440
WS_V = 5242880
WS_O = 0x800000
WS_H = 0xB00000
WS_G = 0xE00000
WS_X1 = 0x1100000
WS_T = 0x1400000
WS_ST = 0x1B00000
WS_STH = 0x1B00000
WS_STX = 0x1B40000
WS_CNT = 0x1B80000
ACT_BYTES = S * D * 2

P_X, P_WQKV, P_WO, P_BX, P_W1, P_W2, P_W3, P_W4 = 16, 18, 20, 22, 24, 26, 28, 30
P_OUT, P_DBG, P_WS = 32, 34, 36


class Asm:
    def __init__(self):
        self.lines = []
        self.nv = 1
        self.maxv = 1

    def __call__(self, s):
        self.lines.append("    " + s)

    def label(self, s):
        self.lines.append(s + ":")

    def comment(self, s):
        self.lines.append("    ; " + s)

    def v(self, n=1, align=1):
        self.nv = (self.nv + align - 1) // align * align
        r = self.nv
        self.nv += n
        self.maxv = max(self.maxv, self.nv)
        return r

    def text(self):
        return "\n".join(self.lines) + "\n"


def vr(b, n):
    return f"v[{b}:{b + n - 1}]" if n > 1 else f"v{b}"


def sr(b, n):
    return f"s[{b}:{b + n - 1}]" if n > 1 else f"s{b}"


def magic(d, maxval):
    for sh in range(0, 32):
        m = ((1 << sh) + d - 1) // d
        if m >= (1 << 24) or m * maxval >= (1 << 32):
            continue
        if all((x * m) >> sh == x // d for x in range(maxval + 1)):
            return m, sh
    raise ValueError("no magic")


def udiv(a, dst, src, d, maxval):
    if d & (d - 1) == 0:
        a(f"v_lshrrev_b32 v{dst}, {d.bit_length() - 1}, v{src}")
        return
    m, sh = magic(d, maxval)
    a(f"v_mul_u32_u24 v{dst}, {m}, v{src}")
    a(f"v_lshrrev_b32 v{dst}, {sh}, v{dst}")


def srd(a, dst, ptr, off, size):
    if off:
        a(f"s_add_u32 s{dst}, s{ptr}, {off}")
        a(f"s_addc_u32 s{dst + 1}, s{ptr + 1}, 0")
    else:
        a(f"s_mov_b32 s{dst}, s{ptr}")
        a(f"s_mov_b32 s{dst + 1}, s{ptr + 1}")
    a(f"s_and_b32 s{dst + 1}, s{dst + 1}, 0xffff")
    a(f"s_mov_b32 s{dst + 2}, {size}")
    a(f"s_mov_b32 s{dst + 3}, 0x00020000")


def load_kernargs(a):
    a("s_load_dwordx16 s[16:31], s[0:1], 0")
    a("s_load_dwordx4 s[32:35], s[0:1], 64")
    a("s_load_dwordx2 s[36:37], s[0:1], 80")


def bf16r(a, dst, src):
    a(f"v_cvt_pk_bf16_f32 v{dst}, v{src}, v{src}")
    a(f"v_lshlrev_b32 v{dst}, 16, v{dst}")


STAMP = False
def stamp(a, st):
    if not STAMP:
        return
    i = st[0]
    st[0] += 1
    if i == 0:
        a("s_memrealtime s[68:69]")
    a(f"s_memtime s[{70 + 2 * i}:{71 + 2 * i}]")
    a("s_waitcnt lgkmcnt(0)")


KIDX = [0]


def stamp_flush(a, st, name):
    if not STAMP:
        return
    a("s_memrealtime s[100:101]")
    a("s_waitcnt lgkmcnt(0)")
    a("s_cmp_lg_u32 s7, 0")
    a(f"s_cbranch_scc1 {name}_nod")
    srd(a, 60, P_WS, 0x8000000 + KIDX[0] * 8192, 8192)
    KIDX[0] += 1
    t = a.v(2, 2)
    u = a.v()
    a(f"v_mov_b32 v{t}, s68")
    a(f"v_mov_b32 v{t + 1}, s100")
    a(f"v_mov_b32 v{u}, s2")
    a(f"v_lshlrev_b32 v{u}, 3, v{u}")
    a(f"buffer_store_dwordx2 {vr(t, 2)}, v{u}, s[60:63], 0 offen")
    a.label(f"{name}_nod")
    a("s_cmp_lg_u32 s2, 37")
    a(f"s_cbranch_scc1 {name}_nost")
    a("s_cmp_lg_u32 s7, 0")
    a(f"s_cbranch_scc1 {name}_nost")
    srd(a, 60, P_DBG, 0, 256)
    t = a.v()
    u = a.v()
    a(f"v_mov_b32 v{u}, 0")
    for i in range(st[0]):
        a(f"v_mov_b32 v{t}, s{70 + 2 * i}")
        a(f"buffer_store_dword v{t}, v{u}, s[60:63], 0 offen offset:{128 + 4 * i}")
    a.label(f"{name}_nost")


def kernel_header(name):
    return (f".globl {name}\n.p2align 8\n.type {name},@function\n{name}:\n")


def kernel_desc(name, nvgpr, nsgpr=102):
    acc = (nvgpr + 3) // 4 * 4
    return f""".amdhsa_kernel {name}
  .amdhsa_next_free_vgpr {nvgpr}
  .amdhsa_next_free_sgpr {nsgpr}
  .amdhsa_accum_offset {acc}
  .amdhsa_group_segment_fixed_size 0
  .amdhsa_kernarg_size 88
  .amdhsa_user_sgpr_count 2
  .amdhsa_user_sgpr_kernarg_segment_ptr 1
  .amdhsa_system_sgpr_workgroup_id_x 1
.end_amdhsa_kernel
"""


def gelu(a, x, t0, t1, sc):
    a(f"v_mul_f32 v{t0}, v{x}, v{x}")
    a(f"v_fma_f32 v{t0}, v{t0}, s{sc['c3']}, v{sc['vc1']}")
    a(f"v_mul_f32 v{t0}, v{t0}, v{x}")
    a(f"v_exp_f32 v{t0}, v{t0}")
    a("s_nop 0")
    a(f"v_add_f32 v{t0}, 1.0, v{t0}")
    a(f"v_rcp_f32 v{t0}, v{t0}")
    a("s_nop 0")
    a(f"v_mul_f32 v{x}, v{x}, v{t0}")


import struct
import math


def f32bits(x):
    return struct.unpack("<I", struct.pack("<f", x))[0]


def gen_gemm(name, NT, W, KS, ldb, n_ntiles, ring, a_src, b_ptr, b_size, ln, shift, epi, PD=5, CH=4, a_lds=False, LA=2,
             stats_src=None, MT=1, pf=None, map2d=False, NS=1):
    a = Asm()
    WM = W // NS
    NTW = NT // NS
    assert NS == 1 or a_lds
    BM = 16 * WM * MT
    n_mtiles = S // BM
    NWG = n_mtiles * n_ntiles
    if map2d:
        NWG = 256
    mper = n_mtiles // 8
    NCH = KS // CH
    RPC = CH * NT // W
    assert CH * NT % W == 0
    BSLOT = NT * 1024 * CH
    ASLOT = (WM * MT * 2048) if a_lds else 0
    if a_lds:
        assert CH == 2
    ring = min(ring, NCH)
    RA = min(NCH, LA + 2)
    A_LDS0 = ring * BSLOT
    lds_bytes = ring * (BSLOT + ASLOT)
    K = KS * 32
    PER = {4: 4, 5: 1, 6: 2, 8: 8}[NT]

    def swz(dst, ri):
        if PER == 8:
            a(f"v_mov_b32 v{dst}, v{ri}")
        elif PER == 4:
            a(f"v_lshrrev_b32 v{dst}, 1, v{ri}")
        elif PER == 2:
            a(f"v_lshrrev_b32 v{dst}, 2, v{ri}")

    a(f"s_cmp_ge_u32 s2, {NWG}")
    a(f"s_cbranch_scc1 {name}_end")
    st = [0]
    stamp(a, st)
    load_kernargs(a)
    a("s_and_b32 s3, s2, 7")
    a("s_lshr_b32 s4, s2, 3")
    sh = mper.bit_length() - 1
    assert 1 << sh == mper
    if map2d:
        a("s_and_b32 s5, s3, 1")
        a("s_lshr_b32 s9, s3, 1")
        a("s_lshl_b32 s3, s5, 3")
        a("s_and_b32 s5, s4, 7")
        a("s_add_u32 s3, s3, s5")
        a("s_lshr_b32 s4, s4, 3")
        a("s_lshl_b32 s9, s9, 2")
        a("s_add_u32 s4, s4, s9")
        a(f"s_cmp_ge_u32 s4, {n_ntiles}")
        a(f"s_cbranch_scc1 {name}_end")
    else:
        a(f"s_lshl_b32 s3, s3, {sh}")
        a(f"s_and_b32 s5, s4, {mper - 1}")
        a("s_add_u32 s3, s3, s5")
        a(f"s_lshr_b32 s4, s4, {sh}")
    a(f"s_mul_i32 s5, s3, {BM}")
    a(f"s_mul_i32 s6, s4, {16 * NT}")
    vw, vl, vr16, vg = a.v(), a.v(), a.v(), a.v()
    a(f"v_lshrrev_b32 v{vw}, 6, v0")
    a(f"v_and_b32 v{vl}, 63, v0")
    a(f"v_and_b32 v{vr16}, 15, v0")
    a(f"v_bfe_u32 v{vg}, v0, 4, 2")
    a("s_nop 0")
    a(f"v_readfirstlane_b32 s7, v{vw}")
    a("s_lshl_b32 s8, s7, 10")
    a("s_lshr_b32 s9, s5, 4")
    a(f"s_lshr_b32 s38, s7, {NS.bit_length() - 1}")
    a(f"s_and_b32 s39, s7, {NS - 1}")
    a(f"s_mul_i32 s64, s38, {MT}")
    a("s_add_u32 s64, s64, s9")
    vrow = []
    for mt in range(MT):
        if mt:
            a(f"s_add_u32 s{64 + mt}, s64, {mt}")
        vrow.append(a.v())
        a(f"v_lshl_add_u32 v{vrow[mt]}, s{64 + mt}, 4, v{vr16}")
    t0 = a.v(4, 4)
    t1, t2, t3 = t0 + 1, t0 + 2, t0 + 3
    SA, SB = 40, 44
    if a_lds:
        APW = WM * MT // W
        vaoff = [a.v()]
        a(f"v_bfe_u32 v{t0}, v0, 3, 3")
        a(f"v_and_b32 v{t1}, 7, v0")
        a(f"v_xor_b32 v{t1}, v{t1}, v{t0}")
        a(f"s_mul_i32 s10, s7, {16 * APW}")
        a("s_add_u32 s10, s10, s5")
        a(f"v_add_u32 v{t0}, s10, v{t0}")
        a(f"v_mul_u32_u24 v{t0}, {K * 2}, v{t0}")
        a(f"v_lshl_add_u32 v{vaoff[0]}, v{t1}, 4, v{t0}")
        nab = (lds_bytes + 65535) // 65536
        vard = [[a.v() for _ in range(nab)] for _ in range(2)]
        a(f"v_and_b32 v{t0}, 7, v{vr16}")
        a(f"v_lshrrev_b32 v{t1}, 3, v{vr16}")
        a(f"v_lshlrev_b32 v{t1}, 10, v{t1}")
        a(f"v_lshl_add_u32 v{t1}, v{t0}, 7, v{t1}")
        a(f"s_mul_i32 s10, s38, {2048 * MT}")
        a(f"v_add_u32 v{t1}, s10, v{t1}")
        for sl in range(2):
            a(f"v_or_b32 v{t2}, {4 * sl}, v{vg}")
            a(f"v_xor_b32 v{t2}, v{t2}, v{t0}")
            a(f"v_lshl_add_u32 v{vard[sl][0]}, v{t2}, 4, v{t1}")
            for i in range(1, nab):
                a(f"v_add_u32 v{vard[sl][i]}, {65536 * i}, v{vard[sl][0]}")
        a(f"s_mul_i32 s15, s7, {2048 * APW}")
    elif not shift:
        vaoff = [a.v() for _ in range(MT)]
        a(f"v_lshlrev_b32 v{t0}, 4, v{vl}")
        for mt in range(MT):
            a(f"s_mul_i32 s9, s{64 + mt}, {KS * 1024}")
            a(f"v_add_u32 v{vaoff[mt]}, s9, v{t0}")
    else:
        vaoff = [[a.v() for _ in range(4)] for _ in range(MT)]
        a("s_mov_b32 s9, 0x80000000")
        for mt in range(MT):
            for i, d in enumerate((-1, 1, -2, 2)):
                a(f"v_add_u32 v{t0}, {d}, v{vrow[mt]}")
                a(f"v_lshrrev_b32 v{t2}, 4, v{t0}")
                a(f"v_mul_u32_u24 v{t2}, {KS * 1024}, v{t2}")
                a(f"v_and_b32 v{t3}, 15, v{t0}")
                a(f"v_lshl_add_u32 v{t3}, v{vg}, 4, v{t3}")
                a(f"v_lshl_add_u32 v{vaoff[mt][i]}, v{t3}, 4, v{t2}")
                a(f"v_cmp_gt_u32 vcc, {S}, v{t0}")
                a(f"v_mov_b32 v{t1}, s9")
                a("s_nop 1")
                a(f"v_cndmask_b32 v{vaoff[mt][i]}, v{t1}, v{vaoff[mt][i]}, vcc")
    vdma = [a.v() for _ in range(RPC)]
    for p in range(RPC):
        Fv, sl, rr = t0, t1, t2
        d = vdma[p]
        a(f"v_add_u32 v{Fv}, {p * 64 * W}, v0")
        udiv(a, sl, Fv, 2 * NT, 64 * NT * CH)
        a(f"v_mul_u32_u24 v{rr}, {2 * NT}, v{sl}")
        a(f"v_sub_u32 v{rr}, v{Fv}, v{rr}")
        a(f"v_and_b32 v{d}, 0xfffffff3, v{sl}")
        a(f"v_bfe_u32 v{t0}, v{sl}, 2, 1")
        a(f"v_lshl_add_u32 v{d}, v{t0}, 3, v{d}")
        a(f"v_bfe_u32 v{t0}, v{sl}, 3, 1")
        a(f"v_lshl_add_u32 v{d}, v{t0}, 2, v{d}")
        a(f"v_mul_u32_u24 v{d}, {ldb}, v{d}")
        if PER > 1:
            a(f"v_and_b32 v{t0}, 7, v{sl}")
            swz(t0, t0)
            a(f"v_lshlrev_b32 v{t0}, 1, v{t0}")
            a(f"v_xor_b32 v{rr}, v{rr}, v{t0}")
        a(f"v_lshl_add_u32 v{d}, v{rr}, 4, v{d}")
        a(f"v_lshl_add_u32 v{d}, s6, 1, v{d}")
    nbase = (A_LDS0 + 65535) // 65536
    NPB = min(PER, NTW)
    vb = [[a.v() for _ in range(nbase)] for _ in range(NPB)]
    a(f"s_mul_i32 s13, s39, {NTW}")
    a(f"v_bfe_u32 v{t0}, v0, 2, 3")
    a(f"v_bfe_u32 v{t1}, v0, 5, 1")
    a(f"v_lshl_add_u32 v{t1}, v{t1}, 4, v{t0}")
    a(f"v_mul_u32_u24 v{t1}, {NT * 32}, v{t1}")
    a(f"v_and_b32 v{t2}, 3, v0")
    a(f"v_lshl_add_u32 v{t1}, v{t2}, 3, v{t1}")
    swz(t0, t0)
    for tp in range(NPB):
        if PER > 1:
            a(f"s_add_u32 s9, s13, {tp}")
            a(f"v_xor_b32 v{t2}, s9, v{t0}")
            a(f"v_lshl_add_u32 v{vb[tp][0]}, v{t2}, 5, v{t1}")
        else:
            a(f"v_mov_b32 v{vb[0][0]}, v{t1}")
        for i in range(1, nbase):
            a(f"v_add_u32 v{vb[tp][i]}, {65536 * i}, v{vb[tp][0]}")
    if ln:
        NX = (NT + W - 1) // W
        vbx = [[a.v() for _ in range(nbase)] for _ in range(NX)]
        for x in range(NX):
            a(f"s_add_u32 s9, s7, {x * W}")
            a(f"s_min_u32 s9, s9, {NT - 1}")
            if PER > 1:
                a(f"v_xor_b32 v{t2}, s9, v{t0}")
            else:
                a(f"v_mov_b32 v{t2}, s9")
            a(f"v_lshl_add_u32 v{vbx[x][0]}, v{t2}, 5, v{t1}")
            for i in range(1, nbase):
                a(f"v_add_u32 v{vbx[x][i]}, {65536 * i}, v{vbx[x][0]}")
        vones = a.v(4, 4)
        for i in range(4):
            a(f"v_mov_b32 v{vones + i}, 0x3f803f80")
        vsum = [a.v() for _ in range(MT)]
        vsq = [a.v() for _ in range(MT)]
        for mt in range(MT):
            a(f"v_mov_b32 v{vsum[mt]}, 0")
            a(f"v_mov_b32 v{vsq[mt]}, 0")
        acs = [a.v(4, 4) for _ in range(NX)]
        if stats_src is None:
            accs = [a.v(4, 4) for _ in range(MT)]
            accq = [a.v(4, 4) for _ in range(MT)]
            for mt in range(MT):
                for i in range(4):
                    a(f"v_mov_b32 v{accs[mt] + i}, 0")
                    a(f"v_mov_b32 v{accq[mt] + i}, 0")
    acc = [[a.v(4, 4) for _ in range(NTW)] for _ in range(MT)]
    if NS > 1:
        a("s_lshl_b32 s9, s13, 4")
        a("s_add_u32 s6, s6, s9")
    if a_lds:
        areg = [[a.v(4, 4) for _ in range(MT)] for _ in range(4)]
    else:
        areg = [[[a.v(4, 4) for _ in range(MT)] for _ in range(CH)] for _ in range(RA)]
    a("s_waitcnt lgkmcnt(0)")
    stamp(a, st)
    aptr, aoff, asize = a_src
    srd(a, SA, aptr, aoff, asize)
    srd(a, SB, b_ptr, 0, b_size)
    pfl = []
    if pf is not None:
        PSTEP = W * 64 * 128
        vpd = a.v()
        vp7 = a.v()
        a(f"v_lshlrev_b32 v{vp7}, 7, v0")
        for (pptr, pbytes, pstart, plen) in pf:
            pper = (plen // 32 + 127) // 128 * 128
            npf = (pper + PSTEP - 1) // PSTEP
            for i in range(npf):
                lines = [f"s_mov_b32 s96, s{pptr}", f"s_and_b32 s97, s{pptr + 1}, 0xffff", f"s_mov_b32 s98, {min(pbytes, pstart + plen)}",
                         "s_mov_b32 s99, 0x00020000", "s_lshr_b32 s10, s2, 3", f"s_mul_i32 s10, s10, {pper}",
                         f"s_add_u32 s10, s10, {pstart + i * PSTEP}", f"buffer_load_dword v{vpd}, v{vp7}, s[96:99], s10 offen"]
                pfl.append((lines, 'p'))
    vm = []
    ctxs = [dict(a=a, NT=NTW, vrow=vrow[mt], vg=vg, vr16=vr16, vl=vl, t=(t0, t1, t2, t3), acc=acc[mt], vm=vm,
                 name=name, stile=64 + mt, mt=mt) for mt in range(MT)]
    epis = [epi() for _ in range(MT)]
    pend = []

    def queue_chunk(c):
        slot = c % ring
        if a_lds:
            for i in range(2 * APW):
                pend.append(([f"s_mov_b32 s10, {i * 8 * K * 2 + c * 128}",
                              f"s_add_u32 m0, s15, {A_LDS0 + slot * ASLOT + i * 1024}",
                              "s_nop 0",
                              f"buffer_load_dwordx4 v{vaoff[0]}, s[{SA}:{SA + 3}], s10 offen lds"], c))
        else:
            for s in range(CH):
                ks = c * CH + s
                for mt in range(MT):
                    vo = vaoff[mt][ks // 5] if shift else vaoff[mt]
                    pend.append(([f"s_mov_b32 s10, {c * CH * 1024}",
                                  f"buffer_load_dwordx4 {vr(areg[c % RA][s][mt], 4)}, v{vo}, s[{SA}:{SA + 3}], s10 offen offset:{s * 1024}"], c))
        for p in range(RPC):
            pend.append(([f"s_mov_b32 s10, {c * CH * 32 * ldb}",
                          f"s_add_u32 m0, s8, {slot * BSLOT + p * W * 1024}",
                          "s_nop 0",
                          f"buffer_load_dwordx4 v{vdma[p]}, s[{SB}:{SB + 3}], s10 offen lds"], c))

    def emit_pending(n=1):
        for _ in range(n):
            if not pend:
                return
            lines, tag = pend.pop(0)
            for l in lines:
                a(l)
            vm.append(tag)

    if ring < NCH:
        assert LA <= ring - 2
    stamp(a, st)
    for c in range(min(LA, NCH)):
        queue_chunk(c)
        emit_pending(1000)
        if c == 0:
            for mt in range(MT):
                if stats_src is not None:
                    vst = a.v(4, 4)
                    srd(a, 60, P_WS, stats_src, S * 64)
                    a(f"v_lshlrev_b32 v{t0}, 6, v{vrow[mt]}")
                    a(f"v_lshl_add_u32 v{t0}, v{vg}, 4, v{t0}")
                    a(f"buffer_load_dwordx4 {vr(vst, 4)}, v{t0}, s[60:63], 0 offen")
                    vm.append('r')
                    ctxs[mt]['vst'] = vst
                epis[mt].pre(ctxs[mt])
    stamp(a, st)
    for mt in range(MT):
        for t in range(NTW):
            for i in range(4):
                a(f"v_mov_b32 v{acc[mt][t] + i}, 0")
    if ln:
        for x in range(NX):
            for i in range(4):
                a(f"v_mov_b32 v{acs[x] + i}, 0")

    def wait_chunk(c):
        last = max(i for i, tg in enumerate(vm) if isinstance(tg, int) and tg <= c)
        n = min(63, len(vm) - 1 - last)
        a(f"s_waitcnt vmcnt({n})")

    units = []
    for ks in range(KS):
        for t in range(NTW):
            units.append((ks, t))
        if ln:
            for x in range(NX):
                units.append((ks, ('x', x)))
    NB = PD + 2
    breg = [a.v(4, 4) for _ in range(NB)]
    nrd = []

    def issue_read(i):
        ks, t = units[i]
        c = ks // CH
        slot = c % ring
        n = 0
        if a_lds and t == 0:
            for mt in range(MT):
                o = A_LDS0 + slot * ASLOT + mt * 2048
                a(f"ds_read_b128 {vr(areg[ks % 4][mt], 4)}, v{vard[ks % 2][o // 65536]} offset:{o % 65536}")
                n += 1
        off = slot * BSLOT + (ks % CH) * NT * 1024
        if isinstance(t, tuple):
            base = vbx[t[1]]
        else:
            base = vb[t % NPB]
            off += (t - t % NPB) * 32
        r = breg[i % NB]
        for h in range(2):
            o = off + h * 8 * NT * 32
            a(f"ds_read_b64_tr_b16 {vr(r + 2 * h, 2)}, v{base[o // 65536]} offset:{o % 65536}")
            n += 1
        nrd.append(n)

    nread = 0

    def advance_reads(upto):
        nonlocal nread
        while nread < min(upto, len(units)):
            ks, t = units[nread]
            if t == 0 and ks % CH == 0:
                c = ks // CH
                emit_pending(1000)
                wait_chunk(c)
                a("s_barrier")
                if NCH <= 5:
                    stamp(a, st)
                if c + LA < NCH:
                    queue_chunk(c + LA)
                elif c + LA == NCH and pf is not None and not os.environ.get("PFEND"):
                    pend.extend(pfl)
            issue_read(nread)
            nread += 1

    for i, (ks, t) in enumerate(units):
        advance_reads(i + PD + 1)
        ahead = sum(nrd[i + 1:nread])
        assert ahead <= 15
        a(f"s_waitcnt lgkmcnt({ahead})")
        c = ks // CH
        b = breg[i % NB]
        if isinstance(t, tuple):
            x = t[1]
            a(f"v_mfma_f32_16x16x32_bf16 {vr(acs[x], 4)}, {vr(b, 4)}, {vr(vones, 4)}, {vr(acs[x], 4)}")
        else:
            for mt in range(MT):
                ar = areg[ks % 4][mt] if a_lds else areg[c % RA][ks % CH][mt]
                a(f"v_mfma_f32_16x16x32_bf16 {vr(acc[mt][t], 4)}, {vr(b, 4)}, {vr(ar, 4)}, {vr(acc[mt][t], 4)}")
            if ln and t < 2 * MT and stats_src is None:
                mt = t // 2
                ar = areg[ks % 4][mt] if a_lds else areg[c % RA][ks % CH][mt]
                if t % 2 == 0:
                    a(f"v_mfma_f32_16x16x32_bf16 {vr(accs[mt], 4)}, {vr(vones, 4)}, {vr(ar, 4)}, {vr(accs[mt], 4)}")
                else:
                    a(f"v_mfma_f32_16x16x32_bf16 {vr(accq[mt], 4)}, {vr(ar, 4)}, {vr(ar, 4)}, {vr(accq[mt], 4)}")
        emit_pending(1)
    stamp(a, st)
    a("s_nop 7")
    a("s_nop 1")
    if ln:
        a("s_barrier")
        a(f"v_lshlrev_b32 v{t0}, 4, v{vg}")
        for x in range(NX):
            a(f"s_add_u32 s9, s7, {x * W}")
            a(f"s_min_u32 s9, s9, {NT - 1}")
            a("s_lshl_b32 s9, s9, 6")
            a(f"v_add_u32 v{t1}, s9, v{t0}")
            a(f"ds_write_b128 v{t1}, {vr(acs[x], 4)}")
        for mt in range(MT):
            if stats_src is not None:
                vst = ctxs[mt]['vst']
                a(f"v_add_f32 v{vsum[mt]}, v{vst}, v{vst + 2}")
                a(f"v_add_f32 v{vsq[mt]}, v{vst + 1}, v{vst + 3}")
                reduce_g(a, vsum[mt], t2)
                reduce_g(a, vsq[mt], t2)
            else:
                a(f"v_mov_b32 v{vsum[mt]}, v{accs[mt]}")
                a(f"v_and_b32 v{t2}, 3, v{vr16}")
                a(f"v_mov_b32 v{t3}, v{accq[mt]}")
                for i in range(1, 4):
                    a(f"v_cmp_eq_u32 vcc, {i}, v{t2}")
                    a("s_nop 1")
                    a(f"v_cndmask_b32 v{t3}, v{t3}, v{accq[mt] + i}, vcc")
                a(f"v_lshrrev_b32 v{t2}, 2, v{vr16}")
                a(f"v_lshl_add_u32 v{t2}, v{t2}, 4, v{vr16}")
                a(f"v_lshlrev_b32 v{t2}, 2, v{t2}")
                a(f"ds_bpermute_b32 v{vsq[mt]}, v{t2}, v{t3}")
        a("s_waitcnt lgkmcnt(0)")
        a("s_barrier")
        vcs = {}
        pool = list(breg)
        for x_ in areg:
            for y_ in x_:
                pool += (y_ if isinstance(y_, list) else [y_])
        if NS > 1:
            a("s_lshl_b32 s9, s13, 6")
            a(f"v_add_u32 v{t0}, s9, v{t0}")
        for t in range(NTW):
            vcs[t] = pool[t]
            a(f"ds_read_b128 {vr(vcs[t], 4)}, v{t0} offset:{t * 64}")

        def ln_stats(mean, var, mb, sqb):
            bf16r(a, mb, mean)
            bf16r(a, sqb, var)
            a(f"v_add_f32 v{sqb}, s9, v{sqb}")
            bf16r(a, sqb, sqb)
            a(f"v_sqrt_f32 v{sqb}, v{sqb}")
            a("s_nop 0")
            bf16r(a, sqb, sqb)

        vab = []
        for mt in range(MT):
            vmean, vvar, vmb, vsqb, va, vbb = vsum[mt], vsq[mt], a.v(), a.v(), a.v(), a.v()
            a(f"s_mov_b32 s9, {f32bits(1.0 / K):#x}")
            a(f"v_mul_f32 v{vmean}, s9, v{vmean}")
            a(f"v_mul_f32 v{vvar}, s9, v{vvar}")
            a(f"v_fma_f32 v{vvar}, -v{vmean}, v{vmean}, v{vvar}")
            a(f"v_max_f32 v{vvar}, 0, v{vvar}")
            a(f"s_mov_b32 s9, {f32bits(1e-5):#x}")
            ln_stats(vmean, vvar, vmb, vsqb)
            a(f"v_rcp_f32 v{va}, v{vsqb}")
            a("s_nop 0")
            a(f"v_mul_f32 v{vbb}, v{vmb}, v{va}")
            a(f"v_sub_f32 v{vbb}, 0, v{vbb}")
            if ln == 2:
                m2, s2 = a.v(), a.v()
                a(f"v_sub_f32 v{t2}, v{vmean}, v{vmb}")
                a(f"v_mul_f32 v{t2}, v{t2}, v{va}")
                a(f"v_mul_f32 v{t3}, v{vvar}, v{va}")
                a(f"v_mul_f32 v{t3}, v{t3}, v{va}")
                ln_stats(t2, t3, m2, s2)
                a(f"v_rcp_f32 v{s2}, v{s2}")
                a("s_nop 0")
                a(f"v_sub_f32 v{vbb}, v{vbb}, v{m2}")
                a(f"v_mul_f32 v{vbb}, v{vbb}, v{s2}")
                a(f"v_mul_f32 v{va}, v{va}, v{s2}")
            vab.append((va, vbb))
        a("s_waitcnt lgkmcnt(0)")
        for mt in range(MT):
            va, vbb = vab[mt]
            a(f"v_mov_b32 v{t0}, v{va}")
            a(f"v_mov_b32 v{t1}, v{va}")
            a(f"v_mov_b32 v{t2}, v{vbb}")
            a(f"v_mov_b32 v{t3}, v{vbb}")
            for t in range(NTW):
                for i in (0, 2):
                    r = vr(acc[mt][t] + i, 2)
                    a(f"v_pk_mul_f32 {r}, {r}, {vr(t0, 2)}")
                    a(f"v_pk_fma_f32 {r}, {vr(vcs[t] + i, 2)}, {vr(t2, 2)}, {r}")
    for mt in range(MT):
        epis[mt].post(ctxs[mt])
    if pf is not None and os.environ.get("PFEND"):
        pass
    if STAMP:
        a("s_waitcnt vmcnt(0)")
    stamp(a, st)
    stamp_flush(a, st, name)
    a.label(f"{name}_end")
    a("s_endpgm")
    assert a.maxv <= 256, a.maxv
    return a, lds_bytes, NWG, 64 * W


class EpiQKV:
    def pre(self, c):
        a = c['a']
        srd(a, 48, P_WS, WS_Q, 3 * ACT_BYTES)
        self.vo = tiled_offset(c, 60)

    def post(self, c):
        a, NT, acc = c['a'], c['NT'], c['acc']
        for t in range(NT):
            a(f"v_cvt_pk_bf16_f32 v{acc[t]}, v{acc[t]}, v{acc[t] + 1}")
            a(f"v_cvt_pk_bf16_f32 v{acc[t] + 1}, v{acc[t] + 2}, v{acc[t] + 3}")
            a(f"buffer_store_dwordx2 {vr(acc[t], 2)}, v{self.vo}, s[48:51], 0 offen offset:{t * 512}")


def out_offset(c, ld):
    a = c['a']
    vo = a.v()
    a(f"v_mul_u32_u24 v{vo}, {ld}, v{c['vrow']}")
    a(f"v_lshl_add_u32 v{vo}, v{c['vg']}, 3, v{vo}")
    a(f"v_lshl_add_u32 v{vo}, s6, 1, v{vo}")
    return vo


def reduce_g(a, vv, tmp):
    a(f"v_mov_b32 v{tmp}, v{vv}")
    a("s_nop 1")
    a(f"v_permlane16_swap_b32 v{vv}, v{tmp}")
    a("s_nop 1")
    a(f"v_add_f32 v{vv}, v{vv}, v{tmp}")
    a(f"v_mov_b32 v{tmp}, v{vv}")
    a("s_nop 1")
    a(f"v_permlane32_swap_b32 v{vv}, v{tmp}")
    a("s_nop 1")
    a(f"v_add_f32 v{vv}, v{vv}, v{tmp}")


class StatOut:
    def __init__(self, c, off):
        a = c['a']
        self.c, self.off = c, off
        self.s = a.v(2, 2)
        a(f"v_mov_b32 v{self.s}, 0")
        a(f"v_mov_b32 v{self.s + 1}, 0")

    def add_packed(self, pk, t0, t1):
        a = self.c['a']
        unpack2(a, t0, t1, pk)
        a(f"v_add_f32 v{self.s}, v{self.s}, v{t0}")
        a(f"v_fmac_f32 v{self.s + 1}, v{t0}, v{t0}")
        a(f"v_add_f32 v{self.s}, v{self.s}, v{t1}")
        a(f"v_fmac_f32 v{self.s + 1}, v{t1}, v{t1}")

    def finish(self):
        c = self.c
        a = c['a']
        t0, t1, t2, t3 = c['t']
        reduce_g(a, self.s, t0)
        reduce_g(a, self.s + 1, t0)
        srd(a, 60, P_WS, self.off, S * 64)
        a(f"v_lshlrev_b32 v{t0}, 6, v{c['vrow']}")
        a("s_lshl_b32 s9, s4, 3")
        a(f"v_add_u32 v{t0}, s9, v{t0}")
        a("s_mov_b32 s9, 0x80000000")
        a(f"v_mov_b32 v{t1}, s9")
        a(f"v_cmp_eq_u32 vcc, 0, v{c['vg']}")
        a("s_nop 1")
        a(f"v_cndmask_b32 v{t0}, v{t1}, v{t0}, vcc")
        a(f"buffer_store_dwordx2 {vr(self.s, 2)}, v{t0}, s[60:63], 0 offen")


def tiled_offset(c, ks_out):
    a = c['a']
    t0 = c['t'][0]
    vo = a.v()
    a(f"s_mul_i32 s9, s{c['stile']}, {ks_out * 1024}")
    a("s_lshl_b32 s14, s6, 5")
    a("s_add_u32 s9, s9, s14")
    a(f"v_lshrrev_b32 v{t0}, 1, v{c['vg']}")
    a(f"v_lshl_add_u32 v{t0}, v{t0}, 4, v{c['vr16']}")
    a(f"v_lshlrev_b32 v{vo}, 4, v{t0}")
    a(f"v_and_b32 v{t0}, 1, v{c['vg']}")
    a(f"v_lshl_add_u32 v{vo}, v{t0}, 3, v{vo}")
    a(f"v_add_u32 v{vo}, s9, v{vo}")
    return vo


def unpack2(a, lo, hi, src):
    if lo == src:
        a(f"v_and_b32 v{hi}, 0xffff0000, v{src}")
        a(f"v_lshlrev_b32 v{lo}, 16, v{src}")
    else:
        a(f"v_lshlrev_b32 v{lo}, 16, v{src}")
        a(f"v_and_b32 v{hi}, 0xffff0000, v{src}")


class EpiResid:
    def __init__(self, res_ptr, res_off, out_ptr, out_off):
        self.r = (res_ptr, res_off)
        self.o = (out_ptr, out_off)

    def pre(self, c):
        a, NT = c['a'], c['NT']
        srd(a, 48, self.o[0], self.o[1], ACT_BYTES)
        srd(a, 52, self.r[0], self.r[1], ACT_BYTES)
        self.vr = out_offset(c, D * 2)
        self.vo = tiled_offset(c, 20)
        self.res = [a.v(2, 2) for _ in range(NT)]
        for t in range(NT):
            a(f"buffer_load_dwordx2 {vr(self.res[t], 2)}, v{self.vr}, s[52:55], 0 offen offset:{t * 32}")
            c['vm'].append('r')

    def post(self, c):
        a, NT, acc = c['a'], c['NT'], c['acc']
        t0, t1, t2, t3 = c['t']
        so = StatOut(c, WS_STH)
        for t in range(NT):
            for hh in range(2):
                a(f"v_cvt_pk_bf16_f32 v{t0}, v{acc[t] + 2 * hh}, v{acc[t] + 2 * hh + 1}")
                unpack2(a, t1, t2, t0)
                unpack2(a, t0, t3, self.res[t] + hh)
                a(f"v_add_f32 v{t1}, v{t1}, v{t0}")
                a(f"v_add_f32 v{t2}, v{t2}, v{t3}")
                a(f"v_cvt_pk_bf16_f32 v{acc[t] + hh}, v{t1}, v{t2}")
                so.add_packed(acc[t] + hh, t0, t1)
            a(f"buffer_store_dwordx2 {vr(acc[t], 2)}, v{self.vo}, s[48:51], 0 offen offset:{t * 512}")
        so.finish()


GC1 = -2.0 * math.log2(math.e) * math.sqrt(2.0 / math.pi)
GC3 = GC1 * 0.044715


class EpiGelu:
    def __init__(self, out_off, ld, size):
        self.out_off, self.ld, self.size = out_off, ld, size

    def pre(self, c):
        a = c['a']
        srd(a, 48, P_WS, self.out_off, self.size)
        self.vo = tiled_offset(c, self.ld // 64)
        self.vc1 = a.v(6, 2)
        for i, cv in enumerate((GC1, GC1, GC3, GC3, 1.0, 1.0)):
            a(f"v_mov_b32 v{self.vc1 + i}, {f32bits(cv):#x}")

    def post(self, c):
        a, NT, acc = c['a'], c['NT'], c['acc']
        tt = c['t']
        for t in range(NT):
            r = [acc[t] + i for i in range(4)]
            a(f"v_cvt_pk_bf16_f32 v{tt[0]}, v{r[0]}, v{r[1]}")
            a(f"v_cvt_pk_bf16_f32 v{tt[1]}, v{r[2]}, v{r[3]}")
            unpack2(a, r[0], r[1], tt[0])
            unpack2(a, r[2], r[3], tt[1])
            for i in (0, 2):
                a(f"v_pk_mul_f32 {vr(tt[i], 2)}, {vr(r[i], 2)}, {vr(r[i], 2)}")
            for i in (0, 2):
                a(f"v_pk_fma_f32 {vr(tt[i], 2)}, {vr(tt[i], 2)}, {vr(self.vc1 + 2, 2)}, {vr(self.vc1, 2)}")
            for i in (0, 2):
                a(f"v_pk_mul_f32 {vr(tt[i], 2)}, {vr(tt[i], 2)}, {vr(r[i], 2)}")
            for i in range(4):
                a(f"v_exp_f32 v{tt[i]}, v{tt[i]}")
            a("s_nop 0")
            for i in (0, 2):
                a(f"v_pk_add_f32 {vr(tt[i], 2)}, {vr(tt[i], 2)}, {vr(self.vc1 + 4, 2)}")
            for i in range(4):
                a(f"v_rcp_f32 v{tt[i]}, v{tt[i]}")
            a("s_nop 0")
            for i in (0, 2):
                a(f"v_pk_mul_f32 {vr(r[i], 2)}, {vr(r[i], 2)}, {vr(tt[i], 2)}")
            a(f"v_cvt_pk_bf16_f32 v{acc[t]}, v{acc[t]}, v{acc[t] + 1}")
            a(f"v_cvt_pk_bf16_f32 v{acc[t] + 1}, v{acc[t] + 2}, v{acc[t] + 3}")
            a(f"buffer_store_dwordx2 {vr(acc[t], 2)}, v{self.vo}, s[48:51], 0 offen offset:{t * 512}")


class EpiX1:
    def pre(self, c):
        a, NT = c['a'], c['NT']
        srd(a, 48, P_WS, WS_X1, ACT_BYTES)
        srd(a, 52, P_WS, WS_H, ACT_BYTES)
        self.vo = tiled_offset(c, 20)
        self.res = [a.v(2, 2) for _ in range(NT)]
        for t in range(NT):
            a(f"buffer_load_dwordx2 {vr(self.res[t], 2)}, v{self.vo}, s[52:55], 0 offen offset:{t * 512}")
            c['vm'].append('r')

    def post(self, c):
        a, NT, acc = c['a'], c['NT'], c['acc']
        t0, t1, t2, t3 = c['t']
        vst = c['vst']
        mb, rs = vst, vst + 1
        a(f"v_add_f32 v{vst}, v{vst}, v{vst + 2}")
        a(f"v_add_f32 v{vst + 1}, v{vst + 1}, v{vst + 3}")
        reduce_g(a, vst, t0)
        reduce_g(a, vst + 1, t0)
        a(f"s_mov_b32 s9, {f32bits(1.0 / D):#x}")
        a(f"v_mul_f32 v{vst}, s9, v{vst}")
        a(f"v_mul_f32 v{vst + 1}, s9, v{vst + 1}")
        a(f"v_fma_f32 v{vst + 1}, -v{vst}, v{vst}, v{vst + 1}")
        a(f"v_max_f32 v{vst + 1}, 0, v{vst + 1}")
        a(f"s_mov_b32 s9, {f32bits(1e-5):#x}")
        bf16r(a, mb, mb)
        bf16r(a, rs, rs)
        a(f"v_add_f32 v{rs}, s9, v{rs}")
        bf16r(a, rs, rs)
        a(f"v_sqrt_f32 v{rs}, v{rs}")
        a("s_nop 0")
        bf16r(a, rs, rs)
        a(f"v_rcp_f32 v{rs}, v{rs}")
        so = StatOut(c, WS_STX)
        for t in range(NT):
            for hh in range(2):
                unpack2(a, t0, t1, self.res[t] + hh)
                a(f"v_sub_f32 v{t0}, v{t0}, v{mb}")
                a(f"v_sub_f32 v{t1}, v{t1}, v{mb}")
                a(f"v_cvt_pk_bf16_f32 v{t0}, v{t0}, v{t1}")
                unpack2(a, t0, t1, t0)
                a(f"v_mul_f32 v{t0}, v{t0}, v{rs}")
                a(f"v_mul_f32 v{t1}, v{t1}, v{rs}")
                a(f"v_cvt_pk_bf16_f32 v{t0}, v{t0}, v{t1}")
                unpack2(a, t0, t1, t0)
                a(f"v_cvt_pk_bf16_f32 v{t2}, v{acc[t] + 2 * hh}, v{acc[t] + 2 * hh + 1}")
                unpack2(a, t2, t3, t2)
                a(f"v_add_f32 v{t0}, v{t0}, v{t2}")
                a(f"v_add_f32 v{t1}, v{t1}, v{t3}")
                a(f"v_cvt_pk_bf16_f32 v{acc[t] + hh}, v{t0}, v{t1}")
                so.add_packed(acc[t] + hh, t0, t1)
            a(f"buffer_store_dwordx2 {vr(acc[t], 2)}, v{self.vo}, s[48:51], 0 offen offset:{t * 512}")
        so.finish()


class EpiFinal:
    def pre(self, c):
        a, NT = c['a'], c['NT']
        srd(a, 48, P_OUT, 0, ACT_BYTES)
        srd(a, 52, P_WS, WS_H, ACT_BYTES)
        srd(a, 56, P_WS, WS_X1, ACT_BYTES)
        self.vo = out_offset(c, D * 2)
        self.vt = tiled_offset(c, 20)
        self.h = [a.v(2, 2) for _ in range(NT)]
        self.x = [a.v(2, 2) for _ in range(NT)]
        for t in range(NT):
            a(f"buffer_load_dwordx2 {vr(self.h[t], 2)}, v{self.vt}, s[52:55], 0 offen offset:{t * 512}")
            c['vm'].append('r')
            a(f"buffer_load_dwordx2 {vr(self.x[t], 2)}, v{self.vt}, s[56:59], 0 offen offset:{t * 512}")
            c['vm'].append('r')

    def post(self, c):
        a, NT, acc = c['a'], c['NT'], c['acc']
        t0, t1, t2, t3 = c['t']
        for t in range(NT):
            for hh in range(2):
                a(f"v_cvt_pk_bf16_f32 v{t0}, v{acc[t] + 2 * hh}, v{acc[t] + 2 * hh + 1}")
                unpack2(a, t0, t1, t0)
                unpack2(a, t2, t3, self.x[t] + hh)
                a(f"v_add_f32 v{t0}, v{t0}, v{t2}")
                a(f"v_add_f32 v{t1}, v{t1}, v{t3}")
                a(f"v_cvt_pk_bf16_f32 v{t0}, v{t0}, v{t1}")
                unpack2(a, t0, t1, t0)
                unpack2(a, t2, t3, self.h[t] + hh)
                a(f"v_add_f32 v{t0}, v{t0}, v{t2}")
                a(f"v_add_f32 v{t1}, v{t1}, v{t3}")
                a(f"v_cvt_pk_bf16_f32 v{acc[t] + hh}, v{t0}, v{t1}")
            a(f"buffer_store_dwordx2 {vr(acc[t], 2)}, v{self.vo}, s[48:51], 0 offen offset:{t * 32}")


def gen_attn(name):
    a = Asm()
    W = 8
    PK = 8192
    PV = 8192 + 128
    L_K = 0
    L_BIAS = 3 * PK
    L_V = 4 * PK
    L_ONE = L_V + 3 * PV
    lds_bytes = L_ONE + 8192
    a("s_cmp_ge_u32 s2, 256")
    a(f"s_cbranch_scc1 {name}_end")
    st = [0]
    stamp(a, st)
    load_kernargs(a)
    a("s_and_b32 s4, s2, 7")
    a("s_lshr_b32 s3, s2, 3")
    a("s_lshl_b32 s4, s4, 2")
    a("s_and_b32 s5, s3, 3")
    a("s_add_u32 s4, s4, s5")
    a("s_lshr_b32 s3, s3, 2")
    a("s_lshl_b32 s5, s3, 8")
    vw, vl, vr16, vg = a.v(), a.v(), a.v(), a.v()
    t0, t1, t2, t3 = a.v(), a.v(), a.v(), a.v()
    a(f"v_lshrrev_b32 v{vw}, 6, v0")
    a(f"v_and_b32 v{vl}, 63, v0")
    a(f"v_and_b32 v{vr16}, 15, v0")
    a(f"v_bfe_u32 v{vg}, v0, 4, 2")
    a("s_nop 0")
    a(f"v_readfirstlane_b32 s7, v{vw}")
    a("s_lshl_b32 s8, s7, 10")
    a("s_mul_i32 s6, s4, 20")
    a("s_lshr_b32 s6, s6, 3")
    a("s_lshl_b32 s6, s6, 8")
    a("s_and_b32 s66, s4, 1")
    a("s_sub_u32 s9, s5, 256")
    a("s_mov_b32 s12, 0x80000000")
    a(f"v_add_u32 v{t1}, s9, v0")
    a(f"v_ashrrev_i32 v{t2}, 4, v{t1}")
    a(f"v_mul_i32_i24 v{t2}, 61440, v{t2}")
    a(f"v_lshl_add_u32 v{t2}, v{vr16}, 4, v{t2}")
    a(f"v_cmp_gt_i32 vcc, 0, v{t1}")
    a(f"v_mov_b32 v{t3}, s12")
    a("s_nop 1")
    a(f"v_cndmask_b32 v{t2}, v{t2}, v{t3}, vcc")
    a("s_waitcnt lgkmcnt(0)")
    srd(a, 40, P_WS, WS_Q, 3 * ACT_BYTES)
    srd(a, 52, P_WS, WS_O, ACT_BYTES)
    a("s_cmp_ge_u32 s2, 32")
    a(f"s_cbranch_scc1 {name}_nz")
    srd(a, 56, P_WS, WS_CNT, 32 * 256)
    a("s_lshl_b32 s10, s2, 8")
    a(f"v_mov_b32 v{t0}, 0")
    a(f"buffer_store_dword v{t0}, v{t0}, s[56:59], s10 offen")
    a.label(f"{name}_nz")
    for sec, base, pitch in ((1, L_K, PK), (2, L_V, PV)):
        for g in range(3):
            a(f"s_add_u32 s10, s6, {sec * 80 * 256 + g * 256}")
            a(f"s_add_u32 m0, s8, {base + g * pitch}")
            a("s_nop 0")
            a(f"buffer_load_dwordx4 v{t2}, s[40:43], s10 offen lds")
    vz = a.v(4, 4)
    a(f"v_mov_b32 v{vz}, 0")
    a(f"v_mov_b32 v{t3}, 0xf149")
    a(f"v_cndmask_b32 v{vz}, v{vz}, v{t3}, vcc")
    a(f"v_mov_b32 v{vz + 1}, 0")
    a(f"v_mov_b32 v{vz + 2}, 0")
    a(f"v_mov_b32 v{vz + 3}, 0")
    a(f"v_lshlrev_b32 v{t0}, 4, v0")
    a(f"ds_write_b128 v{t0}, {vr(vz, 4)} offset:{L_BIAS}")
    a(f"v_mov_b32 v{vz}, 0x3f80")
    a(f"ds_write_b128 v{t0}, {vr(vz, 4)} offset:{L_ONE}")
    vq = [a.v(4, 4) for _ in range(2)]
    vtok = a.v()
    a(f"v_lshl_add_u32 v{vtok}, v{vw}, 5, v{vr16}")
    a(f"v_add_u32 v{vtok}, s5, v{vtok}")
    a(f"v_lshrrev_b32 v{t0}, 4, v{vtok}")
    a(f"v_mul_u32_u24 v{t0}, 61440, v{t0}")
    a(f"v_lshl_add_u32 v{t0}, v{vr16}, 4, v{t0}")
    a(f"v_lshl_add_u32 v{t0}, v{vg}, 8, v{t0}")
    a(f"v_mov_b32 v{t3}, s12")
    a(f"v_cmp_gt_u32 vcc, 3, v{vg}")
    a("s_nop 1")
    a(f"v_cndmask_b32 v{t1}, v{t3}, v{t0}, vcc")
    for qt in range(2):
        a(f"s_add_u32 s10, s6, {qt * 61440}")
        a(f"buffer_load_dwordx4 {vr(vq[qt], 4)}, v{t1}, s[40:43], s10 offen")
    mfirst = a.v(4, 4)
    mlast = a.v(4, 4)
    a(f"v_mov_b32 v{t3}, 0xf149f2ca")
    a(f"v_lshlrev_b32 v{t0}, 2, v{vg}")
    for r in range(4):
        a(f"v_add_u32 v{t1}, {r}, v{t0}")
        a(f"v_cmp_gt_u32 vcc, v{t1}, v{vr16}")
        a("s_nop 1")
        a(f"v_cndmask_b32 v{mfirst + r}, v{t3}, 0, vcc")
        a(f"v_cndmask_b32 v{mlast + r}, 0, v{t3}, vcc")
    vka = a.v()
    a(f"v_lshlrev_b32 v{t0}, 4, v{vr16}")
    a(f"v_lshl_add_u32 v{t0}, v{vw}, 9, v{t0}")
    a(f"v_mul_u32_u24 v{t1}, {PK}, v{vg}")
    a(f"v_add_u32 v{vka}, v{t0}, v{t1}")
    vva = a.v()
    vvb = a.v()
    vvs = a.v()
    a(f"v_bfe_u32 v{t0}, v0, 2, 2")
    a(f"v_lshl_add_u32 v{t0}, v{vg}, 2, v{t0}")
    a(f"v_lshl_add_u32 v{t0}, v{vw}, 5, v{t0}")
    a(f"v_lshlrev_b32 v{t0}, 4, v{t0}")
    a(f"v_add_u32 v{t0}, {L_V}, v{t0}")
    a(f"v_and_b32 v{t1}, 3, v0")
    a(f"v_add_u32 v{t2}, s66, v{t1}")
    a(f"v_lshrrev_b32 v{t3}, 1, v{t2}")
    a(f"v_mul_u32_u24 v{t3}, {PV}, v{t3}")
    a(f"v_and_b32 v{t2}, 1, v{t2}")
    a(f"v_lshl_add_u32 v{t3}, v{t2}, 3, v{t3}")
    a(f"v_add_u32 v{vva}, v{t0}, v{t3}")
    a("s_lshl_b32 s67, s66, 3")
    a(f"s_add_u32 s67, s67, {2 * PV}")
    a(f"v_add_u32 v{vvb}, s67, v{t0}")
    a(f"v_cmp_eq_u32 vcc, 1, v{t1}")
    a(f"v_add_u32 v{t3}, {L_ONE - L_V}, v{t0}")
    a("s_nop 0")
    a(f"v_cndmask_b32 v{vvb}, v{vvb}, v{t3}, vcc")
    MIMIC = os.environ.get("MIMIC", "0") == "1"
    CS = math.log2(math.e) if MIMIC else (DH ** -0.5) * math.log2(math.e)
    vsc = a.v(2, 2)
    a(f"v_mov_b32 v{vsc}, {f32bits(DH ** -0.5):#x}")
    a(f"v_mov_b32 v{vsc + 1}, {f32bits(DH ** -0.5):#x}")
    a(f"s_mov_b32 s13, {f32bits(CS):#x}")
    stamp(a, st)
    a("s_waitcnt vmcnt(0) lgkmcnt(0)")
    stamp(a, st)
    a(f"v_cmp_eq_u32 vcc, 3, v{vg}")
    a(f"v_mov_b32 v{t3}, 0x3f80")
    a("s_nop 0")
    for qt in range(2):
        a(f"v_cndmask_b32 v{vq[qt]}, v{vq[qt]}, v{t3}, vcc")
    a("s_lshl_b32 s10, s66, 1")
    a("s_sub_u32 s10, 2, s10")
    a(f"v_cmp_eq_u32 vcc, s10, v{vg}")
    a("s_cmp_eq_u32 s66, 0")
    a(f"s_cbranch_scc1 {name}_even")
    for qt in range(2):
        a(f"v_cndmask_b32 v{vq[qt]}, v{vq[qt]}, 0, vcc")
        a(f"v_cndmask_b32 v{vq[qt] + 1}, v{vq[qt] + 1}, 0, vcc")
    a(f"s_branch {name}_qdone")
    a.label(f"{name}_even")
    for qt in range(2):
        a(f"v_cndmask_b32 v{vq[qt] + 2}, v{vq[qt] + 2}, 0, vcc")
        a(f"v_cndmask_b32 v{vq[qt] + 3}, v{vq[qt] + 3}, 0, vcc")
    a.label(f"{name}_qdone")
    a("s_barrier")
    srd(a, 96, P_W1, 0, 819200)
    vpd = a.v(4, 4)
    a("s_lshr_b32 s15, s2, 3")
    a("s_mul_i32 s15, s15, 25600")
    a(f"v_lshlrev_b32 v{t0}, 6, v0")
    a(f"v_add_u32 v{t0}, s15, v{t0}")
    a(f"buffer_load_dword v{vpd}, v{t0}, s[96:99], 0 offen")
    srd(a, 92, P_W2, 0, 819200)
    a(f"buffer_load_dword v{vpd + 1}, v{t0}, s[92:95], 0 offen")
    sreg = [a.v(4, 4) for _ in range(18)]
    kf = [a.v(4, 4) for _ in range(4)]
    vf = [a.v(4, 4) for _ in range(6)]
    oacc = [a.v(4, 4) for _ in range(2)]
    preg = [a.v(4, 4) for _ in range(9)]
    vtmp = a.v()
    vadr = a.v()
    vm_, vmc = a.v(), a.v()
    for qt in range(2):
        def kread(i):
            a(f"ds_read_b128 {vr(kf[i % 4], 4)}, v{vka} offset:{(qt + i) * 256}")
        for i in range(3):
            kread(i)
        for i in range(17):
            if i + 3 < 17:
                kread(i + 3)
            ahead = min(3, 16 - i)
            a(f"s_waitcnt lgkmcnt({ahead})")
            cop = vr(mfirst, 4) if i == 0 else (vr(mlast, 4) if i == 16 else "0")
            a(f"v_mfma_f32_16x16x32_bf16 {vr(sreg[i], 4)}, {vr(kf[i % 4], 4)}, {vr(vq[qt], 4)}, {cop}")
        a("s_nop 7")
        a("s_nop 1")
        stamp(a, st)
        vals = [sreg[i] + r for i in range(17) for r in range(4)]
        if MIMIC:
            for j in range(0, 68, 2):
                v0_, v1_ = vals[j], vals[j + 1]
                a(f"v_cvt_pk_bf16_f32 v{vtmp}, v{v0_}, v{v1_}")
                a(f"v_lshlrev_b32 v{v0_}, 16, v{vtmp}")
                a(f"v_and_b32 v{v1_}, 0xffff0000, v{vtmp}")
                a(f"v_pk_mul_f32 {vr(v0_, 2)}, {vr(v0_, 2)}, {vr(vsc, 2)}")
                a(f"v_cvt_pk_bf16_f32 v{vtmp}, v{v0_}, v{v1_}")
                a(f"v_lshlrev_b32 v{v0_}, 16, v{vtmp}")
                a(f"v_and_b32 v{v1_}, 0xffff0000, v{vtmp}")
        a(f"v_max3_f32 v{vm_}, v{vals[0]}, v{vals[1]}, v{vals[2]}")
        j = 3
        while j + 1 < len(vals):
            a(f"v_max3_f32 v{vm_}, v{vm_}, v{vals[j]}, v{vals[j + 1]}")
            j += 2
        if j < len(vals):
            a(f"v_max_f32 v{vm_}, v{vm_}, v{vals[j]}")
        a(f"v_mov_b32 v{vtmp}, v{vm_}")
        a("s_nop 1")
        a(f"v_permlane16_swap_b32 v{vm_}, v{vtmp}")
        a("s_nop 1")
        a(f"v_max_f32 v{vm_}, v{vm_}, v{vtmp}")
        a(f"v_mov_b32 v{vtmp}, v{vm_}")
        a("s_nop 1")
        a(f"v_permlane32_swap_b32 v{vm_}, v{vtmp}")
        a("s_nop 1")
        a(f"v_max_f32 v{vm_}, v{vm_}, v{vtmp}")
        a(f"v_mul_f32 v{vmc}, s13, v{vm_}")
        for p_ in range(2):
            k0_ = 16 * (qt + 2 * p_)
            a(f"ds_read_b64_tr_b16 {vr(vf[2 * p_], 2)}, v{vva} offset:{k0_ * 16}")
            a(f"ds_read_b64_tr_b16 {vr(vf[2 * p_] + 2, 2)}, v{vva} offset:{(k0_ + 16) * 16}")
            a(f"ds_read_b64_tr_b16 {vr(vf[2 * p_ + 1], 2)}, v{vvb} offset:{k0_ * 16}")
            a(f"ds_read_b64_tr_b16 {vr(vf[2 * p_ + 1] + 2, 2)}, v{vvb} offset:{(k0_ + 16) * 16}")
        for v in vals:
            a(f"v_fma_f32 v{v}, v{v}, s13, -v{vmc}")
        for v in vals:
            a(f"v_exp_f32 v{v}, v{v}")
        a("s_nop 0")
        for p in range(9):
            ta, tb = 2 * p, 2 * p + 1
            a(f"v_cvt_pk_bf16_f32 v{preg[p]}, v{sreg[ta]}, v{sreg[ta] + 1}")
            a(f"v_cvt_pk_bf16_f32 v{preg[p] + 1}, v{sreg[ta] + 2}, v{sreg[ta] + 3}")
            if tb < 17:
                a(f"v_cvt_pk_bf16_f32 v{preg[p] + 2}, v{sreg[tb]}, v{sreg[tb] + 1}")
                a(f"v_cvt_pk_bf16_f32 v{preg[p] + 3}, v{sreg[tb] + 2}, v{sreg[tb] + 3}")
            else:
                a(f"v_mov_b32 v{preg[p] + 2}, 0")
                a(f"v_mov_b32 v{preg[p] + 3}, 0")
        def vread(p):
            k0 = 16 * (qt + 2 * p)
            k1 = k0 + 16 if 2 * p + 1 < 17 else k0
            fa, fb = vf[(2 * p) % 6], vf[(2 * p + 1) % 6]
            a(f"ds_read_b64_tr_b16 {vr(fa, 2)}, v{vva} offset:{k0 * 16}")
            a(f"ds_read_b64_tr_b16 {vr(fa + 2, 2)}, v{vva} offset:{k1 * 16}")
            a(f"ds_read_b64_tr_b16 {vr(fb, 2)}, v{vvb} offset:{k0 * 16}")
            a(f"ds_read_b64_tr_b16 {vr(fb + 2, 2)}, v{vvb} offset:{k1 * 16}")
        stamp(a, st)
        for p in range(9):
            if p + 2 < 9:
                vread(p + 2)
            a(f"s_waitcnt lgkmcnt({4 * min(2, 8 - p)})")
            fa, fb = vf[(2 * p) % 6], vf[(2 * p + 1) % 6]
            c0 = "0" if p == 0 else vr(oacc[0], 4)
            c1 = "0" if p == 0 else vr(oacc[1], 4)
            a(f"v_mfma_f32_16x16x32_bf16 {vr(oacc[0], 4)}, {vr(fa, 4)}, {vr(preg[p], 4)}, {c0}")
            a(f"v_mfma_f32_16x16x32_bf16 {vr(oacc[1], 4)}, {vr(fb, 4)}, {vr(preg[p], 4)}, {c1}")
        a("s_nop 7")
        a("s_nop 1")
        a(f"v_lshlrev_b32 v{vtmp}, 2, v{vr16}")
        a(f"v_add_u32 v{vtmp}, 64, v{vtmp}")
        a(f"ds_bpermute_b32 v{vm_}, v{vtmp}, v{oacc[1]}")
        a("s_waitcnt lgkmcnt(0)")
        a(f"v_rcp_f32 v{vm_}, v{vm_}")
        a("s_nop 0")
        for r in range(4):
            a(f"v_mul_f32 v{oacc[0] + r}, v{oacc[0] + r}, v{vm_}")
            a(f"v_mul_f32 v{oacc[1] + r}, v{oacc[1] + r}, v{vm_}")
        a(f"v_cvt_pk_bf16_f32 v{oacc[0]}, v{oacc[0]}, v{oacc[0] + 1}")
        a(f"v_cvt_pk_bf16_f32 v{oacc[0] + 1}, v{oacc[0] + 2}, v{oacc[0] + 3}")
        a(f"v_cvt_pk_bf16_f32 v{oacc[1]}, v{oacc[1]}, v{oacc[1] + 1}")
        a(f"v_cvt_pk_bf16_f32 v{oacc[1] + 1}, v{oacc[1] + 2}, v{oacc[1] + 3}")
        a(f"v_add_u32 v{vtmp}, {16 * qt}, v{vtok}")
        a(f"v_lshrrev_b32 v{vtmp}, 4, v{vtmp}")
        a(f"v_mul_u32_u24 v{vtmp}, 20480, v{vtmp}")
        a(f"v_lshl_add_u32 v{vtmp}, v{vr16}, 4, v{vtmp}")
        a("s_mul_i32 s14, s4, 20")
        for which in range(2):
            if which == 0:
                a(f"v_lshl_add_u32 v{vadr}, v{vg}, 2, s14")
            else:
                a(f"v_mov_b32 v{vadr}, s14")
                a(f"v_add_u32 v{vadr}, 16, v{vadr}")
            a(f"v_lshrrev_b32 v{vm_}, 3, v{vadr}")
            a(f"v_and_b32 v{vadr}, 7, v{vadr}")
            a(f"v_lshlrev_b32 v{vadr}, 1, v{vadr}")
            a(f"v_lshl_add_u32 v{vadr}, v{vm_}, 8, v{vadr}")
            a(f"v_add_u32 v{vadr}, v{vadr}, v{vtmp}")
            if which == 1:
                a(f"v_mov_b32 v{vm_}, s12")
                a(f"v_cmp_eq_u32 vcc, 0, v{vg}")
                a("s_nop 1")
                a(f"v_cndmask_b32 v{vadr}, v{vm_}, v{vadr}, vcc")
            a(f"buffer_store_dwordx2 {vr(oacc[which], 2)}, v{vadr}, s[52:55], 0 offen")
        stamp(a, st)
    if STAMP:
        a("s_waitcnt vmcnt(0)")
    stamp(a, st)
    stamp_flush(a, st, name)
    a.label(f"{name}_end")
    a("s_endpgm")
    return a, lds_bytes, 256, 512


def build():
    cfg = os.environ.get("CFG", "A")
    ks = []

    def add(name, **kw):
        ks.append((name,) + gen_gemm(name, **kw))

    if os.environ.get("WARM"):
        w = Asm()
        w("s_endpgm")
        ks.append(("k0_warm_kernel", w, 0, 256, 64))
    add("k1_qkv_kernel", NT=8, W=4, MT=2, KS=20, ldb=3840, n_ntiles=15, ring=5, CH=2, a_lds=True, LA=3,
        a_src=(P_X, 0, ACT_BYTES), b_ptr=P_WQKV, b_size=640 * 1920 * 2, ln=1, shift=False, epi=EpiQKV, pf=[(P_WO, 819200, 0, 819200)], map2d=True)
    ks.append(("k2_attn_kernel",) + gen_attn("k2_attn_kernel"))
    small = dict(NT=5, W=4, MT=1, n_ntiles=8) if cfg == "A" else dict(NT=4, W=4, MT=2, n_ntiles=10)
    add("k3_wo_kernel", KS=20, ldb=1280, ring=5, a_src=(P_WS, WS_O, ACT_BYTES), b_ptr=P_WO, b_size=640 * 640 * 2, ln=0,
        shift=False, epi=lambda: EpiResid(P_X, 0, P_WS, WS_H), pf=[(P_W3, 1966080, 0, 983040)], **small)
    add("k4_w1_kernel", KS=20, ldb=1280, ring=5, a_src=(P_WS, WS_H, ACT_BYTES), b_ptr=P_W1, b_size=640 * 640 * 2, ln=2,
        shift=False, epi=lambda: EpiGelu(WS_G, 1280, ACT_BYTES), stats_src=WS_STH, pf=[(P_W3, 1966080, 983040, 983040)], **small)
    add("k5_w2_kernel", KS=20, ldb=1280, ring=5, a_src=(P_WS, WS_G, ACT_BYTES), b_ptr=P_W2, b_size=640 * 640 * 2, ln=0,
        shift=True, epi=EpiX1, stats_src=WS_STH, pf=[(P_W4, 1966080, 0, 983040)], **small)
    add("k6_w3_kernel", NT=6, W=4, MT=2, KS=20, ldb=3072, n_ntiles=16, ring=10, a_src=(P_WS, WS_X1, ACT_BYTES), b_ptr=P_W3,
        b_size=640 * 1536 * 2, ln=1, shift=False, epi=lambda: EpiGelu(WS_T, 3072, S * F * 2), stats_src=WS_STX, CH=2, LA=4, pf=[(P_W4, 1966080, 983040, 983040)])
    add("k7_w4_kernel", KS=48, ldb=1280, ring=7, a_src=(P_WS, WS_T, S * F * 2), b_ptr=P_W4, b_size=1536 * 640 * 2, ln=0,
        shift=False, epi=EpiFinal, LA=3, **small)
    ref = open("sequential_preLN__sliding_block__mixer_s_mlp__prompt.s.ref").read()
    head = []
    for line in ref.splitlines():
        if not line.startswith(";"):
            break
        if "@launch" in line or "Override launch" in line or "grid=ceil" in line:
            continue
        head.append(line)
    out = "\n".join(head) + "\n"
    for name, a, lds, nwg, thr in ks:
        out += f"; @launch kernel={name} grid=({nwg},1,1) block=({thr},1,1) lds={lds}\n"
    out += '.amdgcn_target "amdgcn-amd-amdhsa--gfx950"\n.text\n'
    for name, a, lds, nwg, thr in ks:
        out += kernel_header(name) + a.text()
    out += '.section .rodata,"a"\n'
    for name, a, lds, nwg, thr in ks:
        out += ".p2align 6\n" + kernel_desc(name, a.maxv)
        print(name, "vgprs", a.maxv, "lds", lds, "wgs", nwg, "instrs", len(a.lines), file=sys.stderr)
    return out


if __name__ == "__main__":
    if len(sys.argv) > 2 and sys.argv[2] == "stamp":
        STAMP = True
    path = sys.argv[1] if len(sys.argv) > 1 else "sequential_preLN__sliding_block__mixer_s_mlp__prompt.s"
    open(path, "w").write(build())
```
